```python
import torch

def _softmax(x, axis=-1):
    return torch.softmax(x, dim=axis)

def _gelu(x):
    return torch.nn.functional.gelu(x, approximate='tanh')

def _silu(x):
    return torch.nn.functional.silu(x)

def _sigmoid(x):
    return torch.sigmoid(x)

def _layernorm(x, axis=-1, eps=1e-05):
    m = x.mean(dim=axis, keepdim=True)
    v = x.var(dim=axis, keepdim=True, unbiased=False)
    return (x - m) / torch.sqrt(v + eps)

def _scatter_add(tgt, idx, src, axis=0):
    return tgt.clone().index_add_(axis, idx, src)

def _segment_sum(src, seg, n):
    out = torch.zeros((n,) + src.shape[1:], dtype=src.dtype)
    return out.index_add_(0, seg, src)

def _pad(x, pw):
    flat = tuple((v for pair in reversed(pw) for v in pair))
    return torch.nn.functional.pad(x, flat)
kernel_name = 'sequential_preLN__mha_block__mixer_gmlp__prompt'

def setup_inputs():

    _w = lambda a: (lambda t: t.to(torch.bfloat16) if t.is_floating_point() else t)(torch.as_tensor(a))

    def _A_setup():
        B, S, D, H = (1, 2048, 1024, 32)
        return {'x': _w((lambda *s: torch.randn(*s, dtype=torch.bfloat16) * 0.05)(B, S, D)), 'wqkv': _w((lambda *s: torch.randn(*s, dtype=torch.bfloat16) * 0.05)(D, 3 * D)), 'wo': _w((lambda *s: torch.randn(*s, dtype=torch.bfloat16) * 0.05)(D, D))}
    _A_in = _A_setup()

    def _B_setup():
        B, S, D, F = (1, 2048, 1024, 3584)
        Fh = F // 2
        return {'x': _w((lambda *s: torch.randn(*s, dtype=torch.bfloat16) * 0.05)(B, S, D)), 'w_in': _w((lambda *s: torch.randn(*s, dtype=torch.bfloat16) * 1.6)(D, 2 * Fh)), 'w_sp': _w(0.01 * (lambda *s: torch.randn(*s, dtype=torch.bfloat16) * 1.6)(S, S)), 'b_sp': _w(1.0 + 0.01 * (lambda *s: torch.randn(*s, dtype=torch.bfloat16) * 0.05)(S)), 'w_out': _w((lambda *s: torch.randn(*s, dtype=torch.bfloat16) * 0.05)(Fh, D))}
    _B_in = _B_setup()
    return {'A_x': _A_in['x'], 'A_wqkv': _A_in['wqkv'], 'A_wo': _A_in['wo'], 'B_x': _B_in['x'], 'B_w_in': _B_in['w_in'], 'B_w_sp': _B_in['w_sp'], 'B_b_sp': _B_in['b_sp'], 'B_w_out': _B_in['w_out']}

def reference(A_x, A_wqkv, A_wo, B_x, B_w_in, B_w_sp, B_b_sp, B_w_out):

    def _A_ref(x, wqkv, wo):
        B, S, D = x.shape
        H = 32
        Dh = D // H
        qkv = (lambda x, *d: x.permute(*d))((x @ wqkv).reshape(B, S, 3, H, Dh), 2, 0, 3, 1, 4)
        q, k, v = (qkv[0], qkv[1], qkv[2])
        scores = torch.einsum('bhqd,bhkd->bhqk', q, k) * Dh ** (-0.5)
        p = _softmax(scores, axis=-1)
        o = torch.einsum('bhqk,bhkd->bhqd', p, v)
        return (lambda x, *d: x.permute(*d))(o, 0, 2, 1, 3).reshape(B, S, D) @ wo

    def _B_ref(x, w_in, w_sp, b_sp, w_out):
        B, S, D = x.shape
        F = w_in.shape[-1]
        Fh = F // 2
        z = _gelu(torch.einsum('bsd,df->bsf', x, w_in))
        z1 = z[..., :Fh].clone()
        z2 = _layernorm(z[..., Fh:], axis=-1)
        g = torch.einsum('ts,bsf->btf', w_sp, z2) + b_sp[None, :, None]
        return torch.einsum('bsf,fd->bsd', z1 * g, w_out)
    x = A_x
    h = x + _A_ref(_layernorm(x, axis=-1), A_wqkv, A_wo)
    h2 = h + _B_ref(_layernorm(h, axis=-1), B_w_in, B_w_sp, B_b_sp, B_w_out)
    return h2
```

```python
import re

REG_RE = re.compile(r'^(-?)(abs\()?([vas])(\d+|\[(\d+):(\d+)\])\)?$')

def parse_reg(tok):
    t = tok.strip()
    if t.startswith('-'): t = t[1:]
    if t.startswith('|') and t.endswith('|'): t = t[1:-1]
    if t.startswith('abs(') and t.endswith(')'): t = t[4:-1]
    if t == 'vcc': return [('s', 'vcc0'), ('s', 'vcc1')]
    if t == 'vcc_lo': return [('s', 'vcc0')]
    if t == 'vcc_hi': return [('s', 'vcc1')]
    if t == 'exec': return [('s', 'exec0'), ('s', 'exec1')]
    if t == 'exec_lo': return [('s', 'exec0')]
    if t == 'exec_hi': return [('s', 'exec1')]
    if t == 'm0': return [('s', 'm0')]
    m = re.match(r'^([vas])(\d+)$', t)
    if m: return [(m.group(1), int(m.group(2)))]
    m = re.match(r'^([vas])\[(\d+):(\d+)\]$', t)
    if m: return [(m.group(1), i) for i in range(int(m.group(2)), int(m.group(3)) + 1)]
    return []

TRANS = ('v_exp_', 'v_log_', 'v_rcp_', 'v_rsq_', 'v_sqrt_', 'v_sin_', 'v_cos_')
EXEC = [('s', 'exec0'), ('s', 'exec1')]
VCC = [('s', 'vcc0'), ('s', 'vcc1')]

class Ins:
    __slots__ = ('text', 'op', 'kind', 'rd', 'wr', 'srcA', 'srcB', 'srcC', 'passes', 'meta', 'wide', 'dpp', 'label', 'target', 'nops', 'vm', 'lg', 'srd')
    def __init__(self, text, **meta):
        self.text = text; self.meta = meta
        self.rd = []; self.wr = []; self.srcA = self.srcB = self.srcC = []
        self.passes = 0; self.wide = False; self.dpp = False; self.label = None; self.target = None
        self.nops = 0; self.vm = None; self.lg = None; self.srd = []
        t = text.split(';')[0].strip()
        if t.endswith(':'):
            self.kind = 'label'; self.label = t[:-1]; self.op = ''; return
        if t.startswith('.') or t == '':
            self.kind = 'dir'; self.op = ''; return
        parts = t.split(None, 1)
        op = self.op = parts[0]
        rest = parts[1] if len(parts) > 1 else ''
        if op == 'WAIT': self.kind = 'wait'; return
        if op == 'STAGE': self.kind = 'stage'; return
        ops = [x.strip() for x in rest.split(',')] if rest else []
        mods = ''
        if ops:
            last = ops[-1].split(None, 1)
            ops[-1] = last[0]
            mods = last[1] if len(last) > 1 else ''
        cut = None
        for i, o in enumerate(ops):
            if ' ' in o and i < len(ops) - 1:
                cut = i; break
        if cut is not None:
            mods = ops[cut].split(None, 1)[1] + ',' + ','.join(ops[cut + 1:]) + ' ' + mods
            ops = ops[:cut] + [ops[cut].split(None, 1)[0]]
        R = [parse_reg(o) for o in ops]
        flat = lambda L: [x for l in L for x in l]
        if op.startswith('v_mfma') or op.startswith('v_smfmac'):
            self.kind = 'mfma'; self.wr = R[0]; self.srcA = R[1]; self.srcB = R[2]
            if op.startswith('v_smfmac'):
                self.srcC = R[0]; self.srcB = R[2] + R[3]
                self.passes = 8 if '16x16x64' in op else 16
            else:
                self.srcC = R[3]
                self.passes = 8 if '32x32x16' in op else 4
                assert '32x32x16' in op or '16x16x32' in op, op
            self.rd = self.srcA + self.srcB + self.srcC + EXEC
        elif op.startswith('v_'):
            self.kind = 'valu'
            self.dpp = ('_dpp' in op) or bool(re.search(r'(quad_perm|row_\w+|wave_\w+)', mods))
            if op.startswith('v_cmpx'):
                self.wr = R[0] + EXEC; self.rd = flat(R[1:])
            elif op.startswith('v_cmp'):
                self.wr = R[0]; self.rd = flat(R[1:])
            elif op.startswith('v_permlane') and 'swap' in op or op.startswith('v_swap'):
                self.wr = R[0] + R[1]; self.rd = R[0] + R[1]
            elif op.startswith(('v_add_co', 'v_sub_co', 'v_addc_co', 'v_subb_co', 'v_div_scale', 'v_mad_u64')):
                self.wr = R[0] + R[1]; self.rd = flat(R[2:])
            elif op.startswith(('v_fmac', 'v_pk_fmac', 'v_dot2c', 'v_writelane')) or self.dpp or 'UNUSED_PRESERVE' in mods:
                self.wr = R[0]; self.rd = flat(R)
            elif op == 'v_nop':
                pass
            else:
                self.wr = R[0]; self.rd = flat(R[1:])
            self.rd = self.rd + EXEC
        elif op.startswith('buffer_') or op.startswith('global_'):
            self.kind = 'vmem'
            isbuf = op.startswith('buffer_')
            if op in ('buffer_inv', 'buffer_wbl2'):
                pass
            elif re.search(r'\blds\b', mods):
                self.rd = flat(R) + [('s', 'm0')]; self.meta.setdefault('dma', True)
            elif 'load' in op:
                self.wr = R[0]; self.rd = flat(R[1:])
            elif 'store' in op:
                self.rd = flat(R); self.wide = 'x3' in op or 'x4' in op
                self.srcA = R[0] if isbuf else R[1]
            elif 'atomic' in op:
                self.rd = flat(R)
                if 'sc0' in mods: self.wr = R[0]
            else:
                raise ValueError(op)
            self.rd = self.rd + EXEC
        elif op.startswith('ds_'):
            self.kind = 'ds'
            if op.startswith(('ds_read', 'ds_bpermute', 'ds_permute', 'ds_swizzle')) or '_rtn' in op:
                self.wr = R[0]; self.rd = flat(R[1:])
            else:
                self.rd = flat(R)
            self.rd = self.rd + EXEC
        elif op.startswith(('s_load', 's_buffer_load', 's_memtime', 's_memrealtime')):
            self.kind = 'smem'; self.wr = R[0]; self.rd = flat(R[1:])
        elif op == 's_waitcnt':
            self.kind = 'rawwait'
            m = re.search(r'vmcnt\((\d+)\)', t); self.vm = int(m.group(1)) if m else None
            m = re.search(r'lgkmcnt\((\d+)\)', t); self.lg = int(m.group(1)) if m else None
        elif op == 's_nop':
            self.kind = 'nop'
        elif op in ('s_branch',) or op.startswith('s_cbranch'):
            self.kind = 'branch'; self.target = ops[0]
            if 'vcc' in op: self.rd = list(VCC)
            if 'exec' in op: self.rd = list(EXEC)
        elif op == 's_endpgm':
            self.kind = 'end'
        elif op.startswith('s_'):
            self.kind = 'salu'
            if op.startswith(('s_cmp', 's_barrier', 's_setprio', 's_sleep', 's_bitcmp', 's_setreg')):
                self.rd = flat(R)
            elif 'saveexec' in op:
                self.wr = R[0] + EXEC; self.rd = flat(R[1:]) + EXEC
            elif op.startswith(('s_addk', 's_mulk')):
                self.wr = R[0]; self.rd = flat(R)
            else:
                self.wr = R[0]; self.rd = flat(R[1:])
        else:
            raise ValueError('unknown op ' + text)

    def states(self):
        if self.kind in ('label', 'dir', 'stage'): return 0
        if self.kind == 'nop': return int(self.text.split()[1]) + 1
        return 1

def ov(a, b):
    return bool(set(a) & set(b))
def vregs(l): return [x for x in l if x[0] in 'va']
def sregs(l): return [x for x in l if x[0] == 's']

def need_states(p, c):
    n = 0
    pk, ck = p.kind, c.kind
    if pk == 'valu':
        pv, ps = vregs(p.wr), sregs(p.wr)
        if ck == 'mfma':
            if ov(pv, c.rd): n = max(n, 2)
            if ov(ps, EXEC): n = max(n, 4)
        if ck == 'valu':
            if c.dpp and ov(pv, c.rd): n = max(n, 2)
            if c.dpp and ov(ps, EXEC): n = max(n, 5)
            if c.op.startswith('v_permlane'):
                if ov(pv, c.rd): n = max(n, 2)
                if ov(ps, EXEC): n = max(n, 4)
            if c.op.startswith(('v_readlane', 'v_readfirstlane', 'v_writelane')):
                if ov(pv, c.rd): n = max(n, 1)
                if ov(ps, c.rd): n = max(n, 4)
            if ov([x for x in ps if x not in EXEC], c.rd): n = max(n, 4 if c.op.startswith('v_div_fmas') else 2)
            if p.op.startswith(TRANS) and not c.op.startswith(TRANS) and ov(pv, c.rd): n = max(n, 1)
            if p.op.startswith('v_dot') and (ov(pv, c.rd) or ov(pv, c.wr)): n = max(n, 3)
            if ('sdwa' in p.op or ('op_sel' in p.text and not p.op.startswith('v_pk_'))) and (ov(pv, c.rd) or ov(pv, c.wr)): n = max(n, 1)
        if ck == 'vmem' and ov([x for x in ps if x not in EXEC], c.rd): n = max(n, 5)
        if p.op.startswith('v_dot') and ck in ('vmem', 'ds', 'mfma') and ov(pv, c.rd): n = max(n, 3)
        if ck == 'branch' and ov(ps, c.rd): n = max(n, 5)
        if ck == 'salu' and ov(ps, c.rd): n = max(n, 1)
    elif pk == 'salu':
        if ('s', 'm0') in p.wr and ck == 'vmem' and ('s', 'm0') in c.rd: n = max(n, 1)
    elif pk == 'vmem':
        if p.wide and ov(p.srcA, c.wr): n = max(n, 2)
    elif pk == 'mfma':
        P = p.passes
        far = {4: 8, 8: 12, 16: 20}[P]
        if ck == 'mfma':
            if ov(p.wr, c.srcA) or ov(p.wr, c.srcB): n = max(n, far)
            if ov(p.wr, c.srcC):
                if not (p.wr == c.srcC and p.passes == c.passes): n = max(n, far - 2)
            elif ov(p.wr, c.wr): n = max(n, far - 2)
        elif ck in ('valu', 'vmem', 'ds'):
            if ov(p.wr, c.rd) or ov(p.wr, c.wr): n = max(n, far)
            if ck == 'valu' and ov(p.srcC, c.wr): n = max(n, {4: 3, 8: 7, 16: 15}[P])
    return n

class Prog:
    def __init__(self, name):
        self.name = name; self.L = []
    def __call__(self, text, **meta):
        for line in text.split('\n'):
            line = line.strip()
            if line and not line.startswith(';'):
                self.L.append(Ins(line, **meta))
        return self
    def label(self, l): self.L.append(Ins(l + ':'))
    def wait(self, regs=(), tag=None, age=0, vm0=False, lg0=False):
        i = Ins('WAIT'); r = []
        for x in regs: r += parse_reg(x)
        i.meta = dict(regs=set(r), tag=tag, age=age, vm0=vm0, lg0=lg0)
        self.L.append(i)
    def stage(self, tag):
        i = Ins('STAGE'); i.meta = dict(tag=tag); self.L.append(i)

    def traces(self, L):
        lab = {x.label: i for i, x in enumerate(L) if x.kind == 'label'}
        fw = [i for i, x in enumerate(L) if x.kind == 'branch' and x.op != 's_branch' and 'trips' not in x.meta]
        out = []
        pols = [set()] + [{i} for i in fw] + [set(p) for p in getattr(self, 'extra_pols', [])]
        groups = {}
        for i in fw:
            for g in L[i].meta.get('grp', []): groups.setdefault(g, set()).add(i)
        pols += list(groups.values())
        for pol in pols:
            tr = []; cnt = {}; i = 0; used = {}
            while True:
                x = L[i]; tr.append(i)
                assert len(tr) < 2000000, 'trace too long'
                if x.kind == 'end': break
                if x.kind == 'branch':
                    if x.op == 's_branch': i = lab[x.target]; continue
                    if 'trips' in x.meta:
                        c = cnt.get(i, 0) + 1
                        if c < x.meta['trips']:
                            cnt[i] = c; i = lab[x.target]; continue
                        cnt[i] = 0
                    elif i in pol and used.get(i, 0) < x.meta.get('maxtake', 1):
                        used[i] = used.get(i, 0) + 1
                        i = lab[x.target]; continue
                i += 1
            out.append(tr)
        return out

    def sim(self, L, tr, W, check=False):
        vm = []; lg = []
        st = {}
        eff = set()
        for i in tr:
            x = L[i]
            def need(regs, tag=None, age=0):
                nv = nl = None
                for k in range(len(vm) - 1, -1, -1):
                    o = vm[k]
                    if (o[0] & regs) or (tag is not None and o[1] == tag and o[2] <= st.get(tag, 0) - age):
                        nv = len(vm) - 1 - k; break
                for k in range(len(lg) - 1, -1, -1):
                    o = lg[k]
                    if (o[0] & regs) or (tag is not None and o[1] == tag and o[2] <= st.get(tag, 0) - age):
                        nl = len(lg) - 1 - k
                        if any(q[3] == 'smem' for q in lg): nl = 0
                        break
                return nv, nl
            def apply(nv, nl):
                ch = False
                if nv is not None and len(vm) > nv: del vm[:len(vm) - nv]; ch = True
                if nl is not None and len(lg) > nl:
                    if nl == 0 or not any(q[3] == 'smem' for q in lg): del lg[:len(lg) - nl]
                    ch = True
                return ch
            if x.kind == 'stage':
                st[x.meta['tag']] = st.get(x.meta['tag'], 0) + 1; continue
            if x.kind == 'rawwait':
                apply(x.vm, x.lg); continue
            if x.kind == 'wait':
                m = x.meta
                nv, nl = need(m['regs'], m['tag'], m['age'])
                if m['vm0'] and vm: nv = 0
                if m['lg0'] and lg: nl = 0
            elif x.kind in ('label', 'dir', 'nop', 'end'):
                continue
            else:
                nv, nl = need(set(x.rd) | set(x.wr))
            w = W.setdefault(i, [None, None])
            if not check:
                if nv is not None: w[0] = min(nv, 63) if w[0] is None else min(w[0], nv)
                if nl is not None: w[1] = min(nl, 15) if w[1] is None else min(w[1], nl)
            if w[0] is not None and len(vm) > w[0]: eff.add((i, 0))
            if w[1] is not None and len(lg) > w[1]: eff.add((i, 1))
            apply(w[0], w[1])
            if x.kind == 'vmem':
                t = x.meta.get('tag')
                vm.append((set(x.wr), t, st.get(t, 0), 'vmem', i))
                assert len(vm) <= 63 or x.meta.get('noovf'), f'vmcnt overflow at {x.text}'
            elif x.kind == 'ds':
                t = x.meta.get('tag')
                lg.append((set(x.wr), t, st.get(t, 0), 'ds', i))
            elif x.kind == 'smem':
                lg.append((set(x.wr), None, 0, 'smem', i))
        return eff

    def finalize(self, verbose=False):
        L = self.L
        trs = self.traces(L)
        W = {}
        for rep in range(3):
            for tr in trs: self.sim(L, tr, W)
        eff = set()
        for tr in trs: eff |= self.sim(L, tr, W, check=True)
        L2 = []; auto = 0
        for i, x in enumerate(L):
            w = W.get(i, [None, None])
            parts = []
            if w[0] is not None and (i, 0) in eff: parts.append(f'vmcnt({w[0]})')
            if w[1] is not None and (i, 1) in eff: parts.append(f'lgkmcnt({w[1]})')
            if parts:
                L2.append(Ins('s_waitcnt ' + ' '.join(parts)))
                if x.kind != 'wait': auto += 1
            if x.kind not in ('wait', 'stage'): L2.append(x)
        visited = set()
        for tr in trs: visited |= set(tr)
        unv = [L[i].text for i in range(len(L)) if i not in visited and L[i].kind not in ('dir', 'label')]
        assert not unv, f'unvisited code: {unv[:5]}'
        L = L2
        total = 0
        while True:
            trs = self.traces(L)
            add = {}
            for tr in trs:
                for n, i in enumerate(tr):
                    c = L[i]
                    if c.kind in ('label', 'dir', 'nop', 'rawwait', 'end'): continue
                    d = 0; k = n - 1
                    while k >= 0 and d < 20:
                        p = L[tr[k]]
                        if p.kind in ('valu', 'salu', 'vmem', 'mfma'):
                            r = need_states(p, c)
                            if r > d: add[i] = max(add.get(i, 0), r - d)
                        d += p.states(); k -= 1
            if not add: break
            L3 = []; last = -100
            for i, x in enumerate(L):
                if i in add and i - last > 20:
                    n = add[i]; total += n; last = i
                    if verbose: print(f'  [{self.name}] nop {n} before {x.text}')
                    while n > 0:
                        k = min(n, 16); L3.append(Ins(f's_nop {k-1}')); n -= k
                L3.append(x)
            L = L3
        self.final = L
        mx = {'v': -1, 'a': -1, 's': -1}
        for x in L:
            for k, r in x.rd + x.wr:
                if isinstance(r, int): mx[k] = max(mx[k], r)
        self.maxreg = mx
        if verbose: print(f'[{self.name}] ins={len(L)} autowaits={auto} nops={total} maxreg={mx}')
        return '\n'.join((x.text if x.kind in ('label', 'dir') else '  ' + x.text) for x in L) + '\n'

class Regs:
    def __init__(self, kind, start=0, limit=256):
        self.kind = kind; self.n = start; self.limit = limit
    def __call__(self, cnt=1, align=None):
        if align is None: align = 1 if cnt == 1 else (2 if self.kind != 's' else (4 if cnt >= 4 else 2))
        self.n = (self.n + align - 1) // align * align
        r = self.n; self.n += cnt
        assert self.n <= self.limit, f'out of {self.kind} regs'
        return r

def vr(b, n=1, k='v'):
    return f'{k}{b}' if n == 1 else f'{k}[{b}:{b+n-1}]'
def sr(b, n=1): return vr(b, n, 's')

def kernel_text(name, body, maxreg):
    nv = maxreg['v'] + 1; na = maxreg['a'] + 1
    acc = max(4, (nv + 3) // 4 * 4)
    tot = acc + na if na > 0 else max(nv, 1)
    return f""".text
.globl {name}
.p2align 8
.type {name},@function
{name}:
{body}.section .rodata,"a"
.p2align 6
.amdhsa_kernel {name}
  .amdhsa_next_free_vgpr {tot}
  .amdhsa_next_free_sgpr 102
  .amdhsa_accum_offset {acc}
  .amdhsa_group_segment_fixed_size 0
  .amdhsa_kernarg_size 88
  .amdhsa_user_sgpr_count 2
  .amdhsa_user_sgpr_kernarg_segment_ptr 1
  .amdhsa_system_sgpr_workgroup_id_x 1
  .amdhsa_float_denorm_mode_32 3
.end_amdhsa_kernel
"""
```

```python
from asmlib import *

MB = 1 << 20
WS_XN   = 0 * MB
WS_Q    = 4 * MB
WS_KV   = 8 * MB
WS_O    = 16 * MB
WS_H    = 20 * MB
WS_Z1   = 24 * MB
WS_Z2   = 32 * MB
WS_U    = 40 * MB
WS_WO   = 48 * MB
WS_WOUT = 50 * MB
WS_WIN  = 56 * MB
WS_WSP  = 64 * MB
WS_HST  = 72 * MB
WS_ZST  = 72 * MB + 262144
WS_CSP  = 73 * MB
WS_CS   = 73 * MB + 131072
WS_PROF = 80 * MB

S_X, S_WQKV, S_WO, S_BX, S_WIN, S_WSP, S_BSP, S_WOUT = 4, 6, 8, 10, 12, 14, 16, 18
S_OUT, S_DBG, S_WS = 20, 22, 24
S_WAVE = 26
S_FREE = 28

def prologue(P, endlabel):
    P(f"""
      s_cmp_ge_u32 s2, 256
      s_cbranch_scc1 {endlabel}
      s_load_dwordx16 s[4:19], s[0:1], 0
      s_load_dwordx4 s[20:23], s[0:1], 64
      s_load_dwordx2 s[24:25], s[0:1], 80
      v_lshrrev_b32 v1, 6, v0
      v_and_b32 v0, 63, v0
      v_readfirstlane_b32 s{S_WAVE}, v1
    """)

def srd(P, d, base, off, nbytes):
    if off == 0:
        P(f"s_mov_b32 s{d}, s{base}\n s_mov_b32 s{d+1}, s{base+1}")
    else:
        P(f"s_add_u32 s{d}, s{base}, {off}\n s_addc_u32 s{d+1}, s{base+1}, 0")
    P(f"s_mov_b32 s{d+2}, {nbytes}\n s_mov_b32 s{d+3}, 0x20000")

def map_wg(P, srb, scb, A):
    t = srb
    if A == 8:
        P(f"""s_and_b32 s{srb}, s2, 1
              s_lshl_b32 s{srb}, s{srb}, 3
              s_bfe_u32 s{scb}, s2, 0x30003
              s_or_b32 s{srb}, s{srb}, s{scb}
              s_bfe_u32 s{scb}, s2, 0x20001
              s_lshl_b32 s{scb}, s{scb}, 2
              s_lshr_b32 s3, s2, 6
              s_or_b32 s{scb}, s{scb}, s3""")
    elif A == 4:
        P(f"""s_and_b32 s{srb}, s2, 3
              s_lshl_b32 s{srb}, s{srb}, 2
              s_bfe_u32 s{scb}, s2, 0x20003
              s_or_b32 s{srb}, s{srb}, s{scb}
              s_bfe_u32 s{scb}, s2, 0x10002
              s_lshl_b32 s{scb}, s{scb}, 3
              s_lshr_b32 s3, s2, 5
              s_or_b32 s{scb}, s{scb}, s3""")
    elif A == 2:
        P(f"""s_and_b32 s{srb}, s2, 7
              s_lshl_b32 s{srb}, s{srb}, 1
              s_bfe_u32 s{scb}, s2, 0x10003
              s_or_b32 s{srb}, s{srb}, s{scb}
              s_lshr_b32 s{scb}, s2, 4""")
    elif A == 16:
        P(f"""s_bfe_u32 s{srb}, s2, 0x40003
              s_and_b32 s{scb}, s2, 7
              s_lshl_b32 s{scb}, s{scb}, 1
              s_lshr_b32 s3, s2, 7
              s_or_b32 s{scb}, s{scb}, s3""")
    else:
        raise ValueError

def mfma16(d, a, b, c=None):
    c = vr(d, 4) if c is None else c
    return f"v_mfma_f32_16x16x32_bf16 {vr(d,4)}, {vr(a,4)}, {vr(b,4)}, {c}"
def mfma32(d, a, b, c=None):
    c = vr(d, 16) if c is None else c
    return f"v_mfma_f32_32x32x16_bf16 {vr(d,16)}, {vr(a,4)}, {vr(b,4)}, {c}"

def xsum16(P, v, t):
    P(f"v_mov_b32 v{t}, v{v}\n v_permlane16_swap_b32 v{t}, v{v}\n v_add_f32 v{v}, v{t}, v{v}")
def xsum32(P, v, t):
    P(f"v_mov_b32 v{t}, v{v}\n v_permlane32_swap_b32 v{t}, v{v}\n v_add_f32 v{v}, v{t}, v{v}")

def f32(x):
    import struct
    return '0x%08x' % struct.unpack('<I', struct.pack('<f', x))[0]

class Gemm:
    def __init__(self, P, V, S, name, NB, KS, NST, U, XD, R, SLOT, swap, WD=4, raw=False, ldsbase=0):
        self.__dict__.update(locals()); del self.__dict__['self']
        self.acc = V(NB * 8, 4)
        self.X = V(XD * 16, 4)
        self.W = V(WD * 8, 4)
        self.nbase = 4 if raw else 1
        self.rb0 = V(self.nbase)
        self.rb = V(self.nbase)
        self.vx = V(1)
        self.dv = V(2 if raw else 1)
        self.sX = S(4); self.sW = S(4)
        self.s_xo = S(1); self.s_wo = S(1); self.s_wo2 = S(1)
        self.s_wr = S(1); self.s_rd = S(1); self.s_cnt = S(1); self.s_m = S(1)
        self.SP = NB * KS // 2
        assert (U * self.SP) % WD == 0 and (U * KS // 2) % XD == 0 and NST % U == 0
    def a(self, nb, mb): return self.acc + (nb * 2 + mb) * 4
    def xload(self, slot, i):
        r = self.X + slot * 16 + i * 4
        return f"buffer_load_dwordx4 {vr(r,4)}, v{self.vx}, {sr(self.sX,4)}, s{self.s_xo} offen offset:{i*1024}"
    def dma_ops(self):
        g = []
        sW = sr(self.sW, 4)
        if self.raw:
            for rp in range(2):
                g.append([f"s_add_u32 m0, s{self.s_wr}, {rp*1024}", f"buffer_load_dwordx4 v{self.dv+rp}, {sW}, s{self.s_wo} offen lds"])
                g.append([f"buffer_load_dwordx4 v{self.dv+rp}, {sW}, s{self.s_wo} offen offset:2048 lds"])
            for rp in range(2):
                g.append([f"s_add_u32 m0, s{self.s_wr}, {4096+rp*1024}", f"buffer_load_dwordx4 v{self.dv+rp}, {sW}, s{self.s_wo2} offen lds"])
            adv = 64 * 6144
        else:
            n = self.SLOT // 4096
            for i in range(n):
                pre = []
                if i == 0: pre = [f"s_mov_b32 m0, s{self.s_wr}"]
                if i == 4: pre = [f"s_add_u32 m0, s{self.s_wr}, 4096"]
                so = self.s_wo if i < 4 else self.s_wo2
                g.append(pre + [f"buffer_load_dwordx4 v{self.dv}, {sW}, s{so} offen offset:{(i%4)*1024} lds"])
            adv = self.SLOT
        a = [f"s_add_u32 s{self.s_wo}, s{self.s_wo}, {adv}"]
        if len(g) > 4: a.append(f"s_add_u32 s{self.s_wo2}, s{self.s_wo}, 4096")
        a += [f"s_add_u32 s{self.s_wr}, s{self.s_wr}, {self.SLOT}",
              f"s_cmp_ge_u32 s{self.s_wr}, s{self.s_m}",
              f"s_cselect_b32 s3, {self.SLOT*self.R}, 0",
              f"s_sub_u32 s{self.s_wr}, s{self.s_wr}, s3"]
        return g, a
    def wreads(self, nb, kp, slot):
        r = self.W + slot * 8
        if self.raw:
            seg, q = nb >> 2, nb & 3
            return [f"ds_read_b64_tr_b16 {vr(r+kk*4+hf*2,2)}, v{self.rb+q} offset:{kk*12288+seg*2048+hf*512}" for kk in range(2) for hf in range(2)]
        return [f"ds_read_b128 {vr(r+kk*4,4)}, v{self.rb} offset:{((kp*2+kk)*self.NB+nb)*1024}" for kk in range(2)]
    def mfmas(self, nb, xs, ws):
        out = []
        for mb in range(2):
            for kk in range(2):
                x = self.X + xs * 16 + (kk * 2 + mb) * 4
                w = self.W + ws * 8 + kk * 4
                out.append(mfma16(self.a(nb, mb), w, x) if self.swap[nb] else mfma16(self.a(nb, mb), x, w))
        return out
    def setup_ft(self):
        P = self.P; per = self.SLOT // 4
        P(f"""v_lshlrev_b32 v{self.vx}, 4, v0
              s_mul_i32 s3, s{S_WAVE}, {per}
              v_add_u32 v{self.dv}, s3, v{self.vx}
              v_mov_b32 v{self.rb0}, v{self.vx}
              s_add_u32 s{self.s_wr}, s3, {self.ldsbase}
              s_add_u32 s{self.s_m}, s3, {self.ldsbase + self.SLOT*self.R}""")
    def xpieces(self, nb): return [i for i in range(4) if (i * self.NB) // 4 == nb]
    def prologue(self, extra=None):
        P = self.P
        P(f"""s_mov_b32 s{self.s_xo}, 0
              s_mov_b32 s{self.s_wo}, 0
              s_mov_b32 s{self.s_wo2}, 4096
              s_mov_b32 s{self.s_rd}, {self.ldsbase}
              s_mov_b32 s{self.s_cnt}, {self.NST // self.U}""")
        g, a = self.dma_ops()
        nx = self.XD - 1; per = self.KS // 2
        self.xi = 0
        def xl():
            xi = self.xi
            ps = list(range(4))
            if xi == nx - 1: ps = [i for nb in range(self.NB - (self.WD - 1)) for i in self.xpieces(nb)]
            for i in ps: P(self.xload(xi, i))
            if 3 in ps: P(f"s_add_u32 s{self.s_xo}, s{self.s_xo}, 4096")
            self.xi += 1
        for j in range(self.R - 2):
            if j: P.stage('w')
            for k in range(per):
                if self.xi < nx: xl()
            for grp in g:
                for ins in grp: P(ins, tag='w')
            for ins in a: P(ins)
            if j == 0 and extra: extra()
        while self.xi < nx: xl()
        for i in range(self.NB * 8): P(f"v_mov_b32 v{self.acc+i}, 0")
        for i in range(self.WD * 8): P(f"v_mov_b32 v{self.W+i}, 0")
        for i in range(16): P(f"v_mov_b32 v{self.X+(self.XD-1)*16+i}, 0")
    def loop(self):
        P = self.P; SP = self.SP; WD = self.WD; NB = self.NB
        assert NB >= WD - 1
        g, a = self.dma_ops()
        T = self.U * SP
        P(".p2align 6"); P.label(f"L_{self.name}")
        def emit(it):
            t, ins = it
            if t and ins.startswith('buffer'): P(ins, tag=t)
            else: P(ins)
        for p in range(self.U):
            fill = [[] for _ in range(SP)]
            for i, grp in enumerate(g): fill[(i * (SP - 1)) // len(g)] += [('w', x) for x in grp]
            fill[min(1, SP - 1)] += [(None, x) for x in [f"s_add_u32 s{self.s_rd}, s{self.s_rd}, {self.SLOT}",
                                     f"s_cmp_ge_u32 s{self.s_rd}, {self.ldsbase + self.SLOT*self.R}",
                                     f"s_cselect_b32 s3, {self.SLOT*self.R}, 0",
                                     f"s_sub_u32 s{self.s_rd}, s{self.s_rd}, s3"]]
            fill[SP - 1] += [(None, x) for x in a]
            if p == self.U - 1:
                fill[SP - 1] += [(None, f"s_sub_u32 s{self.s_cnt}, s{self.s_cnt}, 1"), (None, f"s_cmp_lg_u32 s{self.s_cnt}, 0")]
            q = []
            for j in range(SP):
                rt = p * SP + j
                mt = (rt - (WD - 1)) % T
                kap = mt // NB; nb = mt % NB
                if j == 0:
                    P.wait(tag='w', age=self.R - 3)
                    P("s_barrier"); P.stage('w')
                    for qq in range(self.nbase): P(f"v_add_u32 v{self.rb+qq}, s{self.s_rd}, v{self.rb0+qq}")
                xs = (kap - 1) % self.XD
                for i in self.xpieces(nb):
                    q.append((None, self.xload(xs, i)))
                    if i == 3: q.append((None, f"s_add_u32 s{self.s_xo}, s{self.s_xo}, 4096"))
                q += fill[j]
                rd = self.wreads(rt % SP % NB, (rt % SP) // NB, rt % WD)
                ms = self.mfmas(nb, kap % self.XD, mt % WD)
                need = [vr(self.W + (mt % WD) * 8, 8)]
                if nb == 0: need.append(vr(self.X + (kap % self.XD) * 16, 16))
                P.wait(need)
                for i in range(4):
                    P(ms[i])
                    rds = [r for k, r in enumerate(rd) if k * 4 // len(rd) == i]
                    slots = 2 - len(rds)
                    if i == 3: slots -= 1
                    if j == SP - 1: slots = max(slots, -(-len(q) // (4 - i)))
                    n = 0; last_m0 = False
                    while q and n < slots:
                        if last_m0 and q[0][1].startswith('buffer'):
                            if rds: P(rds.pop(0))
                            elif not (j == SP - 1 and i == 3): break
                        it = q.pop(0); emit(it); n += 1
                        last_m0 = ' m0,' in it[1]
                    for r in rds: P(r)
            assert not q
        P(f"s_cbranch_scc1 L_{self.name}", trips=self.NST // self.U)
        for j in range(WD - 1):
            mt = T - (WD - 1) + j
            kap = mt // NB; nb = mt % NB
            for m in self.mfmas(nb, kap % self.XD, mt % WD): P(m)
```

```python
from common import *

def k2_attn():
    P = Prog('k2'); V = Regs('v', 2); S = Regs('s', S_FREE, 100)
    prologue(P, 'K2_END')
    RING = 65536
    sKV = S(4); sQ = S(4); sO = S(4)
    s_hd = S(); s_rb = S(); st = S(); s_go = S(); s_wr = S(); s_rd = S(); s_cnt = S(); s_pass = S(); s_w4 = S()
    vx = V(); vK0 = V(); vV0 = V(); vK = V(); vV = V(); vQ = V(); vt = V(); vt2 = V(); vF = V()
    Q = V(16, 4); K = V(16, 4); VV = V(16, 4); SS = V(32, 4); PP = V(16, 4); O = V(32, 4); L = V(8, 4); NM = V(32, 4); SEL = V(4, 4)
    CH = V(4, 4); RC = V(2, 2)
    q = lambda t, c: Q + (t * 2 + c) * 4
    k = lambda b, c: K + (b * 2 + c) * 4
    v = lambda b, u: VV + (b * 2 + u) * 4
    P(f"""s_and_b32 s{s_hd}, s2, 7
          s_lshl_b32 s{s_hd}, s{s_hd}, 2
          s_lshr_b32 s3, s2, 6
          s_add_u32 s{s_hd}, s{s_hd}, s3
          s_bfe_u32 s{s_rb}, s2, 0x30003
          s_lshl_b32 s{s_rb}, s{s_rb}, 2
          s_add_u32 s{s_rb}, s{s_rb}, s{S_WAVE}
          s_lshl_b32 s{s_rb}, s{s_rb}, 1
          s_lshl_b32 s{s_w4}, s{S_WAVE}, 12
          v_lshlrev_b32 v{vx}, 4, v0
          s_lshl_b32 s{st}, s{s_hd}, 18
          s_add_u32 s{st}, s{st}, {WS_KV}""")
    srd(P, sKV, S_WS, f"s{st}", 262144)
    P(f"""s_lshl_b32 s{st}, s{s_hd}, 17
          s_lshl_b32 s3, s{s_rb}, 11
          s_add_u32 s{st}, s{st}, s3
          s_add_u32 s{st}, s{st}, {WS_Q}""")
    srd(P, sQ, S_WS, f"s{st}", 4096)
    P(f"""v_lshrrev_b32 v{vt}, 5, v0
          v_lshlrev_b32 v{vt2}, 8, v{vt}
          v_bfe_u32 v{vt}, v0, 4, 1
          v_lshl_add_u32 v{vV0}, v{vt}, 10, v{vt2}
          v_and_b32 v{vt}, 15, v0
          v_lshl_add_u32 v{vQ}, v{vt}, 4, v{vV0}""")
    for t in range(2):
        for c in range(2):
            P(f"buffer_load_dwordx4 {vr(q(t,c),4)}, v{vQ}, {sr(sQ,4)}, 0 offen offset:{t*2048+c*512}")
    P(f"s_mov_b32 s{s_pass}, 0")
    for i in range(32): P(f"v_mov_b32 v{NM+i}, 0")
    P(f"""v_bfe_u32 v{vt}, v0, 3, 1
          v_lshl_add_u32 v{vK0}, v{vt}, 10, v{vt2}
          v_lshl_add_u32 v{vV0}, v{vt}, 6, v{vV0}
          v_bfe_u32 v{vt}, v0, 4, 1
          v_lshl_add_u32 v{vK0}, v{vt}, 7, v{vK0}
          v_and_b32 v{vt}, 7, v0
          v_lshl_add_u32 v{vK0}, v{vt}, 4, v{vK0}
          v_bfe_u32 v{vt}, v0, 2, 1
          v_lshl_add_u32 v{vV0}, v{vt}, 7, v{vV0}
          v_and_b32 v{vt}, 3, v0
          v_lshl_add_u32 v{vV0}, v{vt}, 4, v{vV0}
          v_add_u32 v{vV0}, 2048, v{vV0}
          v_bfe_u32 v{vt}, v0, 2, 1
          v_bfe_u32 v{vt2}, v0, 4, 1
          v_cmp_eq_u32 vcc, v{vt}, v{vt2}
          v_mov_b32 v{vt}, 0x3f803f80
          v_cndmask_b32 v{SEL}, 0, v{vt}, vcc
          s_lshl_b32 s3, s{S_WAVE}, 2
          v_mov_b32 v{vF}, s3
          s_lshl_b32 s{st}, s{s_rb}, 16
          s_lshl_b32 s3, s{s_hd}, 11
          s_add_u32 s{st}, s{st}, s3
          s_add_u32 s{st}, s{st}, {WS_O}""")
    for r in range(1, 4): P(f"v_mov_b32 v{SEL+r}, v{SEL}")
    srd(P, sO, S_WS, f"s{st}", 65536 + 2048)
    def dma(i): return f"buffer_load_dwordx4 v{vx}, {sr(sKV,4)}, s{s_go} offen offset:{i*1024} lds"
    P.label('K2_MAIN')
    P(f"s_mov_b32 s{s_go}, s{s_w4}")
    for s in range(3):
        if s: P.stage('kv')
        P(f"s_add_u32 m0, s{s_w4}, {s*16384}")
        for i in range(4): P(dma(i), tag='kv')
        P(f"s_add_u32 s{s_go}, s{s_go}, 16384")
    P(f"""s_add_u32 s{s_wr}, s{s_w4}, {3*16384}
          s_mov_b32 s{s_rd}, 0
          s_mov_b32 s{s_cnt}, 16
          v_mov_b32 v{vK}, v{vK0}""")
    for r in list(range(O + 16, O + 32)) + list(range(L, L + 8)) + list(range(v(1, 0), v(1, 0) + 8)) + list(range(PP + 8, PP + 16)) + [SS + 30, SS + 31]:
        P(f"v_mov_b32 v{r}, 0")
    P.wait(tag='kv', age=2)
    P("s_barrier")
    for c in range(2): P(f"ds_read_b128 {vr(k(0,c),4)}, v{vK} offset:{c*512}")
    P(mfma32(SS, k(0, 0), q(0, 0), vr(NM, 16)))
    P(mfma32(SS, k(0, 1), q(0, 1)))
    for r in range(O, O + 16): P(f"v_mov_b32 v{r}, 0")
    P.wait([vr(Q, 16)])
    P(".p2align 6"); P.label('K2_LOOP')
    for i in range(4):
        for t in range(2):
            s0 = SS + t * 16; p0 = PP + t * 8; s1 = SS + (1 - t) * 16; p1 = PP + (1 - t) * 8
            kb = (i + t) & 1; vb = (i + 1 + t) & 1
            o1 = O + (1 - t) * 16; l1 = L + (1 - t) * 4
            e = lambda n: f"v_exp_f32 v{s0+n}, v{s0+n}"
            c = lambda n: f"v_cvt_pk_bf16_f32 v{p0+n}, v{s0+2*n}, v{s0+2*n+1}"
            seq = [mfma32(o1, v(vb, 0), p1), e(0), f"v_cvt_pk_bf16_f32 v{p1+7}, v{s1+14}, v{s1+15}", e(1), e(2),
                   mfma32(s1, k(kb, 0), q(1 - t, 0), vr(NM + (1 - t) * 16, 16)), c(0), e(3), e(4), e(5),
                   mfma32(s1, k(kb, 1), q(1 - t, 1)), c(1), e(6), e(7), c(2),
                   mfma16(l1, SEL, p1), e(8), c(3), e(9),
                   mfma32(o1, v(vb, 1), p1 + 4), e(10), c(4), e(11), e(12), c(5), e(13),
                   mfma16(l1, SEL, p1 + 4), e(14), c(6), e(15)]
            fill = {}
            def put(n, *ins): fill.setdefault(n, []).extend(ins)
            if t == 0:
                if i == 0: put(-1, f"v_add_u32 v{vV}, s{s_rd}, v{vV0}")
                ko = ((i + 1) & 3) * 4096
                if i == 3:
                    put(-1, f"v_add_u32 v{vK}, s{s_rd}, v{vK0}")
                    put(0, 'WAITKV'); put(1, 's_barrier')
                for u in range(2): put(2 + u, f"ds_read_b128 {vr(v(i&1,u),4)}, v{vV} offset:{i*4096+u*512}")
                for cc in range(2): put(4 + cc, f"ds_read_b128 {vr(k((i+1)&1,cc),4)}, v{vK} offset:{ko+cc*512}")
                if i == 3:
                    put(6, f"s_mov_b32 m0, s{s_wr}")
                    for j in range(4): put(7 + j, ('kv', dma(j)))
                    put(11, f"s_add_u32 s{s_go}, s{s_go}, 16384")
                    put(12, f"s_add_u32 s{s_wr}, s{s_wr}, 16384")
                    put(13, f"s_and_b32 s{s_wr}, s{s_wr}, 0xffff")
                put(15, ('WAITR', [vr(v(i & 1, 0), 8), vr(k((i + 1) & 1, 0), 8)]))
            else:
                if i == 2:
                    put(0, f"s_add_u32 s{s_rd}, s{s_rd}, 16384")
                    put(1, f"s_and_b32 s{s_rd}, s{s_rd}, 0xffff")
                if i == 3:
                    put(0, f"s_sub_u32 s{s_cnt}, s{s_cnt}, 1")
                    put(1, f"s_cmp_lg_u32 s{s_cnt}, 0")
            def emit(x):
                if x == 'WAITKV': P.wait(tag='kv', age=1)
                elif x == 's_barrier': P(x); P.stage('kv')
                elif isinstance(x, tuple) and x[0] == 'WAITR': P.wait(x[1])
                elif isinstance(x, tuple): P(x[1], tag=x[0])
                else: P(x)
            for x in fill.get(-1, []): emit(x)
            ne = 0
            for ins in seq:
                P(ins)
                if ins.startswith('v_exp'):
                    for x in fill.get(ne, []): emit(x)
                    ne += 1
    P("s_cbranch_scc1 K2_LOOP", trips=16)
    P(mfma32(O + 16, v(1, 0), PP + 8))
    P(f"v_cvt_pk_bf16_f32 v{PP+15}, v{SS+30}, v{SS+31}")
    P(mfma16(L + 4, SEL, PP + 8))
    P(f"v_rcp_f32 v{RC}, v{L}")
    P(mfma32(O + 16, v(1, 1), PP + 12))
    P(mfma16(L + 4, SEL, PP + 12))
    P(f"s_mov_b32 s{st}, 65536")
    for t in range(2):
        if t: P(f"v_rcp_f32 v{RC+1}, v{L+4}")
        o = O + t * 16
        for c in range(2):
            d = K + (t * 2 + c) * 4
            for j in range(4):
                a = o + c * 8 + j * 2
                P(f"v_pk_mul_f32 {vr(a,2)}, {vr(a,2)}, {vr(RC,2)} op_sel:[0,{t}] op_sel_hi:[1,{t}]")
            for j in range(4):
                a = o + c * 8 + j * 2
                P(f"v_cvt_pk_bf16_f32 v{d+j}, v{a}, v{a+1}")
            P(f"buffer_store_dwordx4 {vr(d,4)}, v{vQ}, {sr(sO,4)}, {'s%d'%st if t else 0} offen offset:{c*512}")
            P(mfma16(CH, SEL, d, '0' if (t, c) == (0, 0) else None))
    sm = S(2)
    P(f"""v_min_f32 v{vt}, v{L}, v{L+4}
          v_max_f32 v{vt2}, v{L}, v{L+4}
          v_cmp_nle_f32 vcc, {f32(2.0**-40)}, v{vt}
          s_mov_b64 {sr(sm,2)}, vcc
          v_cmp_nge_f32 vcc, {f32(2.0**64)}, v{vt2}
          s_or_b64 {sr(sm,2)}, {sr(sm,2)}, vcc
          v_cmp_u_f32 vcc, v{L}, v{L+4}
          s_or_b64 {sr(sm,2)}, {sr(sm,2)}, vcc
          v_mov_b32 v{vt}, 0x207
          v_cmp_class_f32 vcc, v{CH}, v{vt}
          s_or_b64 {sr(sm,2)}, {sr(sm,2)}, vcc
          s_cselect_b32 s3, 1, 0
          v_mov_b32 v{vt}, s3
          v_add_u32 v{vt2}, {RING}, v{vF}
          ds_write_b32 v{vt2}, v{vt}
          v_mov_b32 v{vt2}, {RING}""")
    P.wait(lg0=True, tag='kv')
    P(f"""s_barrier
          ds_read_b128 {vr(CH,4)}, v{vt2}
          v_or3_b32 v{vt}, v{CH}, v{CH+1}, v{CH+2}
          v_or_b32 v{vt}, v{vt}, v{CH+3}
          v_readfirstlane_b32 s3, v{vt}
          s_cmp_gt_u32 s3, s{s_pass}""")
    P("s_cbranch_scc1 K2_FB")
    P.label('K2_END'); P("s_endpgm")
    P.label('K2_FB')
    P.wait(vm0=True)
    P(f"""s_mov_b32 s{s_pass}, 1
          s_mov_b32 s{s_go}, 0
          v_mov_b32 v{NM}, 0xff800000
          v_mov_b32 v{NM+16}, 0xff800000""")
    P.label('K2_FBL')
    for c in range(2): P(f"buffer_load_dwordx4 {vr(k(0,c),4)}, v{vK0}, {sr(sKV,4)}, s{s_go} offen offset:{c*512}")
    P(f"s_add_u32 s{s_go}, s{s_go}, 4096\n s_cmp_lt_u32 s{s_go}, 262144")
    for t in range(2):
        P(mfma32(SS + t * 16, k(0, 0), q(t, 0), '0'))
        P(mfma32(SS + t * 16, k(0, 1), q(t, 1)))
    for t in range(2):
        for j in range(8): P(f"v_max3_f32 v{NM+t*16}, v{NM+t*16}, v{SS+t*16+2*j}, v{SS+t*16+2*j+1}")
    P("s_cbranch_scc1 K2_FBL", trips=2)
    for t in range(2):
        m = NM + t * 16
        P(f"""v_mov_b32 v{m+1}, v{m}
              v_permlane32_swap_b32 v{m+1}, v{m}
              v_max_f32 v{m}, v{m+1}, v{m}
              v_sub_f32 v{m}, 0, v{m}""")
        for j in range(1, 16): P(f"v_mov_b32 v{m+j}, v{m}")
    P("s_barrier\n s_branch K2_MAIN")
    return P, 81920 + 256
```

```python
from common import *
import math

def wave_rb32(P, dst, srb):
    P(f"s_lshl_b32 s{dst}, s{srb}, 2\n s_add_u32 s{dst}, s{dst}, s{S_WAVE}")

def rowmajor_addr(P, vg, vl, vt, vt2, ldsoff_s):
    P(f"""v_lshrrev_b32 v{vt}, 3, v0
          v_and_b32 v{vt2}, 7, v0
          v_xor_b32 v{vt2}, v{vt2}, v{vt}
          v_lshlrev_b32 v{vg}, 4, v{vt2}
          v_and_b32 v{vt2}, 3, v{vt}
          v_lshrrev_b32 v{vt}, 2, v{vt}
          v_lshl_add_u32 v{vt2}, v{vt}, 3, v{vt2}
          v_lshl_add_u32 v{vg}, v{vt2}, 11, v{vg}
          v_and_b32 v{vt}, 7, v0
          v_lshrrev_b32 v{vt2}, 4, v0
          v_xor_b32 v{vt}, v{vt}, v{vt2}
          v_lshlrev_b32 v{vl}, 4, v{vt}
          v_and_b32 v{vt}, 15, v0
          v_lshl_add_u32 v{vl}, v{vt}, 7, v{vl}
          v_add_u32 v{vl}, s{ldsoff_s}, v{vl}
          v_xor_b32 v{vl+1}, 64, v{vl}""")
PIECE_ROW = [0, 16, 4, 20]

def k1_qkv():
    P = Prog('k1'); V = Regs('v', 2); S = Regs('s', S_FREE, 100)
    prologue(P, 'K1_END')
    G = Gemm(P, V, S, 'k1', NB=12, KS=2, NST=16, U=4, XD=4, R=5, SLOT=24576, swap=[1]*8+[0]*4, raw=True)
    srb = S(); scb = S(); s32 = S(); st = S(); sQ = S(4); sKV = S(4)
    vt = V(); vt2 = V(); vt3 = V(); vs = V(2, 2)
    map_wg(P, srb, scb, 8)
    wave_rb32(P, s32, srb)
    P(f"s_lshl_b32 s{st}, s{s32}, 16");
    P(f"s_add_u32 s{st}, s{st}, {WS_XN}") if WS_XN else None
    srd(P, G.sX, S_WS, f"s{st}", 65536)
    P(f"s_lshl_b32 s{st}, s{scb}, 7\n s_sub_u32 s3, {1024*6144}, s{st}")
    srd(P, G.sW, S_WQKV, f"s{st}", "s3")
    P(f"""v_lshlrev_b32 v{G.vx}, 4, v0
          v_lshrrev_b32 v{vt}, 3, v0
          s_lshl_b32 s3, s{S_WAVE}, 4
          v_add_u32 v{vt2}, s3, v{vt}
          v_mul_u32_u24 v{G.dv}, 6144, v{vt2}
          v_bfe_u32 v{vt}, v0, 4, 1
          v_bfe_u32 v{vt2}, v0, 1, 2
          v_xor_b32 v{vt}, v{vt}, v{vt2}
          v_lshlrev_b32 v{vt}, 5, v{vt}
          v_and_b32 v{vt2}, 1, v0
          v_lshl_add_u32 v{vt}, v{vt2}, 4, v{vt}
          v_xor_b32 v{vt2}, 64, v{vt}
          v_add_u32 v{vt2}, {8*6144}, v{vt2}
          v_add_u32 v{G.dv+1}, v{G.dv}, v{vt2}
          v_add_u32 v{G.dv}, v{G.dv}, v{vt}
          s_mul_i32 s{G.s_wr}, s{S_WAVE}, 6144
          s_add_u32 s{G.s_m}, s{G.s_wr}, {G.SLOT*G.R}""")
    P(f"""v_lshrrev_b32 v{vt}, 5, v0
          v_mul_u32_u24 v{vt3}, 6144, v{vt}
          v_bfe_u32 v{vt}, v0, 4, 1
          v_lshl_add_u32 v{vt3}, v{vt}, 10, v{vt3}
          v_bfe_u32 v{vt2}, v0, 2, 2
          v_lshl_add_u32 v{vt3}, v{vt2}, 7, v{vt3}
          v_and_b32 v{vt2}, 3, v0
          v_lshl_add_u32 v{vt3}, v{vt2}, 3, v{vt3}
          v_bfe_u32 v{vt2}, v0, 3, 2
          v_lshl_add_u32 v{G.rb0}, v{vt2}, 5, v{vt3}""")
    for q in range(1, 4): P(f"v_xor_b32 v{G.rb0+q}, {q*32}, v{G.rb0}")
    G.prologue()
    G.loop()
    P(f"""s_lshl_b32 s{st}, s{scb}, 18
          s_lshl_b32 s3, s{s32}, 11
          s_add_u32 s{st}, s{st}, s3
          s_add_u32 s{st}, s{st}, {WS_Q}""")
    srd(P, sQ, S_WS, f"s{st}", 131072 + 2048)
    P(f"""s_lshl_b32 s{st}, s{scb}, 19
          s_lshl_b32 s3, s{s32}, 12
          s_add_u32 s{st}, s{st}, s3
          s_add_u32 s{st}, s{st}, {WS_KV}""")
    srd(P, sKV, S_WS, f"s{st}", 262144 + 4096)
    P(f"v_mov_b32 v{vs}, {f32(math.log2(math.e) / math.sqrt(32))}")
    P(f"s_mov_b32 s{st}, 131072\n s_mov_b32 s{srb}, 262144")
    T = G.X; n = [0]
    def item(a0, a1):
        t = T + (n[0] % 8) * 4; n[0] += 1
        P(f"""v_cvt_pk_bf16_f32 v{t}, v{a0}, v{a0+1}
              v_cvt_pk_bf16_f32 v{t+1}, v{a0+2}, v{a0+3}
              v_cvt_pk_bf16_f32 v{t+2}, v{a1}, v{a1+1}
              v_cvt_pk_bf16_f32 v{t+3}, v{a1+2}, v{a1+3}""")
        return t
    P.wait([vr(T, 32)])
    for hh in range(2):
        for mb in range(2):
            t = item(G.a(4 + 2 * hh, mb), G.a(5 + 2 * hh, mb))
            P(f"buffer_store_dwordx4 {vr(t,4)}, v{G.vx}, {sr(sKV,4)}, {'s%d'%srb if hh else 0} offen offset:{mb*1024}")
    for hh in range(2):
        for mb in range(2):
            for a in (G.a(2 * hh, mb), G.a(2 * hh + 1, mb)):
                for i in (0, 2): P(f"v_pk_mul_f32 {vr(a+i,2)}, {vr(a+i,2)}, {vr(vs,2)} op_sel_hi:[1,0]")
            t = item(G.a(2 * hh, mb), G.a(2 * hh + 1, mb))
            P(f"buffer_store_dwordx4 {vr(t,4)}, v{G.vx}, {sr(sQ,4)}, {'s%d'%st if hh else 0} offen offset:{mb*1024}")
    for hh in range(2):
        for db in range(2):
            t = item(G.a(8 + 2 * hh + db, 0), G.a(8 + 2 * hh + db, 1))
            P(f"buffer_store_dwordx4 {vr(t,4)}, v{G.vx}, {sr(sKV,4)}, {'s%d'%srb if hh else 0} offen offset:{2048+db*1024}")
    P.wait(tag='w')
    P.label('K1_END'); P("s_endpgm")
    return P, 24576 * 5

def k3_oproj():
    P = Prog('k3'); V = Regs('v', 2); S = Regs('s', S_FREE, 100)
    prologue(P, 'K3_END')
    G = Gemm(P, V, S, 'k3', NB=4, KS=4, NST=8, U=2, XD=4, R=5, SLOT=16384, swap=[1]*4)
    XL = 16384 * 5
    srb = S(); scb = S(); s32 = S(); st = S(); sl = S(); sA = S(4); sH = S(4); sT = S(4)
    vt = V(); vt2 = V(); vg = V(); vl = V(2); XR = V(16, 4); A = V(8, 2); ONE = V(); TT = V(2, 2)
    map_wg(P, srb, scb, 4)
    wave_rb32(P, s32, srb)
    P(f"s_lshl_b32 s{st}, s{s32}, 16\n s_add_u32 s{st}, s{st}, {WS_O}")
    srd(P, G.sX, S_WS, f"s{st}", 65536)
    P(f"s_lshl_b32 s{st}, s{scb}, 17\n s_add_u32 s{st}, s{st}, {WS_WO}")
    srd(P, G.sW, S_WS, f"s{st}", 131072)
    G.setup_ft()
    def extra():
        P(f"s_lshl_b32 s{sl}, s{S_WAVE}, 12\n s_add_u32 s{sl}, s{sl}, {XL}")
        rowmajor_addr(P, vg, vl, vt, vt2, sl)
        srd(P, sA, S_X, 0, 4 * MB)
        for pc in range(4):
            P(f"""s_lshl_b32 s{st}, s{s32}, 16
                  s_lshl_b32 s3, s{scb}, 7
                  s_add_u32 s{st}, s{st}, s3
                  s_add_u32 m0, s{sl}, {pc*1024}
                  s_add_u32 s{st}, s{st}, {PIECE_ROW[pc]*2048}""")
            P(f"buffer_load_dwordx4 v{vg}, {sr(sA,4)}, s{st} offen lds", tag='res')
        P(f"s_cmp_lg_u32 s{S_WAVE}, 3"); P("s_cbranch_scc1 K3_NOCS")
        P(f"s_cmp_ge_u32 s2, 56"); P("s_cbranch_scc1 K3_NOCS")
        srd(P, sT, S_WS, WS_CSP, 131072 + 3584 * 4)
        P(f"s_lshl_b32 s{st}, s2, 8\n v_lshlrev_b32 v{vt}, 2, v0")
        for i in range(8):
            P(f"buffer_load_dword v{XR+i}, v{vt}, {sr(sT,4)}, s{st} offen")
            P(f"s_add_u32 s{st}, s{st}, {3584*4 if i < 7 else 131072 - 7*3584*4}")
        for i in range(1, 8): P(f"v_add_f32 v{XR}, v{XR}, v{XR+i}")
        P(f"buffer_store_dword v{XR}, v{vt}, {sr(sT,4)}, s{st} offen")
        P.label('K3_NOCS')
    G.prologue(extra)
    G.loop()
    P.wait(tag='res')
    for mb in range(2):
        for p in range(2): P(f"ds_read_b128 {vr(XR+(mb*2+p)*4,4)}, v{vl+p} offset:{mb*2048}")
    P(f"""s_lshl_b32 s{st}, s{s32}, 16
          s_lshl_b32 s3, s{scb}, 12
          s_add_u32 s{st}, s{st}, s3
          s_add_u32 s{st}, s{st}, {WS_H}""")
    srd(P, sH, S_WS, f"s{st}", 4096)
    P(f"""s_lshl_b32 s{st}, s{s32}, 12
          s_lshl_b32 s3, s{scb}, 3
          s_add_u32 s{st}, s{st}, s3
          s_add_u32 s{st}, s{st}, {WS_HST}""")
    srd(P, sT, S_WS, f"s{st}", 4096 - 120)
    P(f"v_mov_b32 v{ONE}, 0x3f803f80")
    for i in range(8): P(f"v_mov_b32 v{A+i}, 0")
    for mb in range(2):
        for p in range(2):
            x = XR + (mb * 2 + p) * 4
            for i in range(4):
                a = G.a(2 * p + (i >> 1), mb) + (i & 1) * 2
                P(f"""v_lshlrev_b32 v{TT}, 16, v{x+i}
                      v_and_b32 v{TT+1}, 0xffff0000, v{x+i}
                      v_pk_add_f32 {vr(a,2)}, {vr(a,2)}, {vr(TT,2)}
                      v_cvt_pk_bf16_f32 v{x+i}, v{a}, v{a+1}""")
            P(f"buffer_store_dwordx4 {vr(x,4)}, v{G.vx}, {sr(sH,4)}, 0 offen offset:{(p*2+mb)*1024}")
    for i in range(8):
        for mb in range(2):
            x = XR + mb * 8 + i
            P(f"v_dot2_f32_bf16 v{A+mb+(i&1)*4}, v{x}, v{ONE}, v{A+mb+(i&1)*4}")
            P(f"v_dot2_f32_bf16 v{A+2+mb+(i&1)*4}, v{x}, v{x}, v{A+2+mb+(i&1)*4}")
    P(f"""v_and_b32 v{vt}, 31, v0
          v_lshlrev_b32 v{vt}, 7, v{vt}
          v_lshrrev_b32 v{vt2}, 5, v0
          v_lshl_add_u32 v{vt}, v{vt2}, 2, v{vt}
          v_pk_add_f32 {vr(A,2)}, {vr(A,2)}, {vr(A+4,2)}
          v_pk_add_f32 {vr(A+2,2)}, {vr(A+2,2)}, {vr(A+6,2)}
          v_permlane16_swap_b32 v{A}, v{A+1}
          v_permlane16_swap_b32 v{A+2}, v{A+3}
          v_add_f32 v{A}, v{A}, v{A+1}
          v_add_f32 v{A+2}, v{A+2}, v{A+3}
          v_permlane32_swap_b32 v{A}, v{A+2}
          v_add_f32 v{A}, v{A}, v{A+2}
          buffer_store_dword v{A}, v{vt}, {sr(sT,4)}, 0 offen""")
    P.wait(tag='w')
    P.label('K3_END'); P("s_endpgm")
    return P, XL + 16384

C1 = 2 * math.sqrt(2 / math.pi) * math.log2(math.e)
C2 = C1 * 0.044715

def stat_loads(P, T, va, sT, sc1=''):
    for mb in range(2):
        for h in range(2):
            P(f"buffer_load_dwordx4 {vr(T+(mb*2+h)*4,4)}, v{va}, {sr(sT,4)}, 0 offen offset:{mb*2048+h*16}{sc1}")
def stat_reduce(P, T, vt, n):
    for mb in range(2):
        b = T + mb * 8
        P(f"""v_pk_add_f32 {vr(b,2)}, {vr(b,2)}, {vr(b+2,2)}
              v_pk_add_f32 {vr(b+4,2)}, {vr(b+4,2)}, {vr(b+6,2)}
              v_pk_add_f32 {vr(b,2)}, {vr(b,2)}, {vr(b+4,2)}""")
    vs = [T, T + 1, T + 8, T + 9]
    for op in ('16', '32'):
        for v in vs: P(f"v_mov_b32 v{v+2}, v{v}")
        for v in vs: P(f"v_permlane{op}_swap_b32 v{v+2}, v{v}")
        for v in vs: P(f"v_add_f32 v{v}, v{v+2}, v{v}")
    for mb in range(2):
        b = T + mb * 8
        P(f"""v_mul_f32 v{b}, {f32(1/n)}, v{b}
              v_mul_f32 v{b+1}, {f32(1/n)}, v{b+1}
              v_fma_f32 v{b+1}, -v{b}, v{b}, v{b+1}
              v_max_f32 v{b+1}, 0, v{b+1}
              v_add_f32 v{b+1}, {f32(1e-5)}, v{b+1}""")

def k4_ffnin():
    P = Prog('k4'); V = Regs('v', 2); S = Regs('s', S_FREE, 100)
    prologue(P, 'K4_END')
    G = Gemm(P, V, S, 'k4', NB=14, KS=2, NST=16, U=4, XD=4, R=5, SLOT=28672, swap=[1]*7+[0]*7)
    LC = 28672 * 5
    LS = LC + 1024
    srb = S(); scb = S(); s32 = S(); st = S(); sl = S(); sT = S(4); sC = S(4); sZ1 = S(4); sZ2 = S(4); sm = S(6, 2); sp = S()
    vt = V(); vt2 = V(); va = V(); vw = V(); vq = V(); vc1 = V(); vc2 = V(); ve = V(); K = V(8, 2)
    map_wg(P, srb, scb, 8)
    wave_rb32(P, s32, srb)
    P(f"s_lshl_b32 s{st}, s{s32}, 12\n s_add_u32 s{st}, s{st}, {WS_HST}")
    srd(P, sT, S_WS, f"s{st}", 4096)
    P(f"""v_and_b32 v{vt}, 15, v0
          v_lshlrev_b32 v{va}, 7, v{vt}
          v_lshrrev_b32 v{vt2}, 4, v0
          v_lshl_add_u32 v{va}, v{vt2}, 5, v{va}""")
    T = G.acc
    stat_loads(P, T, va, sT)
    P(f"s_lshl_b32 s{st}, s{s32}, 16\n s_add_u32 s{st}, s{st}, {WS_H}")
    srd(P, G.sX, S_WS, f"s{st}", 65536)
    P(f"s_mul_i32 s{st}, s{scb}, {32*14336}\n s_add_u32 s{st}, s{st}, {WS_WIN}")
    srd(P, G.sW, S_WS, f"s{st}", 32 * 14336)
    G.setup_ft()
    def extra():
        srd(P, sC, S_WS, WS_CS, 3584 * 4)
        P(f"""v_lshrrev_b32 v{vt}, 5, v0
              v_mul_u32_u24 v{vt2}, {1792*4 - 512}, v{vt}
              v_add_u32 v{vt2}, v{vt2}, v{G.vx}
              s_mul_i32 s{st}, s{scb}, 448
              s_mov_b32 m0, {LC}
              s_lshl_b32 s{sl}, s{S_WAVE}, 9
              s_add_u32 s{sl}, s{sl}, {LS}""")
        P(f"buffer_load_dwordx4 v{vt2}, {sr(sC,4)}, s{st} offen lds", tag='cs')
        stat_reduce(P, T, vt, 1024)
        P(f"""v_and_b32 v{vt}, 15, v0
              v_lshl_add_u32 v{vw}, v{vt}, 2, s{sl}
              v_lshrrev_b32 v{vt2}, 4, v0
              v_lshl_add_u32 v{vq}, v{vt2}, 4, s{sl}
              v_lshlrev_b32 v{vc1}, 4, v{vt2}
              v_add_u32 v{vc1}, {LC}, v{vc1}
              v_lshlrev_b32 v{vc2}, 2, v{vt}
              v_add_u32 v{vc2}, {LC + 512}, v{vc2}""")
        for mb in range(2):
            b = T + mb * 8
            P(f"""v_rsq_f32 v{b+2}, v{b+1}
                  v_sub_f32 v{K+mb}, 0, v{b}
                  v_mul_f32 v{K+2+mb}, v{b+1}, v{b+2}
                  v_mul_f32 v{K+4+mb}, {f32(-C1)}, v{b+2}
                  v_mul_f32 v{b+3}, v{b+2}, v{b+2}
                  v_mul_f32 v{b+3}, v{b+3}, v{b+2}
                  v_mul_f32 v{K+6+mb}, {f32(-C2)}, v{b+3}""")
        for i in range(8): P(f"ds_write_b32 v{vw}, v{K+i} offset:{i*64}")
    G.prologue(extra)
    G.loop()
    E = G.X
    RC = E
    CS2 = E + 32
    SQ = E + 40
    TT = E + 56
    CS1 = E + 64
    P.wait([vr(E, 96)], tag='cs')
    for i in range(8): P(f"ds_read_b128 {vr(RC+i*4,4)}, v{vq} offset:{i*64}")
    for nb in range(7): P(f"ds_read_b32 v{CS2+nb}, v{vc2} offset:{nb*64}")
    for nb in range(7): P(f"ds_read_b128 {vr(CS1+nb*4,4)}, v{vc1} offset:{nb*64}")
    for i in range(16): P(f"v_mov_b32 v{SQ+i}, 0")
    def bc(reg):
        return (vr(reg & ~1, 2), reg & 1, reg & 1)
    def pr(reg): return (vr(reg, 2), 0, 1)
    def pk(op, d, *srcs):
        s = ', '.join(x[0] for x in srcs)
        lo = [x[1] for x in srcs]; hi = [x[2] for x in srcs]
        m = ''
        if any(lo): m += f" op_sel:[{','.join(map(str,lo))}]"
        if not all(hi): m += f" op_sel_hi:[{','.join(map(str,hi))}]"
        P(f"v_pk_{op}_f32 {vr(d,2)}, {s}{m}")
    def gelu4(a, nm, cs, s, k1, k2):
        t = TT
        for i in (0, 1): pk('fma', a + 2 * i, nm(i), cs(i), pr(a + 2 * i))
        for i in (0, 1): pk('mul', t + 2 * i, pr(a + 2 * i), pr(a + 2 * i))
        for i in (0, 1): pk('fma', t + 2 * i, pr(t + 2 * i), k2(i), k1(i))
        for i in (0, 1): pk('mul', t + 2 * i, pr(t + 2 * i), pr(a + 2 * i))
        for i in range(4): P(f"v_exp_f32 v{t+i}, v{t+i}")
        for i in (0, 1): pk('fma', t + 2 * i, pr(t + 2 * i), s(i), s(i))
        for i in range(4): P(f"v_rcp_f32 v{t+i}, v{t+i}")
        for i in (0, 1): pk('mul', a + 2 * i, pr(a + 2 * i), pr(t + 2 * i))
    for nb in range(7):
        for mb in range(2):
            a = G.a(7 + nb, mb)
            q = lambda k: (lambda i: pr(RC + (k * 2 + mb) * 4 + 2 * i))
            gelu4(a, q(0), lambda i: bc(CS2 + nb), q(1), q(2), q(3))
            for i in (0, 1):
                pk('add', SQ + mb * 4 + 2 * i, pr(SQ + mb * 4 + 2 * i), pr(a + 2 * i))
                pk('fma', SQ + 8 + mb * 4 + 2 * i, pr(a + 2 * i), pr(a + 2 * i), pr(SQ + 8 + mb * 4 + 2 * i))
    for sq in range(2):
        for r in range(4):
            a0 = SQ + sq * 8 + r; a1 = a0 + 4
            P(f"v_add_f32_dpp v{a0}, v{a0}, v{a0} row_ror:8 row_mask:0xf bank_mask:0x3")
            P(f"v_add_f32_dpp v{a0}, v{a1}, v{a1} row_ror:8 row_mask:0xf bank_mask:0xc")
    for r in range(4):
        a0 = SQ + r; a1 = a0 + 8
        P(f"v_add_f32_dpp v{a0}, v{a0}, v{a0} row_half_mirror row_mask:0xf bank_mask:0x5")
        P(f"v_add_f32_dpp v{a0}, v{a1}, v{a1} row_half_mirror row_mask:0xf bank_mask:0xa")
    for perm in ('[1,0,3,2]', '[2,3,0,1]'):
        for r in range(4): P(f"v_add_f32_dpp v{SQ+r}, v{SQ+r}, v{SQ+r} quad_perm:{perm} row_mask:0xf bank_mask:0xf")
    for r in range(1, 4):
        m = sum(1 << (4 * k + r) for k in range(8))
        P(f"s_mov_b32 s{sm+2*r-2}, {hex(m)}\n s_mov_b32 s{sm+2*r-1}, {hex(m)}")
        P(f"v_cndmask_b32 v{SQ}, v{SQ}, v{SQ+r}, {sr(sm+2*r-2,2)}")
    P(f"s_lshl_b32 s{st}, s{s32}, 12\n s_add_u32 s{st}, s{st}, {WS_ZST}")
    srd(P, sT, S_WS, f"s{st}", 4096)
    P(f"""v_bfe_u32 v{vt}, v0, 3, 1
          v_lshlrev_b32 v{ve}, 11, v{vt}
          v_lshrrev_b32 v{vt}, 4, v0
          v_lshl_add_u32 v{ve}, v{vt}, 9, v{ve}
          v_and_b32 v{vt}, 3, v0
          v_lshl_add_u32 v{ve}, v{vt}, 7, v{ve}
          v_bfe_u32 v{vt}, v0, 2, 1
          v_lshl_add_u32 v{ve}, v{vt}, 2, v{ve}
          s_lshl_b32 s{st}, s{scb}, 3
          buffer_store_dword v{SQ}, v{ve}, {sr(sT,4)}, s{st} offen sc1""")
    P(f"""s_lshl_b32 s{st}, s{s32}, 4
          s_add_u32 s{st}, s{st}, s{scb}
          s_mul_i32 s{st}, s{st}, 7168
          s_add_u32 s{st}, s{st}, {WS_Z1}""")
    srd(P, sZ1, S_WS, f"s{st}", 7168)
    P(f"""s_lshl_b32 s{st}, s{scb}, 6
          s_add_u32 s{st}, s{st}, s{s32}
          s_mul_i32 s{st}, s{st}, 7168
          s_add_u32 s{st}, s{st}, {WS_Z2}""")
    srd(P, sZ2, S_WS, f"s{st}", 7168)
    P(f"s_mov_b32 s{st}, 4096")
    def pack_store(nbacc, nb, sD, t):
        for mb in range(2):
            a = G.a(nbacc, mb)
            P(f"v_cvt_pk_bf16_f32 v{t+2*mb}, v{a}, v{a+1}\n v_cvt_pk_bf16_f32 v{t+2*mb+1}, v{a+2}, v{a+3}")
        P(f"buffer_store_dwordx4 {vr(t,4)}, v{G.vx}, {sr(sD,4)}, {'s%d'%st if nb >= 4 else 0} offen offset:{(nb&3)*1024}")
    for nb in range(7):
        for mb in range(2):
            q = lambda k: (lambda i: bc(K + 2 * k + mb))
            gelu4(G.a(nb, mb), q(0), lambda i: pr(CS1 + nb * 4 + 2 * i), q(1), q(2), q(3))
        pack_store(nb, nb, sZ1, RC + (nb & 3) * 4)
    T = SQ
    P(f"s_mov_b32 s{sp}, 0")
    P.label('K4_POLL')
    stat_loads(P, T, va, sT, ' sc1')
    P(f"v_max3_u32 v{vt}, v{T}, v{T+1}, v{T+2}")
    for i in range(3, 15, 2): P(f"v_max3_u32 v{vt}, v{vt}, v{T+i}, v{T+i+1}")
    P(f"""v_max_u32 v{vt}, v{vt}, v{T+15}
          v_cmp_eq_u32 vcc, -1, v{vt}
          s_add_u32 s{sp}, s{sp}, 1
          s_cmp_lt_u32 s{sp}, 20000
          s_cselect_b64 {sr(sm,2)}, -1, 0
          s_and_b64 vcc, vcc, {sr(sm,2)}""")
    P("s_cbranch_vccnz K4_POLL", trips=2)
    stat_reduce(P, T, vt, 1792)
    for mb in range(2):
        b = T + mb * 8
        P(f"""v_rsq_f32 v{b+2}, v{b+1}
              v_mul_f32 v{b+3}, v{b}, v{b+2}
              v_sub_f32 v{b+3}, 0, v{b+3}
              ds_write_b32 v{vw}, v{b+2} offset:{mb*64}
              ds_write_b32 v{vw}, v{b+3} offset:{128+mb*64}""")
    for i in range(4): P(f"ds_read_b128 {vr(CS1+i*4,4)}, v{vq} offset:{i*64}")
    for nb in range(7):
        for mb in range(2):
            a = G.a(7 + nb, mb)
            for i in (0, 1): pk('fma', a + 2 * i, pr(a + 2 * i), pr(CS1 + mb * 4 + 2 * i), pr(CS1 + 8 + mb * 4 + 2 * i))
        pack_store(7 + nb, nb, sZ2, RC + (nb & 3) * 4)
    P.wait(tag='w')
    P.label('K4_END'); P("s_endpgm")
    return P, LS + 2048

def k5_spatial():
    P = Prog('k5'); V = Regs('v', 2); S = Regs('s', S_FREE, 100)
    prologue(P, 'K5_END')
    G = Gemm(P, V, S, 'k5', NB=7, KS=4, NST=16, U=2, XD=4, R=5, SLOT=28672, swap=[1]*7)
    srb = S(); scb = S(); s32 = S(); st = S(); sA = S(4); sU = S(4)
    vt = V(); vt2 = V(); Z = V(28, 4); BB = V(2, 2); TT = V(4, 2); v8 = V()
    map_wg(P, srb, scb, 4)
    wave_rb32(P, s32, srb)
    P(f"s_lshl_b32 s{st}, s{s32}, 17\n s_add_u32 s{st}, s{st}, {WS_WSP}")
    srd(P, G.sX, S_WS, f"s{st}", 131072)
    P(f"s_mul_i32 s{st}, s{scb}, {64*7168}\n s_add_u32 s{st}, s{st}, {WS_Z2}")
    srd(P, G.sW, S_WS, f"s{st}", 64 * 7168)
    G.setup_ft()
    def extra():
        P(f"""s_lshl_b32 s{st}, s{s32}, 4
              s_add_u32 s{st}, s{st}, s{scb}
              s_mul_i32 s{st}, s{st}, 7168
              s_add_u32 s{st}, s{st}, {WS_Z1}""")
        srd(P, sA, S_WS, f"s{st}", 7168)
        P(f"s_mov_b32 s{st}, 4096")
        for nb in range(7):
            P(f"buffer_load_dwordx4 {vr(Z+nb*4,4)}, v{G.vx}, {sr(sA,4)}, {'s%d'%st if nb >= 4 else 0} offen offset:{(nb&3)*1024}")
        srd(P, sA, S_BSP, 0, 4096)
        P(f"""v_bfe_u32 v{vt}, v0, 2, 2
              v_and_b32 v{vt2}, 3, v0
              v_lshl_add_u32 v{vt}, v{vt}, 3, v{vt2}
              v_lshlrev_b32 v{vt}, 1, v{vt}
              s_lshl_b32 s{st}, s{s32}, 6
              buffer_load_ushort v{BB}, v{vt}, {sr(sA,4)}, s{st} offen
              buffer_load_ushort v{BB+1}, v{vt}, {sr(sA,4)}, s{st} offen offset:8""")
    G.prologue(extra)
    G.loop()
    P(f"""s_lshr_b32 s3, s{scb}, 1
          s_mul_i32 s{st}, s3, 7
          s_mul_i32 s3, s{s32}, 56
          s_add_u32 s{st}, s{st}, s3
          s_lshl_b32 s{st}, s{st}, 11
          s_add_u32 s{st}, s{st}, {WS_U}""")
    srd(P, sU, S_WS, f"s{st}", 7 * 2048)
    P(f"""s_and_b32 s3, s{scb}, 1
          s_mul_i32 s{st}, s3, {3*2048}
          s_lshl_b32 s3, s3, 3
          s_add_u32 s3, s3, {6*2048}
          v_add_u32 v{v8}, s3, v{G.vx}
          v_lshlrev_b32 v{BB}, 16, v{BB}
          v_lshlrev_b32 v{BB+1}, 16, v{BB+1}""")
    O = G.X
    P.wait([vr(O, 32)])
    for nb in range(7):
        for mb in range(2):
            a = G.a(nb, mb); o = O + ((nb >> 1) * 2 + mb) * 4 + (nb & 1) * 2
            for i in range(2):
                z = Z + nb * 4 + mb * 2 + i; t = TT + 2 * i
                P(f"""v_lshlrev_b32 v{t}, 16, v{z}
                      v_and_b32 v{t+1}, 0xffff0000, v{z}
                      v_pk_add_f32 {vr(a+2*i,2)}, {vr(a+2*i,2)}, {vr(BB,2)} op_sel:[0,{mb}] op_sel_hi:[1,{mb}]
                      v_pk_mul_f32 {vr(a+2*i,2)}, {vr(a+2*i,2)}, {vr(t,2)}
                      v_cvt_pk_bf16_f32 v{o+i}, v{a+2*i}, v{a+2*i+1}""")
            if nb == 6:
                P(f"buffer_store_dwordx2 {vr(o,2)}, v{v8}, {sr(sU,4)}, 0 offen offset:{mb*1024}")
            elif nb & 1:
                P(f"buffer_store_dwordx4 {vr(o-2,4)}, v{G.vx}, {sr(sU,4)}, s{st} offen offset:{mb*1024}")
        if nb & 1: P(f"s_add_u32 s{st}, s{st}, 2048")
    P.wait(tag='w')
    P.label('K5_END'); P("s_endpgm")
    return P, 28672 * 5

def k6_ffnout():
    P = Prog('k6'); V = Regs('v', 2); S = Regs('s', S_FREE, 100)
    prologue(P, 'K6_END')
    G = Gemm(P, V, S, 'k6', NB=4, KS=4, NST=14, U=2, XD=4, R=5, SLOT=16384, swap=[1]*4)
    XL = 16384 * 5
    srb = S(); scb = S(); s32 = S(); st = S(); sl = S(); sA = S(4)
    vt = V(); vt2 = V(); vg = V(); vl = V(2); XR = V(16, 4); TT = V(2, 2)
    map_wg(P, srb, scb, 4)
    wave_rb32(P, s32, srb)
    P(f"s_mul_i32 s{st}, s{s32}, {56*2048}\n s_add_u32 s{st}, s{st}, {WS_U}")
    srd(P, G.sX, S_WS, f"s{st}", 56 * 2048)
    P(f"s_mul_i32 s{st}, s{scb}, {56*4096}\n s_add_u32 s{st}, s{st}, {WS_WOUT}")
    srd(P, G.sW, S_WS, f"s{st}", 56 * 4096)
    G.setup_ft()
    def extra():
        P(f"""s_lshl_b32 s{st}, s{s32}, 16
              s_lshl_b32 s3, s{scb}, 12
              s_add_u32 s{st}, s{st}, s3
              s_add_u32 s{st}, s{st}, {WS_H}""")
        srd(P, sA, S_WS, f"s{st}", 4096)
        for mb in range(2):
            for p in range(2):
                P(f"buffer_load_dwordx4 {vr(XR+(mb*2+p)*4,4)}, v{G.vx}, {sr(sA,4)}, 0 offen offset:{(p*2+mb)*1024}")
        P(f"s_lshl_b32 s{sl}, s{S_WAVE}, 12\n s_add_u32 s{sl}, s{sl}, {XL}")
        rowmajor_addr(P, vg, vl, vt, vt2, sl)
    G.prologue(extra)
    G.loop()
    srd(P, sA, S_OUT, 0, 4 * MB)
    P(f"v_add_u32 v{vt}, s{sl}, v{G.vx}")
    for mb in range(2):
        for p in range(2):
            x = XR + (mb * 2 + p) * 4
            for i in range(4):
                a = G.a(2 * p + (i >> 1), mb) + (i & 1) * 2
                P(f"""v_lshlrev_b32 v{TT}, 16, v{x+i}
                      v_and_b32 v{TT+1}, 0xffff0000, v{x+i}
                      v_pk_add_f32 {vr(a,2)}, {vr(a,2)}, {vr(TT,2)}
                      v_cvt_pk_bf16_f32 v{x+i}, v{a}, v{a+1}""")
            P(f"ds_write_b128 v{vl+p}, {vr(x,4)} offset:{mb*2048}")
    A = G.acc
    for pc in range(4): P(f"ds_read_b128 {vr(A+pc*4,4)}, v{vt} offset:{pc*1024}")
    P(f"""s_lshl_b32 s{st}, s{s32}, 16
          s_lshl_b32 s3, s{scb}, 7
          s_add_u32 s{st}, s{st}, s3""")
    for pc in range(4):
        P(f"s_add_u32 s3, s{st}, {PIECE_ROW[pc]*2048}")
        P(f"buffer_store_dwordx4 {vr(A+pc*4,4)}, v{vg}, {sr(sA,4)}, s3 offen")
    P.wait(tag='w')
    P.label('K6_END'); P("s_endpgm")
    return P, XL + 16384
```

```python
from common import *

def tau_lane(P, dst, mbshift_tmp):
    pass

def k0_ln1():
    P = Prog('k0'); V = Regs('v', 2); S = Regs('s', S_FREE, 100)
    prologue(P, 'K0_END')
    sX = S(4); sN = S(4); sZ = S(4); sW = S(4)
    s_rb = S(); s_mb = S(); s_j0 = S(); s_t = S(); s_l = S(); s_cb = S()
    vg = V(); vl = V(); vo = V(); vt = V(); vt2 = V(); vp = V()
    D = V(16, 4); A = V(8, 2); R = V(8, 4); F = V(4, 2); PF = V(2)
    P(f"""s_lshr_b32 s{s_rb}, s2, 2
          s_bfe_u32 s{s_mb}, s2, 0x10001
          s_and_b32 s{s_j0}, s2, 1
          v_lshrrev_b32 v{vt}, 3, v0            ; row8
          v_and_b32 v{vt2}, 7, v0
          v_xor_b32 v{vt2}, v{vt2}, v{vt}
          v_lshlrev_b32 v{vg}, 4, v{vt2}
          v_and_b32 v{vt2}, 3, v{vt}
          v_lshrrev_b32 v{vt}, 2, v{vt}
          v_lshl_add_u32 v{vt2}, v{vt}, 3, v{vt2}
          v_lshl_add_u32 v{vg}, v{vt2}, 11, v{vg}
          s_lshl_b32 s{s_t}, s{s_rb}, 5
          s_lshl_b32 s3, s{s_j0}, 4
          s_add_u32 s{s_t}, s{s_t}, s3
          s_lshl_b32 s3, s{s_mb}, 2
          s_add_u32 s{s_t}, s{s_t}, s3
          s_lshl_b32 s{s_t}, s{s_t}, 11
          s_lshl_b32 s3, s{S_WAVE}, 9
          s_add_u32 s{s_t}, s{s_t}, s3
          s_lshl_b32 s{s_l}, s{S_WAVE}, 12""")
    srd(P, sX, S_X, 0, 4 * MB)
    for p in range(4):
        P(f"s_add_u32 m0, s{s_l}, {p*1024 - p*128}")
        P(f"buffer_load_dwordx4 v{vg}, {sr(sX,4)}, s{s_t} offen offset:{p*128} lds", tag='x')
    srd(P, sW, S_WQKV, 0, 1024 * 6144)
    P(f"""s_bfe_u32 s{s_cb}, s2, 0x20001
          s_lshl_b32 s{s_cb}, s{s_cb}, 9
          s_lshr_b32 s3, s2, 3
          s_mul_i32 s3, s3, {32*6144}
          s_add_u32 s{s_cb}, s{s_cb}, s3
          s_lshl_b32 s3, s{S_WAVE}, 3
          v_lshrrev_b32 v{vt}, 3, v0
          v_add_u32 v{vt}, s3, v{vt}
          v_mul_u32_u24 v{vp}, 6144, v{vt}
          v_and_b32 v{vt}, 3, v0
          v_lshl_add_u32 v{vp}, v{vt}, 7, v{vp}
          v_bfe_u32 v{vt}, v0, 2, 1
          v_lshl_add_u32 v{vt2}, v{vt}, 11, v{vp}
          buffer_load_dword v{PF}, v{vt2}, {sr(sW,4)}, s{s_cb} offen
          v_add_u32 v{vp}, 4096, v{vp}
          buffer_load_dword v{PF+1}, v{vp}, {sr(sW,4)}, s{s_cb} offen""")
    srd(P, sZ, S_WS, WS_ZST, 262144)
    P(f"""s_lshl_b32 s3, s2, 2
          s_add_u32 s3, s3, s{S_WAVE}
          s_lshl_b32 s3, s3, 8
          v_lshlrev_b32 v{vt}, 2, v0
          v_mov_b32 v{vt2}, -1
          buffer_store_dword v{vt2}, v{vt}, {sr(sZ,4)}, s3 offen""")
    P(f"""v_and_b32 v{vt}, 7, v0
          v_lshrrev_b32 v{vt2}, 3, v0
          v_xor_b32 v{vl}, v{vt}, v{vt2}
          v_lshlrev_b32 v{vl}, 4, v{vl}
          v_lshl_add_u32 v{vl}, v{vt}, 7, v{vl}
          v_add_u32 v{vl}, s{s_l}, v{vl}""")
    srd(P, sN, S_WS, WS_XN, 4 * MB)
    P(f"""v_lshlrev_b32 v{vo}, 4, v{vt}
          v_and_b32 v{vt}, 3, v{vt2}
          v_lshl_add_u32 v{vo}, v{vt}, 8, v{vo}
          v_lshrrev_b32 v{vt}, 2, v{vt2}
          v_lshl_add_u32 v{vo}, v{vt}, 11, v{vo}
          s_lshl_b32 s{s_t}, s{s_rb}, 16
          s_lshl_b32 s3, s{s_mb}, 10
          s_add_u32 s{s_t}, s{s_t}, s3
          s_lshl_b32 s3, s{s_j0}, 7
          s_add_u32 s{s_t}, s{s_t}, s3
          s_lshl_b32 s3, s{S_WAVE}, 14
          s_add_u32 s{s_t}, s{s_t}, s3
          v_mov_b32 v{F}, 0x3f803f80""")
    for i in range(8): P(f"v_mov_b32 v{A+i}, 0")
    P.wait(tag='x')
    for p in range(4): P(f"ds_read_b128 {vr(D+4*p,4)}, v{vl} offset:{p*1024}")
    for i in range(16):
        P(f"v_dot2_f32_bf16 v{A+(i&3)}, v{D+i}, v{F}, v{A+(i&3)}")
        P(f"v_dot2_f32_bf16 v{A+4+(i&3)}, v{D+i}, v{D+i}, v{A+4+(i&3)}")
    P(f"""v_add_f32 v{A}, v{A}, v{A+1}
          v_add_f32 v{A+2}, v{A+2}, v{A+3}
          v_add_f32 v{A+4}, v{A+4}, v{A+5}
          v_add_f32 v{A+6}, v{A+6}, v{A+7}
          v_add_f32 v{A}, v{A}, v{A+2}
          v_add_f32 v{A+1}, v{A+4}, v{A+6}
          v_add_f32_dpp v{A}, v{A}, v{A} row_ror:8 row_mask:0xf bank_mask:0xf
          v_add_f32_dpp v{A+1}, v{A+1}, v{A+1} row_ror:8 row_mask:0xf bank_mask:0xf""")
    for v in (A, A + 1): xsum16(P, v, vt)
    for v in (A, A + 1): xsum32(P, v, vt)
    P(f"""v_and_b32 v{vt}, 7, v0
          v_lshlrev_b32 v{vt}, 5, v{vt}
          s_lshl_b32 s3, s{S_WAVE}, 3
          v_add_u32 v{vt2}, s3, v{vt}
          ds_write_b64 v{vt2}, {vr(A,2)} offset:16384""")
    P.wait(lg0=True)
    P(f"""s_barrier
          ds_read_b128 {vr(R,4)}, v{vt} offset:16384
          ds_read_b128 {vr(R+4,4)}, v{vt} offset:16400
          v_pk_add_f32 {vr(R,2)}, {vr(R,2)}, {vr(R+2,2)}
          v_pk_add_f32 {vr(R+4,2)}, {vr(R+4,2)}, {vr(R+6,2)}
          v_pk_add_f32 {vr(R,2)}, {vr(R,2)}, {vr(R+4,2)}
          v_mul_f32 v{R}, {f32(1/1024)}, v{R}
          v_mul_f32 v{R+1}, {f32(1/1024)}, v{R+1}
          v_fma_f32 v{R+1}, -v{R}, v{R}, v{R+1}
          v_max_f32 v{R+1}, 0, v{R+1}
          v_add_f32 v{R+1}, {f32(1e-5)}, v{R+1}
          v_rsq_f32 v{F}, v{R+1}
          v_mul_f32 v{F+2}, v{R}, v{F}
          v_sub_f32 v{F+2}, 0, v{F+2}""")
    for i in range(16):
        P(f"""v_lshlrev_b32 v{A}, 16, v{D+i}
              v_and_b32 v{A+1}, 0xffff0000, v{D+i}
              v_pk_fma_f32 {vr(A,2)}, {vr(A,2)}, {vr(F,2)}, {vr(F+2,2)} op_sel_hi:[1,0,0]
              v_cvt_pk_bf16_f32 v{D+i}, v{A}, v{A+1}""")
        if i % 4 == 3:
            p = i // 4
            if p: P(f"s_add_u32 s{s_t}, s{s_t}, 4096")
            P(f"buffer_store_dwordx4 {vr(D+4*p,4)}, v{vo}, {sr(sN,4)}, s{s_t} offen")
    P.label('K0_END'); P("s_endpgm")
    return P

def pretile(P, V, S, ldsbase, uid):
    sA = S(4); sD = S(4)
    s_gw = S(); s_l = S(); s_a = S(); s_b = S(); s_c = S(); s_d = S(); s_e = S(); s_dst = S(4)
    vd = V(); vt = V(); vt2 = V(); vlin = V(); vr0 = V(); vs = V()
    B = V(32, 4); SEL = V(16, 4); CS = V(4, 4)
    P(f"""s_lshl_b32 s{s_gw}, s2, 2
          s_add_u32 s{s_gw}, s{s_gw}, s{S_WAVE}
          s_lshl_b32 s{s_l}, s{S_WAVE}, 14
          s_add_u32 s{s_l}, s{s_l}, {ldsbase}
          v_lshlrev_b32 v{vlin}, 4, v0""")
    srd(P, sA, S_WSP, 0, 8 * MB)
    P(f"""v_bfe_u32 v{vt}, v0, 2, 2
          v_and_b32 v{vt2}, 3, v0
          v_lshl_add_u32 v{vt}, v{vt}, 3, v{vt2}
          v_lshlrev_b32 v{vs}, 12, v{vt}
          v_lshrrev_b32 v{vt}, 4, v0
          v_lshl_add_u32 v{vs}, v{vt}, 4, v{vs}
          s_lshr_b32 s{s_a}, s{s_gw}, 4
          s_lshl_b32 s{s_a}, s{s_a}, 17
          s_and_b32 s3, s{s_gw}, 15
          s_lshl_b32 s{s_b}, s3, 8
          s_add_u32 s{s_b}, s{s_b}, s{s_a}
          s_add_u32 s{s_c}, s{s_b}, {4*4096}
          s_lshl_b32 s3, s3, 13
          s_add_u32 s{s_a}, s{s_a}, s3""")
    for kb in range(4):
        for mb in range(2):
            P(f"buffer_load_dwordx4 {vr(B+(kb*2+mb)*4,4)}, v{vs}, {sr(sA,4)}, s{s_c if mb else s_b} offen offset:{kb*64}")
    srd(P, sD, S_WS, WS_WSP, 8 * MB)
    for i in range(8):
        if i == 4: P(f"s_add_u32 s{s_a}, s{s_a}, 4096")
        P(f"buffer_store_dwordx4 {vr(B+i*4,4)}, v{vlin}, {sr(sD,4)}, s{s_a} offen offset:{(i&3)*1024}")
    def dma_addr(pitch):
        P(f"""v_lshrrev_b32 v{vt}, 3, v0
              v_mul_u32_u24 v{vd}, {pitch}, v{vt}
              v_and_b32 v{vt}, 7, v0
              v_lshl_add_u32 v{vd}, v{vt}, 4, v{vd}""")
    def rd_addr(p16, kappa):
        P(f"""v_lshrrev_b32 v{vt}, 4, v0
              v_lshlrev_b32 v{vt}, {2 if p16 else 3}, v{vt}
              v_bfe_u32 v{vt2}, v0, 2, 2
              v_add_u32 v{vt}, v{vt}, v{vt2}
              v_lshlrev_b32 v{vr0}, 7, v{vt}
              v_and_b32 v{vt}, 3, v0
              v_lshl_add_u32 v{vr0}, v{vt}, {4 if kappa else 3}, v{vr0}
              v_add_u32 v{vr0}, s{s_l}, v{vr0}""")
    def reads(u, p16, kappa):
        b = B + (u & 1) * 16
        for nb in range(4):
            co = (nb >> 1) * 64 + (nb & 1) * 8 if kappa else nb * 32
            for hf in range(2):
                P(f"ds_read_b64_tr_b16 {vr(b+nb*4+hf*2,2)}, v{vr0} offset:{u*4096 + co + hf*(2048 if p16 else 512)}")
        return b
    P(f"s_cmp_ge_u32 s{s_gw}, 800"); P(f"s_cbranch_scc1 PT_DONE{uid}")
    P(f"s_cmp_ge_u32 s{s_gw}, 448"); P(f"s_cbranch_scc1 PT_NOTIN{uid}", grp=['wout'])
    srd(P, sA, S_WIN, 0, 1024 * 7168)
    srd(P, sD, S_WS, WS_WIN, 7 * MB)
    dma_addr(7168); rd_addr(False, False)
    P(f"""s_and_b32 s{s_a}, s{s_gw}, 7
          s_lshr_b32 s{s_b}, s{s_gw}, 3
          s_mul_i32 s{s_c}, s{s_a}, {128*7168}
          s_lshl_b32 s3, s{s_b}, 7
          s_add_u32 s{s_c}, s{s_c}, s3""")
    for i in range(16):
        P(f"s_add_u32 m0, s{s_l}, {i*1024}")
        if i: P(f"s_add_u32 s{s_c}, s{s_c}, {8*7168}")
        P(f"buffer_load_dwordx4 v{vd}, {sr(sA,4)}, s{s_c} offen lds", tag=f't{i//4}')
    for nb in range(4):
        P(f"""s_lshl_b32 s{s_c}, s{s_b}, 2
              s_add_u32 s{s_c}, s{s_c}, {nb}
              s_cmp_ge_u32 s{s_c}, 112
              s_cselect_b32 s{s_d}, 112, 0
              s_cselect_b32 s{s_e}, 7, 0
              s_sub_u32 s{s_c}, s{s_c}, s{s_d}
              s_mul_i32 s{s_d}, s{s_c}, 147
              s_lshr_b32 s{s_d}, s{s_d}, 10
              s_mul_i32 s3, s{s_d}, 7
              s_sub_u32 s{s_c}, s{s_c}, s3
              s_add_u32 s{s_c}, s{s_c}, s{s_e}
              s_lshl_b32 s{s_c}, s{s_c}, 10
              s_mul_i32 s{s_d}, s{s_d}, {32*14336}
              s_add_u32 s{s_c}, s{s_c}, s{s_d}
              s_mul_i32 s3, s{s_a}, {4*14336}
              s_add_u32 s{s_dst+nb}, s{s_c}, s3
              v_bfe_u32 v{vt}, v0, 2, 2
              v_cmp_eq_u32 vcc, {nb}, v{vt}
              v_mov_b32 v{vt2}, 0x3f803f80
              v_cndmask_b32 v{SEL+nb*4}, 0, v{vt2}, vcc""")
        for r in range(1, 4): P(f"v_mov_b32 v{SEL+nb*4+r}, v{SEL+nb*4}")
        P(f"v_mov_b32 v{CS+nb}, 0")
    for u in range(4):
        P.wait(tag=f't{u}')
        b = reads(u, False, False)
        for nb in range(4):
            P(f"buffer_store_dwordx4 {vr(b+nb*4,4)}, v{vlin}, {sr(sD,4)}, s{s_dst+nb} offen")
            P(mfma16(CS, SEL + nb * 4, b + nb * 4))
            P(f"s_add_u32 s{s_dst+nb}, s{s_dst+nb}, 14336")
    srd(P, sD, S_WS, WS_CSP, 8 * 3584 * 4)
    P(f"""s_mul_i32 s{s_a}, s{s_a}, {3584*4}
          s_lshl_b32 s{s_b}, s{s_b}, 8
          s_add_u32 s{s_a}, s{s_a}, s{s_b}
          v_lshlrev_b32 v{vt}, 2, v0
          buffer_store_dword v{CS}, v{vt}, {sr(sD,4)}, s{s_a} offen
          s_branch PT_DONE{uid}""")
    P.label(f"PT_NOTIN{uid}")
    dma_addr(2048)
    P(f"s_cmp_ge_u32 s{s_gw}, 576"); P(f"s_cbranch_scc1 PT_WOUT{uid}", grp=['wout'])
    srd(P, sA, S_WO, 0, 2 * MB)
    srd(P, sD, S_WS, WS_WO, 2 * MB)
    rd_addr(False, True)
    P(f"""s_sub_u32 s{s_b}, s{s_gw}, 448
          s_and_b32 s{s_a}, s{s_b}, 15
          s_lshr_b32 s{s_b}, s{s_b}, 4
          s_lshl_b32 s{s_c}, s{s_b}, 18
          s_lshl_b32 s3, s{s_a}, 7
          s_add_u32 s{s_c}, s{s_c}, s3
          s_lshl_b32 s{s_d}, s{s_a}, 17
          s_lshl_b32 s3, s{s_b}, 14
          s_add_u32 s{s_d}, s{s_d}, s3""")
    for i in range(16):
        P(f"s_add_u32 m0, s{s_l}, {i*1024}")
        if i: P(f"s_add_u32 s{s_c}, s{s_c}, {8*2048}")
        P(f"buffer_load_dwordx4 v{vd}, {sr(sA,4)}, s{s_c} offen lds", tag=f't{i//4}')
    for u in range(4):
        P.wait(tag=f't{u}')
        b = reads(u, False, True)
        for nb in range(4):
            P(f"buffer_store_dwordx4 {vr(b+nb*4,4)}, v{vlin}, {sr(sD,4)}, s{s_d} offen offset:{nb*1024}")
        P(f"s_add_u32 s{s_d}, s{s_d}, 4096")
    P(f"s_branch PT_DONE{uid}")
    P.label(f"PT_WOUT{uid}")
    srd(P, sA, S_WOUT, 0, 1792 * 2048)
    srd(P, sD, S_WS, WS_WOUT, 1792 * 2048)
    rd_addr(True, True)
    P(f"""s_sub_u32 s{s_b}, s{s_gw}, 576
          s_and_b32 s{s_a}, s{s_b}, 15
          s_lshr_b32 s{s_b}, s{s_b}, 4
          s_mul_i32 s{s_dst}, s{s_a}, {56*4096}
          s_lshl_b32 s3, s{s_b}, 14
          s_add_u32 s{s_dst}, s{s_dst}, s3
          s_lshl_b32 s{s_a}, s{s_a}, 7""")
    for u in range(4):
        P(f"""s_lshl_b32 s{s_c}, s{s_b}, 2
              s_add_u32 s{s_c}, s{s_c}, {u}
              s_mul_i32 s{s_d}, s{s_c}, 37
              s_lshr_b32 s{s_d}, s{s_d}, 8
              s_mul_i32 s3, s{s_d}, 7
              s_sub_u32 s{s_c}, s{s_c}, s3
              s_mul_i32 s{s_d}, s{s_d}, 224
              s_lshl_b32 s{s_e}, s{s_c}, 5
              s_cmp_ge_u32 s{s_c}, 3
              s_cselect_b32 s3, 16, 0
              s_add_u32 s{s_e}, s{s_e}, s3
              s_cmp_eq_u32 s{s_c}, 6
              s_cselect_b32 s{s_e}, 96, s{s_e}
              s_cselect_b32 s{s_c}, {112-8}, {16-8}
              s_lshl_b32 s{s_c}, s{s_c}, 11
              s_add_u32 s{s_d}, s{s_d}, s{s_e}
              s_lshl_b32 s{s_d}, s{s_d}, 11
              s_add_u32 s{s_d}, s{s_d}, s{s_a}""")
        for i in range(4):
            P(f"s_add_u32 m0, s{s_l}, {(u*4+i)*1024}")
            if i == 2: P(f"s_add_u32 s{s_d}, s{s_d}, s{s_c}")
            elif i: P(f"s_add_u32 s{s_d}, s{s_d}, {8*2048}")
            P(f"buffer_load_dwordx4 v{vd}, {sr(sA,4)}, s{s_d} offen lds", tag=f't{u}')
    for u in range(4):
        P.wait(tag=f't{u}')
        b = reads(u, True, True)
        for nb in range(4):
            P(f"buffer_store_dwordx4 {vr(b+nb*4,4)}, v{vlin}, {sr(sD,4)}, s{s_dst} offen offset:{nb*1024}")
        P(f"s_add_u32 s{s_dst}, s{s_dst}, 4096")
    P.label(f"PT_DONE{uid}")

def kp_pretile():
    P = Prog('kp'); V = Regs('v', 2); S = Regs('s', S_FREE, 100)
    prologue(P, 'KP_END')
    pretile(P, V, S, 0, 'P')
    P.label('KP_END'); P("s_endpgm")
    return P
```

```python
import sys, os
sys.path.insert(0, os.path.dirname(os.path.abspath(__file__)))
from common import *
import k_pre, k_gemm, k_attn

NAME = 'sequential_preLN__mha_block__mixer_gmlp__prompt'
REF = f'cdna_kernels/{NAME}.s.ref'

def header():
    out = []
    for l in open(REF):
        if l.startswith('; Override'): break
        out.append(l)
    return ''.join(out)

def build(path, kernels, verbose=False):
    txt = header()
    for lab, P, lds in kernels:
        txt += f"; @launch kernel={lab} grid=(256,1,1) block=(256,1,1) lds={lds}\n"
    txt += '.amdgcn_target "amdgcn-amd-amdhsa--gfx950"\n'
    for lab, P, lds in kernels:
        if P is None: continue
        body = P.finalize(verbose)
        txt += kernel_text(lab, body, P.maxreg)
    open(path, 'w').write(txt)
    return txt

def default_list():
    BIG = 81920 + 256
    ks = [('k0_kernel', k_pre.k0_ln1(), BIG), ('kp_kernel', k_pre.kp_pretile(), BIG)]
    for lab, f in (('k1_kernel', k_gemm.k1_qkv), ('k2_kernel', k_attn.k2_attn), ('k3_kernel', k_gemm.k3_oproj),
                   ('k4_kernel', k_gemm.k4_ffnin), ('k5_kernel', k_gemm.k5_spatial), ('k6_kernel', k_gemm.k6_ffnout)):
        P, lds = f()
        ks.append((lab, P, max(lds, BIG)))
    return ks

if __name__ == '__main__':
    out = sys.argv[1] if len(sys.argv) > 1 else f'cdna_kernels/{NAME}.s'
    build(out, default_list(), verbose=True)
```

```python
from build import *
def empty():
    P = Prog('e'); P("s_endpgm"); return P
ks = default_list()
build('t_base.s', ks)
ks = default_list()
e = [('e_kernel', empty(), 0)] + [('e_kernel', None, 0)] * 7
build('t_e8.s', ks + e)
ks = default_list()
e = [('e_kernel', empty(), 0)] + [('e_kernel', None, 0)] * 7
build('t_e8pre.s', e + ks)
ks = default_list()
build('t_k2x2.s', ks[:4] + [('k2_kernel', None, ks[3][2])] + ks[4:])
ks = default_list()
build('t_k5x2.s', ks[:7] + [('k5_kernel', None, ks[6][2])] + ks[7:])
```

```python
import re

REG_RE = re.compile(r'^(-?)(abs\()?([vas])(\d+|\[(\d+):(\d+)\])\)?$')

def parse_reg(tok):
    t = tok.strip()
    if t.startswith('-'): t = t[1:]
    if t.startswith('|') and t.endswith('|'): t = t[1:-1]
    if t.startswith('abs(') and t.endswith(')'): t = t[4:-1]
    if t == 'vcc': return [('s', 'vcc0'), ('s', 'vcc1')]
    if t == 'vcc_lo': return [('s', 'vcc0')]
    if t == 'vcc_hi': return [('s', 'vcc1')]
    if t == 'exec': return [('s', 'exec0'), ('s', 'exec1')]
    if t == 'exec_lo': return [('s', 'exec0')]
    if t == 'exec_hi': return [('s', 'exec1')]
    if t == 'm0': return [('s', 'm0')]
    m = re.match(r'^([vas])(\d+)$', t)
    if m: return [(m.group(1), int(m.group(2)))]
    m = re.match(r'^([vas])\[(\d+):(\d+)\]$', t)
    if m: return [(m.group(1), i) for i in range(int(m.group(2)), int(m.group(3)) + 1)]
    return []

TRANS = ('v_exp_', 'v_log_', 'v_rcp_', 'v_rsq_', 'v_sqrt_', 'v_sin_', 'v_cos_')
EXEC = [('s', 'exec0'), ('s', 'exec1')]
VCC = [('s', 'vcc0'), ('s', 'vcc1')]

class Ins:
    __slots__ = ('text', 'op', 'kind', 'rd', 'wr', 'srcA', 'srcB', 'srcC', 'passes', 'meta', 'wide', 'dpp', 'label', 'target', 'nops', 'vm', 'lg', 'srd', 'pset', 'cset', 'st')
    def __init__(self, text, **meta):
        self.text = text; self.meta = meta
        self.rd = []; self.wr = []; self.srcA = self.srcB = self.srcC = []
        self.passes = 0; self.wide = False; self.dpp = False; self.label = None; self.target = None
        self.nops = 0; self.vm = None; self.lg = None; self.srd = []
        t = text.split(';')[0].strip()
        if t.endswith(':'):
            self.kind = 'label'; self.label = t[:-1]; self.op = ''; return
        if t.startswith('.') or t == '':
            self.kind = 'dir'; self.op = ''; return
        parts = t.split(None, 1)
        op = self.op = parts[0]
        rest = parts[1] if len(parts) > 1 else ''
        if op == 'WAIT': self.kind = 'wait'; return
        if op == 'STAGE': self.kind = 'stage'; return
        ops = [x.strip() for x in rest.split(',')] if rest else []
        mods = ''
        if ops:
            last = ops[-1].split(None, 1)
            ops[-1] = last[0]
            mods = last[1] if len(last) > 1 else ''
        cut = None
        for i, o in enumerate(ops):
            if ' ' in o and i < len(ops) - 1:
                cut = i; break
        if cut is not None:
            mods = ops[cut].split(None, 1)[1] + ',' + ','.join(ops[cut + 1:]) + ' ' + mods
            ops = ops[:cut] + [ops[cut].split(None, 1)[0]]
        R = [parse_reg(o) for o in ops]
        flat = lambda L: [x for l in L for x in l]
        if op.startswith('v_mfma') or op.startswith('v_smfmac'):
            self.kind = 'mfma'; self.wr = R[0]; self.srcA = R[1]; self.srcB = R[2]
            if op.startswith('v_smfmac'):
                self.srcC = R[0]; self.srcB = R[2] + R[3]
                self.passes = 8 if '16x16x64' in op else 16
            else:
                self.srcC = R[3]
                self.passes = 8 if '32x32x16' in op else 4
                assert '32x32x16' in op or '16x16x32' in op, op
            self.rd = self.srcA + self.srcB + self.srcC + EXEC
        elif op.startswith('v_'):
            self.kind = 'valu'
            self.dpp = ('_dpp' in op) or bool(re.search(r'(quad_perm|row_\w+|wave_\w+)', mods))
            if op.startswith('v_cmpx'):
                self.wr = R[0] + EXEC; self.rd = flat(R[1:])
            elif op.startswith('v_cmp'):
                self.wr = R[0]; self.rd = flat(R[1:])
            elif op.startswith('v_permlane') and 'swap' in op or op.startswith('v_swap'):
                self.wr = R[0] + R[1]; self.rd = R[0] + R[1]
            elif op.startswith(('v_add_co', 'v_sub_co', 'v_addc_co', 'v_subb_co', 'v_subbrev_co', 'v_div_scale', 'v_mad_u64')):
                self.wr = R[0] + R[1]; self.rd = flat(R[2:])
            elif op.startswith(('v_fmac', 'v_pk_fmac', 'v_dot2c', 'v_writelane')) or self.dpp or 'UNUSED_PRESERVE' in mods:
                self.wr = R[0]; self.rd = flat(R)
            elif op == 'v_nop':
                pass
            else:
                self.wr = R[0]; self.rd = flat(R[1:])
            self.rd = self.rd + EXEC
        elif op.startswith('buffer_') or op.startswith('global_'):
            self.kind = 'vmem'
            isbuf = op.startswith('buffer_')
            if op in ('buffer_inv', 'buffer_wbl2'):
                pass
            elif re.search(r'\blds\b', mods):
                self.rd = flat(R) + [('s', 'm0')]; self.meta.setdefault('dma', True)
            elif 'load' in op:
                self.wr = R[0]; self.rd = flat(R[1:])
            elif 'store' in op:
                self.rd = flat(R); self.wide = 'x3' in op or 'x4' in op
                self.srcA = R[0] if isbuf else R[1]
            elif 'atomic' in op:
                self.rd = flat(R)
                if 'sc0' in mods: self.wr = R[0]
            else:
                raise ValueError(op)
            self.rd = self.rd + EXEC
        elif op.startswith('ds_'):
            self.kind = 'ds'
            if op.startswith(('ds_read', 'ds_bpermute', 'ds_permute', 'ds_swizzle')) or '_rtn' in op:
                self.wr = R[0]; self.rd = flat(R[1:])
            else:
                self.rd = flat(R)
            self.rd = self.rd + EXEC
        elif op.startswith(('s_load', 's_buffer_load', 's_memtime', 's_memrealtime')):
            self.kind = 'smem'; self.wr = R[0]; self.rd = flat(R[1:])
        elif op == 's_waitcnt':
            self.kind = 'rawwait'
            m = re.search(r'vmcnt\((\d+)\)', t); self.vm = int(m.group(1)) if m else None
            m = re.search(r'lgkmcnt\((\d+)\)', t); self.lg = int(m.group(1)) if m else None
        elif op == 's_nop':
            self.kind = 'nop'
        elif op in ('s_branch',) or op.startswith('s_cbranch'):
            self.kind = 'branch'; self.target = ops[0]
            if 'vcc' in op: self.rd = list(VCC)
            if 'exec' in op: self.rd = list(EXEC)
        elif op == 's_endpgm':
            self.kind = 'end'
        elif op.startswith('s_'):
            self.kind = 'salu'
            if op.startswith(('s_cmp', 's_barrier', 's_setprio', 's_sleep', 's_bitcmp', 's_setreg')):
                self.rd = flat(R)
            elif 'saveexec' in op:
                self.wr = R[0] + EXEC; self.rd = flat(R[1:]) + EXEC
            elif op.startswith(('s_addk', 's_mulk')):
                self.wr = R[0]; self.rd = flat(R)
            else:
                self.wr = R[0]; self.rd = flat(R[1:])
        else:
            raise ValueError('unknown op ' + text)

    def states(self):
        if self.kind in ('label', 'dir', 'stage'): return 0
        if self.kind == 'nop': return int(self.text.split()[1]) + 1
        return 1

def ov(a, b):
    return bool(set(a) & set(b))
def vregs(l): return [x for x in l if x[0] in 'va']
def sregs(l): return [x for x in l if x[0] == 's']

def need_states(p, c):
    n = 0
    pk, ck = p.kind, c.kind
    if pk == 'valu':
        pv, ps = vregs(p.wr), sregs(p.wr)
        if ck == 'mfma':
            if ov(pv, c.rd): n = max(n, 2)
            if ov(ps, EXEC): n = max(n, 4)
        if ck == 'valu':
            if c.dpp and ov(pv, c.rd): n = max(n, 2)
            if c.dpp and ov(ps, EXEC): n = max(n, 5)
            if c.op.startswith('v_permlane'):
                if ov(pv, c.rd): n = max(n, 2)
                if ov(ps, EXEC): n = max(n, 4)
            if c.op.startswith(('v_readlane', 'v_readfirstlane', 'v_writelane')):
                if ov(pv, c.rd): n = max(n, 1)
                if ov(ps, c.rd): n = max(n, 4)
            if ov([x for x in ps if x not in EXEC], c.rd): n = max(n, 4 if c.op.startswith('v_div_fmas') else 2)
            if p.op.startswith(TRANS) and not c.op.startswith(TRANS) and ov(pv, c.rd): n = max(n, 1)
            if p.op.startswith('v_dot') and (ov(pv, c.rd) or ov(pv, c.wr)): n = max(n, 3)
            if ('sdwa' in p.op or ('op_sel' in p.text and not p.op.startswith('v_pk_'))) and (ov(pv, c.rd) or ov(pv, c.wr)): n = max(n, 1)
        if ck == 'vmem' and ov([x for x in ps if x not in EXEC], c.rd): n = max(n, 5)
        if p.op.startswith('v_dot') and ck in ('vmem', 'ds', 'mfma') and ov(pv, c.rd): n = max(n, 3)
        if ck == 'branch' and ov(ps, c.rd): n = max(n, 5)
        if ck == 'salu' and ov(ps, c.rd): n = max(n, 1)
    elif pk == 'salu':
        if ('s', 'm0') in p.wr and ck == 'vmem' and ('s', 'm0') in c.rd: n = max(n, 1)
    elif pk == 'vmem':
        if p.wide and ov(p.srcA, c.wr): n = max(n, 2)
    elif pk == 'mfma':
        P = p.passes
        far = {4: 8, 8: 12, 16: 20}[P]
        if ck == 'mfma':
            if ov(p.wr, c.srcA) or ov(p.wr, c.srcB): n = max(n, far)
            if ov(p.wr, c.srcC):
                if not (p.wr == c.srcC and p.passes == c.passes): n = max(n, far - 2)
            elif ov(p.wr, c.wr): n = max(n, far - 2)
        elif ck in ('valu', 'vmem', 'ds'):
            if ov(p.wr, c.rd) or ov(p.wr, c.wr): n = max(n, far)
            if ck == 'valu' and ov(p.srcC, c.wr): n = max(n, {4: 3, 8: 7, 16: 15}[P])
    return n

class Prog:
    def __init__(self, name):
        self.name = name; self.L = []
    def __call__(self, text, **meta):
        for line in text.split('\n'):
            line = line.strip()
            if line and not line.startswith(';'):
                self.L.append(Ins(line, **meta))
        return self
    def label(self, l): self.L.append(Ins(l + ':'))
    def wait(self, regs=(), tag=None, age=0, vm0=False, lg0=False):
        i = Ins('WAIT'); r = []
        for x in regs: r += parse_reg(x)
        if isinstance(tag, str): tag = tag.split()
        i.meta = dict(regs=set(r), tag=tag, age=age, vm0=vm0, lg0=lg0)
        self.L.append(i)
    def stage(self, tag):
        i = Ins('STAGE'); i.meta = dict(tag=tag); self.L.append(i)

    def traces(self, L):
        lab = {x.label: i for i, x in enumerate(L) if x.kind == 'label'}
        fw = [i for i, x in enumerate(L) if x.kind == 'branch' and x.op != 's_branch' and 'trips' not in x.meta]
        out = []
        pols = [set()] + [{i} for i in fw] + [set(p) for p in getattr(self, 'extra_pols', [])]
        groups = {}
        for i in fw:
            for g in L[i].meta.get('grp', []): groups.setdefault(g, set()).add(i)
        pols += list(groups.values())
        for pol in pols:
            tr = []; cnt = {}; i = 0; used = {}
            while True:
                x = L[i]; tr.append(i)
                assert len(tr) < 2000000, 'trace too long'
                if x.kind == 'end': break
                if x.kind == 'branch':
                    if x.op == 's_branch': i = lab[x.target]; continue
                    if 'trips' in x.meta:
                        c = cnt.get(i, 0) + 1
                        if c < x.meta['trips']:
                            cnt[i] = c; i = lab[x.target]; continue
                        cnt[i] = 0
                    elif i in pol and used.get(i, 0) < x.meta.get('maxtake', 1):
                        used[i] = used.get(i, 0) + 1
                        i = lab[x.target]; continue
                i += 1
            out.append(tr)
        return out

    def sim(self, L, tr, W, check=False):
        vm = []; lg = []
        st = {}
        eff = set()
        for i in tr:
            x = L[i]
            def need(regs, tag=None, age=0):
                nv = nl = None
                for k in range(len(vm) - 1, -1, -1):
                    o = vm[k]
                    if (o[0] & regs) or (tag is not None and o[1] in tag and o[2] <= st.get(o[1], 0) - age):
                        nv = len(vm) - 1 - k; break
                for k in range(len(lg) - 1, -1, -1):
                    o = lg[k]
                    if (o[0] & regs) or (tag is not None and o[1] in tag and o[2] <= st.get(o[1], 0) - age):
                        nl = len(lg) - 1 - k
                        if any(q[3] == 'smem' for q in lg): nl = 0
                        break
                return nv, nl
            def apply(nv, nl):
                ch = False
                if nv is not None and len(vm) > nv: del vm[:len(vm) - nv]; ch = True
                if nl is not None and len(lg) > nl:
                    if nl == 0 or not any(q[3] == 'smem' for q in lg): del lg[:len(lg) - nl]
                    ch = True
                return ch
            if x.kind == 'stage':
                st[x.meta['tag']] = st.get(x.meta['tag'], 0) + 1; continue
            if x.kind == 'rawwait':
                apply(x.vm, x.lg); continue
            if x.kind == 'wait':
                m = x.meta
                nv, nl = need(m['regs'], m['tag'], m['age'])
                if m['vm0'] and vm: nv = 0
                if m['lg0'] and lg: nl = 0
            elif x.kind in ('label', 'dir', 'nop', 'end'):
                continue
            else:
                nv, nl = need(set(x.rd) | set(x.wr))
            w = W.setdefault(i, [None, None])
            if not check:
                if nv is not None: w[0] = min(nv, 63) if w[0] is None else min(w[0], nv)
                if nl is not None: w[1] = min(nl, 15) if w[1] is None else min(w[1], nl)
            if w[0] is not None and len(vm) > w[0]: eff.add((i, 0))
            if w[1] is not None and len(lg) > w[1]: eff.add((i, 1))
            apply(w[0], w[1])
            if x.kind == 'vmem':
                t = x.meta.get('tag')
                vm.append((set(x.wr), t, st.get(t, 0), 'vmem', i))
                assert len(vm) <= 63 or x.meta.get('noovf'), f'vmcnt overflow at {x.text}'
            elif x.kind == 'ds':
                t = x.meta.get('tag')
                lg.append((set(x.wr), t, st.get(t, 0), 'ds', i))
            elif x.kind == 'smem':
                lg.append((set(x.wr), None, 0, 'smem', i))
        return eff

    def finalize(self, verbose=False):
        L = self.L
        trs = self.traces(L)
        W = {}
        for rep in range(3):
            for tr in trs: self.sim(L, tr, W)
        eff = set()
        for tr in trs: eff |= self.sim(L, tr, W, check=True)
        L2 = []; auto = 0
        for i, x in enumerate(L):
            w = W.get(i, [None, None])
            parts = []
            if w[0] is not None and (i, 0) in eff: parts.append(f'vmcnt({w[0]})')
            if w[1] is not None and (i, 1) in eff: parts.append(f'lgkmcnt({w[1]})')
            if parts:
                L2.append(Ins('s_waitcnt ' + ' '.join(parts)))
                if x.kind != 'wait': auto += 1
            if x.kind not in ('wait', 'stage'): L2.append(x)
        visited = set()
        for tr in trs: visited |= set(tr)
        unv = [L[i].text for i in range(len(L)) if i not in visited and L[i].kind not in ('dir', 'label')]
        assert not unv, f'unvisited code: {unv[:5]}'
        L = L2
        trs = self.traces(L)
        for x in L:
            x.nops = 0
            x.pset = frozenset(x.wr) | frozenset(x.srcC) | (frozenset(x.srcA) if x.kind == 'vmem' else frozenset())
            x.cset = frozenset(x.rd) | frozenset(x.wr)
            x.st = x.states()
        SKIP = ('label', 'dir', 'nop', 'rawwait', 'end')
        PROD = ('valu', 'salu', 'vmem', 'mfma')
        while True:
            changed = False; seen = set()
            for tr in trs:
                lastjump = -1000
                for n, i in enumerate(tr):
                    if n and tr[n - 1] != i - 1: lastjump = n
                    c = L[i]
                    if c.kind in SKIP: continue
                    if n - lastjump > 40:
                        if i in seen: continue
                        seen.add(i)
                    d = c.nops; k = n - 1; cs = c.cset
                    while k >= 0 and d < 20:
                        p = L[tr[k]]
                        if p.kind in PROD and not p.pset.isdisjoint(cs):
                            r = need_states(p, c)
                            if r > d:
                                c.nops += r - d; d = r; changed = True
                        d += p.st + p.nops; k -= 1
            if not changed: break
        total = 0; L3 = []
        for x in L:
            n = x.nops
            if n:
                total += n
                if verbose > 1: print(f'  [{self.name}] nop {n} before {x.text}')
                while n > 0:
                    k = min(n, 16); L3.append(Ins(f's_nop {k-1}')); n -= k
            L3.append(x)
        L = L3
        self.final = L
        mx = {'v': -1, 'a': -1, 's': -1}
        for x in L:
            for k, r in x.rd + x.wr:
                if isinstance(r, int): mx[k] = max(mx[k], r)
        self.maxreg = mx
        if verbose: print(f'[{self.name}] ins={len(L)} autowaits={auto} nops={total} maxreg={mx}')
        return '\n'.join(x.text for x in L) + '\n'

class Regs:
    def __init__(self, kind, start=0, limit=256):
        self.kind = kind; self.n = start; self.limit = limit
    def __call__(self, cnt=1, align=None):
        if align is None: align = 1 if cnt == 1 else (2 if self.kind != 's' else (4 if cnt >= 4 else 2))
        self.n = (self.n + align - 1) // align * align
        r = self.n; self.n += cnt
        assert self.n <= self.limit, f'out of {self.kind} regs'
        return r

def vr(b, n=1, k='v'):
    return f'{k}{b}' if n == 1 else f'{k}[{b}:{b+n-1}]'
def sr(b, n=1): return vr(b, n, 's')

def kernel_text(name, body, maxreg):
    nv = maxreg['v'] + 1; na = maxreg['a'] + 1
    acc = max(4, (nv + 3) // 4 * 4)
    tot = acc + na if na > 0 else max(nv, 1)
    return f""".text
.globl {name}
.p2align 8
.type {name},@function
{name}:
{body}.section .rodata,"a"
.p2align 6
.amdhsa_kernel {name}
  .amdhsa_next_free_vgpr {tot}
  .amdhsa_next_free_sgpr 102
  .amdhsa_accum_offset {acc}
  .amdhsa_group_segment_fixed_size 0
  .amdhsa_kernarg_size 88
  .amdhsa_user_sgpr_count 2
  .amdhsa_user_sgpr_kernarg_segment_ptr 1
  .amdhsa_system_sgpr_workgroup_id_x 1
  .amdhsa_float_denorm_mode_32 3
.end_amdhsa_kernel
"""
```

```python
from asmlib import *
import os, math, struct

MB = 1 << 20; KB = 1 << 10
WS_EP   = 0
WS_F1   = 64 * KB
WS_F2   = 128 * KB
WS_FP   = 256 * KB
WS_F3   = 384 * KB
WS_F4   = 512 * KB
WS_F5   = 640 * KB
WS_ST1  = 768 * KB
WS_CS1  = 1 * MB
WS_HST  = 1 * MB + 256 * KB
WS_ZST  = 1 * MB + 512 * KB
WS_CSP  = 2 * MB
WS_KV   = 4 * MB
WS_O    = 12 * MB
WS_H    = 16 * MB
WS_WIN  = 20 * MB
WS_WSP  = 28 * MB
WS_WOUT = 36 * MB
WS_Z2   = 40 * MB
WS_U    = 48 * MB
WS_DQ   = 56 * MB
WS_DZ1  = 60 * MB
WS_PROF = 68 * MB
WS_END  = 70 * MB

PROF = int(os.environ.get('PROF', 0))
DBG = bool(os.environ.get('DBG'))
UPTO = int(os.environ.get('UPTO', 9))

R_X, R_WQKV, R_WO, R_WIN, R_WSP, R_BSP, R_WOUT, R_OUT, R_WS = 4, 8, 12, 16, 20, 24, 28, 32, 36
def R(r): return f"s[{r}:{r+3}]"
S_W, S_E, S_RBA, S_CBA, S_RB, S_CB, S_R32A, S_R32, S_WB, S_SPIN = 40, 41, 42, 43, 44, 45, 46, 47, 48, 49
S_ST = 72
PW = 40960
OOB = '0x80000000'
SPIN = 40000
V_X, V_E = 1, 2

def f32(x): return '0x%08x' % struct.unpack('<I', struct.pack('<f', x))[0]
def ar(b, n=1): return vr(b, n, 'a')
def mf16(d, a, b, c=None):
    return f"v_mfma_f32_16x16x32_bf16 {vr(d,4)}, {a}, {b}, {vr(d,4) if c is None else c}"
def mf32(d, a, b, c=None):
    return f"v_mfma_f32_32x32x16_bf16 {vr(d,16)}, {a}, {b}, {vr(d,16) if c is None else c}"

SSET = os.environ.get('SSET', 'bar0 pa1 at0 at1 f2 p3e f3 pa4 pb0 p5e f5').split()
def stamp(P, name):
    i = {'start': 0, 'end': 12}.get(name, SSET.index(name) + 1 if name in SSET else None)
    if PROF and i is not None:
        P(f"s_mem{'' if PROF == 2 else 'real'}time s[{S_ST+2*i}:{S_ST+2*i+1}]")
        P.nst = max(getattr(P, 'nst', 0), i + 1)

def bc(reg): return (vr(reg & ~1, 2), reg & 1, reg & 1)
def pr(reg): return (vr(reg, 2), 0, 1)
def pk(op, d, *srcs):
    s = ', '.join(x[0] for x in srcs)
    lo = [x[1] for x in srcs]; hi = [x[2] for x in srcs]
    m = ''
    if any(lo): m += f" op_sel:[{','.join(map(str,lo))}]"
    if not all(hi): m += f" op_sel_hi:[{','.join(map(str,hi))}]"
    return f"v_pk_{op}_f32 {vr(d,2)}, {s}{m}"

def T(text, tag): return ('tag', text, tag)
def W(regs=(), **kw): return ('wait', list(regs), kw)
def G(*items): return ('grp', list(items))
def F(fn, w=1): return ('fn', fn, w)
def lines(s):
    out = []
    for l in s.split('\n'):
        l = l.strip()
        if not l: continue
        if l.startswith('s_cmp'): out.append(G(l))
        elif l.startswith('s_cselect'): out[-1][1].append(l)
        else: out.append(l)
    return out
def itext(it):
    if isinstance(it, str): return it
    if it[0] == 'tag': return it[1]
    if it[0] == 'grp': return itext(it[1][0])
    return ''
def weight(it):
    if isinstance(it, str): return 2 if it.startswith(TRANS + ('buffer_',)) else (4 if it.startswith('v_mfma') else 1)
    if it[0] == 'tag': return weight(it[1])
    if it[0] == 'grp': return sum(weight(x) for x in it[1])
    if it[0] == 'fn': return it[2]
    return 1
def ismem(it): return itext(it).startswith(('ds_', 'buffer_'))
def isvalu(it):
    if not isinstance(it, str) and it[0] == 'grp': return any(isvalu(x) for x in it[1])
    return itext(it).startswith('v_')
def emit(P, it):
    if isinstance(it, str): P(it)
    elif it[0] == 'tag': P(it[1], tag=it[2])
    elif it[0] == 'wait': P.wait(it[1], **it[2])
    elif it[0] == 'grp':
        for x in it[1]: emit(P, x)
    elif it[0] == 'fn': it[1]()
    else: raise ValueError(it)

class Sched:
    def __init__(self, P, name): self.P = P; self.name = name; self.s = []
    def add(self, m, cap=2): self.s.append(dict(m=m, post=[], tail=[], load=0, cap=cap, lv=False)); return len(self.s) - 1
    def put(self, i, *items):
        for it in items:
            x = self.s[i]; x['post'].append(it); x['load'] += weight(it); x['lv'] = x['lv'] or isvalu(it)
    def tail(self, i, *items):
        for it in items: self.s[i]['tail'].append(it); self.s[i]['load'] += weight(it)
    def fits(self, i, it, extra):
        x = self.s[i]
        if x['load'] + weight(it) > x['cap'] + extra and not (x['load'] == 0): return False
        if ismem(it) and x['lv'] and extra < 2: return False
        return True
    def stream(self, items, start, end=None, even=True, gap=0):
        end = len(self.s) if end is None else min(end, len(self.s))
        tw = sum(weight(x) for x in items)
        for extra in range(0, 40):
            for ev in ([True, False] if even else [False]):
                pos = []; i = start; acc = 0; ok = True
                save = [(x['load'], x['lv'], len(x['post'])) for x in self.s[start:end]]
                for it in items:
                    if ev: i = max(i, start + (acc * (end - start)) // max(tw, 1))
                    while i < end and not self.fits(i, it, extra): i += 1
                    if i >= end: ok = False; break
                    self.put(i, it); pos.append(i); acc += weight(it)
                    if ' m0,' in itext(it)[:16] and isinstance(it, str): i += 1
                    i += gap
                if ok: return pos[-1] if pos else start
                for x, (l, lv, n) in zip(self.s[start:end], save):
                    x['load'] = l; x['lv'] = lv; del x['post'][n:]
        raise ValueError('stream does not fit ' + self.name)
    def emit(self, a=0, b=None):
        over = 0
        for x in self.s[a:b]:
            self.P(x['m'])
            for it in x['post'] + x['tail']: emit(self.P, it)
            over += max(0, x['load'] - x['cap'])
        print(f"  sched {self.name}: slots {len(self.s[a:b])} overload {over}")

def xsum(v, t, op):
    return [f"v_mov_b32 v{t}, v{v}", f"v_permlane{op}_swap_b32 v{t}, v{v}", f"v_add_f32 v{v}, v{t}, v{v}"]
def interleave(*ls):
    out = []
    for i in range(max(len(l) for l in ls)):
        for l in ls:
            if i < len(l): out.append(l[i])
    return out
```

```python
from lib2 import *

PIECE_ROW = [0, 16, 4, 20]
L_XR, L_KV, L_QE, L_MISC = 0, 16384, 36864, 38912
L_CS = L_MISC
L_ST = L_MISC + 1024
L_QX = L_KV
vt, vt2, vt3 = 3, 4, 5
vXG, vXL, vWD, vQD, vRB = 6, 10, 12, 14, 16
vCS, vST, vCW, vSW, vG16, vJ4, vTAU, vG32 = 24, 25, 26, 27, 28, 29, 30, 31
WR = 32
AKV, AQ = 64, 128
CSK, CSQ, CSV, NMV, RSV, NM, RS, RSQ, GT = 160, 176, 192, 196, 204, 212, 214, 216, 220
vK, vV, vQ0, vQ1, vO, vFS, vFP, vWO, vWIN, vTIN, vWOUT, vTOUT, vSP = 240, 241, 242, 243, 244, 245, 246, 247, 249, 250, 251, 252, 253
vPOLL, vDUM = 254, 255
S_XO, S_T, S_TAB, S_A, S_B, S_C, S_D = 50, 51, 52, 68, 69, 70, 71
GL = int(os.environ.get('GL', 7))

def retry(K, name, reissue, check, cond='vccnz'):
    def ool():
        P = K.P
        P.label(name)
        for it in reissue: emit(P, it)
        P(f"s_add_u32 s{S_SPIN}, s{S_SPIN}, 1")
        for it in check: emit(P, it)
        P(f"""s_cmp_lt_u32 s{S_SPIN}, {SPIN}
              s_cselect_b64 s[{S_C}:{S_C+1}], -1, 0
              s_and_b64 vcc, vcc, s[{S_C}:{S_C+1}]""")
        P(f"s_cbranch_vccnz {name}", trips=2)
        P(f"s_branch {name}_B")
    K.ool.append(ool)
    def br():
        K.P(f"s_cbranch_vccnz {name}"); K.P.label(name + '_B')
    return F(br)

def prologue(K):
    P = K.P
    P("s_cmp_ge_u32 s2, 256"); P("s_cbranch_scc1 END")
    for r, off in ((R_X, 0), (R_WQKV, 8), (R_WS, 80), (R_WO, 16), (R_WIN, 32), (R_WSP, 40), (R_BSP, 48), (R_WOUT, 56), (R_OUT, 64)):
        P(f"s_load_dwordx2 s[{r}:{r+1}], s[0:1], {off}")
    P(f"s_getpc_b64 s[{S_A}:{S_A+1}]"); P.label('PC0')
    P(f"""s_bfe_u32 s3, s2, 0x20003
          s_lshl_b32 s3, s3, 15
          v_lshl_add_u32 v{vt}, v0, 7, s3
          v_min_u32 v{vt}, CODE_END-PC0-4, v{vt}
          global_load_dword v{vDUM}, v{vt}, s[{S_A}:{S_A+1}]""")
    if PROF: P("s_memtime s[98:99]")
    stamp(P, 'start')
    P(f"""v_lshrrev_b32 v1, 6, v0
          v_and_b32 v0, 63, v0
          v_readfirstlane_b32 s{S_W}, v1
          v_lshlrev_b32 v{V_X}, 4, v0
          s_and_b32 s{S_RBA}, s2, 1
          s_lshl_b32 s{S_RBA}, s{S_RBA}, 3
          s_bfe_u32 s3, s2, 0x30003
          s_or_b32 s{S_RBA}, s{S_RBA}, s3
          s_bfe_u32 s{S_CBA}, s2, 0x20001
          s_lshl_b32 s{S_CBA}, s{S_CBA}, 2
          s_lshr_b32 s3, s2, 6
          s_or_b32 s{S_CBA}, s{S_CBA}, s3
          s_lshl_b32 s{S_R32A}, s{S_RBA}, 2
          s_add_u32 s{S_R32A}, s{S_R32A}, s{S_W}
          s_mul_i32 s{S_WB}, s{S_W}, {PW}
          s_and_b32 s{S_RB}, s2, 3
          s_lshl_b32 s{S_RB}, s{S_RB}, 2
          s_bfe_u32 s3, s2, 0x20003
          s_or_b32 s{S_RB}, s{S_RB}, s3
          s_bfe_u32 s{S_CB}, s2, 0x10002
          s_lshl_b32 s{S_CB}, s{S_CB}, 3
          s_lshr_b32 s3, s2, 5
          s_or_b32 s{S_CB}, s{S_CB}, s3
          s_lshl_b32 s{S_R32}, s{S_RB}, 2
          s_add_u32 s{S_R32}, s{S_R32}, s{S_W}
          s_mov_b32 s{S_SPIN}, 0""")
    for r, n in ((R_X, 4 * MB), (R_WQKV, 6 * MB), (R_WS, 256 * MB), (R_WO, 2 * MB), (R_WIN, 7 * MB), (R_WSP, 8 * MB), (R_BSP, 4096), (R_WOUT, 1792 * 2048), (R_OUT, 4 * MB)):
        P(f"s_mov_b32 s{r+2}, {n}\n s_mov_b32 s{r+3}, 0x20000")

def swz_addr(P, d, pitch, scol):
    P(f"""v_lshrrev_b32 v{vt}, 3, v0
          s_lshl_b32 s3, s{S_W}, 4
          v_add_u32 v{vt2}, s3, v{vt}
          v_mul_u32_u24 v{d}, {pitch}, v{vt2}
          v_add_u32 v{d}, s{scol}, v{d}
          v_bfe_u32 v{vt}, v0, 4, 1
          v_bfe_u32 v{vt2}, v0, 1, 2
          v_xor_b32 v{vt}, v{vt}, v{vt2}
          v_lshlrev_b32 v{vt}, 5, v{vt}
          v_and_b32 v{vt2}, 1, v0
          v_lshl_add_u32 v{vt}, v{vt2}, 4, v{vt}
          v_xor_b32 v{vt2}, 64, v{vt}
          v_add_u32 v{vt2}, {8*pitch-1024}, v{vt2}
          v_add_u32 v{d+1}, v{d}, v{vt2}
          v_add_u32 v{d}, v{d}, v{vt}""")

def row_addr(P, d, sbase):
    P(f"""v_lshrrev_b32 v{vt}, 3, v0
          v_and_b32 v{vt2}, 7, v0
          v_xor_b32 v{vt2}, v{vt2}, v{vt}
          v_lshlrev_b32 v{d}, 4, v{vt2}
          v_and_b32 v{vt2}, 3, v{vt}
          v_lshrrev_b32 v{vt}, 2, v{vt}
          v_lshl_add_u32 v{vt2}, v{vt}, 3, v{vt2}
          v_lshl_add_u32 v{d}, v{vt2}, 11, v{d}
          v_add_u32 v{d}, s{sbase}, v{d}""")
    for pc in range(1, 4): P(f"v_add_u32 v{d+pc}, {PIECE_ROW[pc]*2048 - pc*1024}, v{d}")

def xdma(s): return [T(f"buffer_load_dwordx4 v{vXG+pc}, {R(R_X)}, s{S_XO} offen offset:{pc*1024} lds", f'x{s}') for pc in range(4)]
def xadv(): return [f"s_add_u32 s{S_XO}, s{S_XO}, 128", f"s_and_b32 s{S_XO}, s{S_XO}, 0x7ff"]
def m0(off): return f"s_add_u32 m0, s{S_WB}, {off}"
def kvdma(s): return [T(f"buffer_load_dwordx4 v{vWD+rp}, {R(R_WQKV)}, s{S_TAB+s} offen offset:{seg*2048+rp*1024} lds", f'w{s}') for seg in range(2) for rp in range(2)]
def qdma(t): return [T(f"buffer_load_dwordx4 v{vQD+rp}, {R(R_WQKV)}, s{S_TAB+t} offen offset:{rp*1024} lds", f'q{t}') for rp in range(2)]
def kvslot(s): return L_KV + (s % 5) * 4096
def qloc(t):
    if t == 0: return L_QE
    u, e = (t - 1) >> 1, (t - 1) & 1
    return (L_XR + (u >> 1) * 4096 if u % 2 == 0 else kvslot(11 + (u >> 1))) + e * 2048
def xread(s): return [f"ds_read_b128 {ar(s*16+(kk*2+mb)*4,4)}, v{vXL+kk} offset:{L_XR+(s&3)*4096+mb*2048}" for kk in range(2) for mb in range(2)]
def trreads(slot, q, off): return [f"ds_read_b64_tr_b16 {vr(WR+slot*8+kk*4+hf*2,2)}, v{vRB+kk*4+q} offset:{off+hf*512}" for kk in range(2) for hf in range(2)]

def rb_addr(P):
    P(f"""v_lshrrev_b32 v{vt}, 5, v0
          v_mul_u32_u24 v{vt3}, {PW}, v{vt}
          v_bfe_u32 v{vt}, v0, 4, 1
          v_lshl_add_u32 v{vt3}, v{vt}, 10, v{vt3}
          v_bfe_u32 v{vt2}, v0, 2, 2
          v_lshl_add_u32 v{vt3}, v{vt2}, 7, v{vt3}
          v_and_b32 v{vt2}, 3, v0
          v_lshl_add_u32 v{vt3}, v{vt2}, 3, v{vt3}
          v_bfe_u32 v{vt2}, v0, 3, 2
          v_lshl_add_u32 v{vRB}, v{vt2}, 5, v{vt3}""")
    for q in range(1, 4): P(f"v_xor_b32 v{vRB+q}, {q*32}, v{vRB}")
    for q in range(4): P(f"v_add_u32 v{vRB+4+q}, {2*PW}, v{vRB+q}")

def phase1(K):
    P = K.P
    SX = AKV
    P(f"""s_lshl_b32 s{S_A}, s{S_R32A}, 16
          s_lshl_b32 s{S_B}, s{S_CBA}, 7
          s_lshl_b32 s{S_T}, s{S_RBA}, 4
          s_add_u32 s{S_T}, s{S_T}, s{S_CBA}
          s_lshl_b32 s{S_T}, s{S_T}, 2
          s_add_u32 s{S_T}, s{S_T}, s{S_W}
          s_lshl_b32 s{S_D}, s{S_T}, 12
          v_lshrrev_b32 v{vt}, 5, v0
          v_and_b32 v{vt2}, 31, v0
          v_lshlrev_b32 v{vST}, 4, v{vt2}
          v_lshl_add_u32 v{vt3}, v{vt}, 11, v{vST}
          s_lshr_b32 s3, s{S_RBA}, 3
          s_lshl_b32 s{S_XO}, s{S_RBA}, 1
          s_add_u32 s{S_XO}, s{S_XO}, s3
          s_lshl_b32 s3, s{S_CBA}, 2
          s_add_u32 s{S_XO}, s{S_XO}, s3
          s_and_b32 s{S_XO}, s{S_XO}, 15
          s_lshl_b32 s{S_XO}, s{S_XO}, 7""")
    P.wait(lg0=True)
    P(f"s_load_dword s{S_E}, s[{R_WS}:{R_WS+1}], {WS_EP}")
    for p in range(4): P(f"buffer_load_dwordx4 {vr(SX+4*p,4)}, v{vt3}, {R(R_X)}, s{S_D} offen offset:{p*512}")
    row_addr(P, vXG, S_A)
    swz_addr(P, vQD, 6144, S_B)
    for rp in range(2): P(f"v_add_u32 v{vWD+rp}, 2048, v{vQD+rp}")
    for s in range(16):
        if s == 0: P(f"s_mul_i32 s{S_TAB}, s{S_XO}, 3072")
        else: P(f"s_add_u32 s3, s{S_XO}, {128*s}\n s_and_b32 s3, s3, 0x7ff\n s_mul_i32 s{S_TAB+s}, s3, 3072")
        if s == 0 or s == 4:
            for j in ([0] if s == 0 else [1, 2, 3, 4]):
                if j < 4:
                    P(m0(L_XR + j * 4096))
                    if j: P(f"s_add_u32 s{S_C}, s{S_XO}, {128*j}\n s_and_b32 s{S_C}, s{S_C}, 0x7ff")
                    for it in xdma(j): emit(P, T(it[1].replace(f's{S_XO} ', f's{S_C} ') if j else it[1], it[2]))
                P(m0(kvslot(j)))
                for it in kvdma(j): emit(P, it)
                if j == 0:
                    P(m0(qloc(0)))
                    for it in qdma(0): emit(P, it)
    P(f"s_add_u32 s{S_XO}, s{S_XO}, 384")
    P(f"""v_and_b32 v{vt}, 7, v0
          v_lshrrev_b32 v{vt2}, 4, v0
          v_xor_b32 v{vt}, v{vt}, v{vt2}
          v_lshlrev_b32 v{vXL}, 4, v{vt}
          v_and_b32 v{vt}, 15, v0
          v_lshl_add_u32 v{vXL}, v{vt}, 7, v{vXL}
          v_add_u32 v{vXL}, s{S_WB}, v{vXL}
          v_xor_b32 v{vXL+1}, 64, v{vXL}
          v_lshlrev_b32 v{vG16}, 4, v{vt2}
          v_lshlrev_b32 v{vJ4}, 2, v{vt}
          s_mul_i32 s3, s{S_W}, 192
          v_add_u32 v{vCW}, s3, v{vJ4}
          s_add_u32 s3, s{S_WB}, {L_ST}
          v_lshl_add_u32 v{vG32}, v{vt2}, 5, s3
          v_lshrrev_b32 v{vSW}, 2, v{vST}
          v_add_u32 v{vSW}, s3, v{vSW}
          v_bfe_u32 v{vt}, v0, 2, 2
          v_and_b32 v{vt2}, 3, v0
          v_lshl_add_u32 v{vt}, v{vt}, 3, v{vt2}
          v_lshl_add_u32 v{vTAU}, v{vt}, 2, s3""")
    rb_addr(P)
    K.attn_addr()
    A = AKV + 16; ONE = AKV + 24
    P(f"v_mov_b32 v{ONE}, 0x3f803f80")
    for i in range(16):
        P(f"v_dot2_f32_bf16 v{A+(i&3)}, v{SX+i}, v{ONE}, {'v%d'%(A+(i&3)) if i > 3 else 0}")
        P(f"v_dot2_f32_bf16 v{A+4+(i&3)}, v{SX+i}, v{SX+i}, {'v%d'%(A+4+(i&3)) if i > 3 else 0}")
    P(f"""s_add_u32 s{S_E}, s{S_E}, 0x9e3779b9
          s_lshl_b32 s{S_T}, s{S_T}, 5
          v_mov_b32 v{V_E}, s{S_E}
          v_add_f32 v{A}, v{A}, v{A+1}
          v_add_f32 v{A+2}, v{A+2}, v{A+3}
          v_add_f32 v{A+4}, v{A+4}, v{A+5}
          v_add_f32 v{A+6}, v{A+6}, v{A+7}
          v_add_f32 v{A}, v{A}, v{A+2}
          v_add_f32 v{A+1}, v{A+4}, v{A+6}
          s_add_u32 s{S_T}, s{S_T}, {WS_ST1}""")
    for n in (8, 4, 2, 1):
        for v in (A, A + 1): P(f"v_add_f32_dpp v{v}, v{v}, v{v} row_ror:{n} row_mask:0xf bank_mask:0xf")
    for l in interleave(xsum(A, A + 2, 16), xsum(A + 1, A + 3, 16)): P(l)
    P(f"""v_mul_f32 v{A}, {f32(-1/1024)}, v{A}
          v_mul_f32 v{A+1}, {f32(1/1024)}, v{A+1}
          v_fma_f32 v{A+1}, -v{A}, v{A}, v{A+1}
          v_max_f32 v{A+1}, 0, v{A+1}
          v_add_f32 v{A+1}, {f32(1e-5)}, v{A+1}
          v_rsq_f32 v{A+1}, v{A+1}
          v_mov_b32 v{A+2}, v{V_E}
          v_mov_b32 v{A+3}, v{V_E}
          v_lshrrev_b32 v{vt}, 1, v0
          v_and_b32 v{vt2}, 31, v0
          v_cmp_eq_u32 vcc, 0, v{vt2}
          v_mov_b32 v{vt2}, {OOB}
          v_cndmask_b32 v{vt}, v{vt2}, v{vt}, vcc
          buffer_store_dwordx4 {vr(A,4)}, v{vt}, {R(R_WS)}, s{S_T} offen sc1""")
    SEL = AKV + 32; CF = AKV + 48; CD = CSK; CA = CSK + 4
    P(f"v_and_b32 v{vt}, 3, v0")
    for i in range(3):
        P(f"""s_mul_i32 s3, s{S_W}, 3
              s_add_u32 s3, s3, {i}
              s_and_b32 s{S_A}, s3, 3
              s_lshl_b32 s{S_A}, s{S_A}, 5
              s_lshr_b32 s3, s3, 2
              s_lshl_b32 s{S_B}, s3, 11
              s_add_u32 s{S_B}, s{S_B}, {L_KV - 2048}
              s_cmp_eq_u32 s3, 0
              s_cselect_b32 s{S_B}, {L_QE}, s{S_B}
              v_xor_b32 v{CA+2*i}, s{S_A}, v{vRB}
              v_add_u32 v{CA+2*i}, s{S_B}, v{CA+2*i}
              v_add_u32 v{CA+2*i+1}, {2*PW}, v{CA+2*i}
              v_cmp_eq_u32 vcc, {i}, v{vt}
              v_cndmask_b32 v{SEL+4*i}, 0, v{ONE}, vcc""")
        for r in range(1, 4): P(f"v_mov_b32 v{SEL+4*i+r}, v{SEL+4*i}")
    P(f"""s_lshl_b32 s{S_A}, s{S_CBA}, 2
          s_add_u32 s{S_A}, s{S_A}, s{S_W}
          s_lshl_b32 s{S_A}, s{S_A}, 12
          s_add_u32 s{S_A}, s{S_A}, {WS_CS1}
          s_lshl_b32 s{S_B}, s{S_RBA}, 8
          s_add_u32 s{S_B}, s{S_B}, s{S_A}
          v_cmp_gt_u32 vcc, 16, v0
          v_cndmask_b32 v{vCS}, v{vt2}, v{V_X}, vcc
          s_lshl_b32 s{S_T}, s{S_R32A}, 9
          s_add_u32 s{S_T}, s{S_T}, {WS_ST1}""")
    stamp(P, 'pre0')
    P.wait(tag='x0')
    for l in xread(0): P(l)
    P.wait(tag='q0'); P("s_barrier")
    stamp(P, 'bar0')
    for i in range(3):
        for kk in range(2):
            for hf in range(2): P(f"ds_read_b64_tr_b16 {vr(CF+(i*2+kk)*4+hf*2,2)}, v{CA+2*i+kk} offset:{hf*512}")
    for i in range(6): P(mf16(CD, vr(SEL + 4 * (i >> 1), 4), vr(CF + 4 * i, 4), '0' if i == 0 else None))
    steps = []
    for s in range(16):
        for nb in range(8): steps.append((s, AKV + nb * 8, nb < 4, nb & 3, kvslot(s) + (nb >> 2) * 2048))
    for t in range(16):
        for q in range(4): steps.append((t, AQ + q * 8, True, q, qloc(t)))
    for i in range(3):
        for l in trreads(i, steps[i][3], steps[i][4]): P(l)
    P(f"v_mov_b32 v{CD+3}, v{V_E}")
    P(f"buffer_store_dwordx4 {vr(CD,4)}, v{vCS}, {R(R_WS)}, s{S_B} offen sc1")
    S = Sched(P, 'p1')
    for i, (s, acc, sw, q, off) in enumerate(steps):
        for mb in range(2):
            for kk in range(2):
                x = ar(s * 16 + (kk * 2 + mb) * 4, 4); w = vr(WR + (i & 3) * 8 + kk * 4, 4)
                c = '0' if s == 0 and kk == 0 else None
                S.add(mf16(acc + mb * 4, w, x, c) if sw else mf16(acc + mb * 4, x, w, c))
        if i + 3 < len(steps):
            for k, l in enumerate(trreads((i + 3) & 3, steps[i + 3][3], steps[i + 3][4])): S.put(4 * i + k, l)
    bar = {8 * s - 4: f'w{s} x{s}' for s in range(1, 16)}
    bar.update({124: 'q6', 128 + 28 - 4: 'q14', 128 + 60 - 4: 'q15'})
    for i in range(len(steps) - 1):
        regs = [vr(WR + ((i + 1) & 3) * 8, 8)]
        if i + 1 < 128 and (i + 1) % 8 == 0: regs.append(ar(steps[i + 1][0] * 16, 16))
        if i in bar: S.tail(4 * i + 3, W(regs, tag=bar[i], lg0=(i == K.csbar)), "s_barrier")
        else: S.tail(4 * i + 3, W(regs))
    for s in range(16):
        b = 32 * s
        if 2 <= s <= 12:
            S.put(b - 2, m0(kvslot(s + 3)))
            for k, it in enumerate(kvdma(s + 3)): S.put(b + 4 * k, it)
        if s >= 13:
            for e in range(2):
                t = 3 + 4 * (s - 13) + e
                S.put(b + 8 * e - 2, m0(qloc(t)))
                for k, it in enumerate(qdma(t)): S.put(b + 8 * e + 4 * k, it)
        if s < 12:
            S.put(b + 9, xadv()[0]); S.put(b + 10, xadv()[1]); S.put(b + 14, m0(L_XR + (s & 3) * 4096))
            for k, it in enumerate(xdma(s + 4)): S.put(b + 16 + 4 * k, it)
        else:
            for e in range(2):
                t = 1 + 4 * (s - 12) + e
                S.put(b + 16 + 8 * e - 2, m0(qloc(t)))
                for k, it in enumerate(qdma(t)): S.put(b + 16 + 8 * e + 4 * k, it)
        if s < 15:
            for g, l in zip(((21, 25, 26, 29), (21, 22, 25, 26), (20, 21, 22, 23))[K.xr], xread(s + 1)): S.put(b + g, l)
    gl = [f"buffer_load_dwordx4 {vr(GT+4*i,4)}, v{V_X}, {R(R_WS)}, s{S_A} offen offset:{i*1024} sc1" for i in range(4)]
    gl.append(f"buffer_load_dwordx4 {vr(GT+16,4)}, v{vST}, {R(R_WS)}, s{S_T} offen sc1")
    chk = [f"v_bitop3_b32 v{vt}, v{GT+3}, v{V_E}, v{GT+7} bitop3:0x7e"] + [f"v_bitop3_b32 v{vt}, v{GT+r}, v{V_E}, v{vt} bitop3:0xbe" for r in (11, 15, 18)] + [f"v_cmp_ne_u32 vcc, 0, v{vt}"]
    S.stream(gl, 32 * GL, 32 * GL + 20)
    e = S.stream(chk, 32 * (GL + 2) + 20, 32 * (GL + 3) + 16, even=False)
    red = [retry(K, 'RT_G1', gl, chk)]
    red += [f"ds_write_b32 v{vSW}, v{GT+16}", f"ds_write_b32 v{vSW}, v{GT+17} offset:128"]
    for a, b_ in ((0, 4), (8, 12), (0, 8)): red += [f"v_add_f32 v{GT+a+r}, v{GT+a+r}, v{GT+b_+r}" for r in range(3)]
    for op in (16, 32): red += interleave(*[xsum(GT + r, GT + 4 + r, op) for r in range(3)])
    red += [f"ds_write_b32 v{vCW}, v{GT+r} offset:{L_CS+r*64}" for r in range(3)]
    e = S.stream(red, e + 3, 4 * K.csbar + 2)
    rd = [f"ds_read2_b32 {vr(NM,2)}, v{vTAU} offset0:0 offset1:4", f"ds_read2_b32 {vr(RS,2)}, v{vTAU} offset0:32 offset1:36"]
    rd += [f"ds_read_b128 {vr(CSK+4*nb,4)}, v{vG16} offset:{L_CS+(4+nb)*64}" for nb in range(4)]
    rd += [f"ds_read_b128 {vr(NMV+4*i,4)}, v{vG32} offset:{(i>>1)*128+(i&1)*16}" for i in range(4)]
    rd += [f"ds_read_b32 v{CSV+nb}, v{vJ4} offset:{L_CS+(8+nb)*64}" for nb in range(4)]
    rd += [f"s_lshl_b32 s{S_A}, s{S_CBA}, 19", f"s_lshl_b32 s3, s{S_R32A}, 12", f"s_add_u32 s{S_A}, s{S_A}, s3", f"s_add_u32 s{S_A}, s{S_A}, {WS_KV}", f"s_add_u32 s{S_B}, s{S_A}, 262144"]
    S.stream(rd, 4 * K.csbar + 4, 504)
    b = 512
    S.put(b + 1, m0(qloc(15)))
    for k, it in enumerate(qdma(15)): S.put(b + 2 + 2 * k, it)
    fl = lines(f"""s_lshl_b32 s{S_T}, s{S_CBA}, 12
          s_lshl_b32 s3, s{S_R32A}, 2
          s_add_u32 s3, s3, {WS_F1}
          s_add_u32 s{S_T}, s{S_T}, s3""")
    S.stream(fl, b + 8, b + 30)
    S.put(b + K.f1send, W(tag='kvst')); S.put(b + K.f1send + 1, f"buffer_atomic_swap v{V_E}, v{vFS}, {R(R_WS)}, s{S_T} offen sc1")
    z = [f"ds_read_b128 {vr(CSQ+4*nb,4)}, v{vG16} offset:{L_CS+nb*64}" for nb in range(4)]
    z += [f"v_mul_f32 v{RSQ+mb}, {f32(math.log2(math.e)/math.sqrt(32))}, v{RS+mb}" for mb in range(2)]
    z += [f"v_mov_b32 v{r}, 0" for r in list(range(AKV, AKV + 64)) + list(range(CSK, CSK + 16))]
    z += lines(f"""s_lshl_b32 s{S_A}, s{S_CBA}, 4
          s_add_u32 s{S_A}, s{S_A}, s{S_RBA}
          s_lshl_b32 s{S_A}, s{S_A}, 1
          s_lshr_b32 s3, s{S_W}, 1
          s_add_u32 s{S_A}, s{S_A}, s3
          s_lshl_b32 s{S_A}, s{S_A}, 7
          s_add_u32 s{S_A}, s{S_A}, {WS_F1}
          s_lshl_b32 s{S_XO}, s{S_CBA}, 1
          s_and_b32 s{S_B}, s{S_W}, 1
          s_add_u32 s{S_XO}, s{S_XO}, s{S_B}
          s_lshl_b32 s{S_XO}, s{S_XO}, 1
          s_add_u32 s{S_XO}, s{S_XO}, s3
          s_lshl_b32 s{S_XO}, s{S_XO}, 17
          s_add_u32 s{S_XO}, s{S_XO}, {WS_KV}""")
    z += K.passb_extra()
    S.stream(z, b + 32, b + K.f1poll - 2)
    pl = [f"v_mov_b32 v{vPOLL}, 0", f"buffer_atomic_or v{vPOLL}, v{vFP}, {R(R_WS)}, s{S_A} offen sc0 sc1"]
    ck = [f"v_cmp_ne_u32 vcc, v{vPOLL}, v{V_E}", "s_mov_b32 vcc_hi, 0"]
    S.stream(pl, b + K.f1poll - 2, b + K.f1poll + 4, even=False)
    e = S.stream([W([vr(vPOLL)])] + ck, b + K.f1chk, b + K.f1chk + 5, even=False)
    e = S.stream([retry(K, 'RT_F1', pl, ck)], e + 2, e + 4, even=False)
    S.stream(K.kv_first(), e + 1)
    if K.xp:
        for x in S.s[:512]:
            def keep(it):
                t = itext(it)
                if K.xp & 1 and 'lds' in t and f'{R(R_X)}' in t: return False
                if K.xp & 2 and 'lds' in t and f'{R(R_WQKV)}' in t: return False
                if K.xp & 4 and t.startswith('ds_read_b128 a'): return False
                if K.xp & 8 and t.startswith('ds_read_b64_tr'): return False
                if K.xp & 16 and t.startswith('s_barrier'): return False
                return True
            x['post'] = [i for i in x['post'] if keep(i)]; x['tail'] = [i for i in x['tail'] if keep(i)]
    S.emit(0, 512)
    stamp(P, 'pa1')
    def pack(a0, a1): return [f"v_cvt_pk_bf16_f32 v{a0}, v{a0}, v{a0+1}", f"v_cvt_pk_bf16_f32 v{a0+1}, v{a0+2}, v{a0+3}",
                              f"v_cvt_pk_bf16_f32 v{a0+2}, v{a1}, v{a1+1}", f"v_cvt_pk_bf16_f32 v{a0+3}, v{a1+2}, v{a1+3}"]
    def swapped(acc, cs, rs, hh, mb):
        aa = [(acc + (2 * hh + e) * 8 + mb * 4 + 2 * i, cs + (2 * hh + e) * 4 + 2 * i) for e in range(2) for i in range(2)]
        for a, c in aa: P(pk('fma', a, bc(NM + mb), pr(c), pr(a)))
        for a, c in aa: P(pk('mul', a, pr(a), bc(rs + mb)))
        for l in pack(aa[0][0], aa[2][0]): P(l)
        return aa[0][0]
    for hh in range(2):
        for mb in range(2):
            t = swapped(AKV, CSK, RS, hh, mb)
            P(f"buffer_store_dwordx4 {vr(t,4)}, v{V_X}, {R(R_WS)}, s{S_B if hh else S_A} offen offset:{mb*1024} sc1", tag='kvst')
    for nb in range(4):
        a = AKV + 32 + nb * 8
        for i in range(4): P(pk('fma', a + 2 * i, pr(NMV + 2 * i), bc(CSV + nb), pr(a + 2 * i)))
        for i in range(4): P(pk('mul', a + 2 * i, pr(a + 2 * i), pr(RSV + 2 * i)))
        for l in pack(a, a + 4): P(l)
        P(f"buffer_store_dwordx4 {vr(a,4)}, v{V_X}, {R(R_WS)}, s{S_B if nb >> 1 else S_A} offen offset:{2048+(nb&1)*1024} sc1", tag='kvst')
    S.emit(512)
    stamp(P, 'pb1')
    P(f"v_add_u32 v{vt}, s{S_WB}, v{V_X}")
    if DBG: P(f"s_lshl_b32 s{S_A}, s{S_CBA}, 18\n s_lshl_b32 s3, s{S_R32A}, 11\n s_add_u32 s{S_A}, s{S_A}, s3\n s_add_u32 s{S_A}, s{S_A}, {WS_DQ}\n s_add_u32 s{S_B}, s{S_A}, 131072")
    for hh in range(2):
        for mb in range(2):
            t = swapped(AQ, CSQ, RSQ, hh, mb)
            P(f"ds_write_b128 v{vt}, {vr(t,4)} offset:{L_QX+hh*2048+mb*1024}")
            if DBG: P(f"buffer_store_dwordx4 {vr(t,4)}, v{V_X}, {R(R_WS)}, s{S_B if hh else S_A} offen offset:{mb*1024}")
    P.wait(lg0=True); P("s_barrier")
```

```python
from p1 import *

SB, OB, LB = 176, 64, 160
aQ, aKV, aSP, aIN, aOUT = 0, 32, 160, 192, 224
SEL, IDX, ONES, CM, XR = 32, 36, 40, 44, 48
CD = 128
vFC, vL4, vEW, vER, vXO, vF2, vVO, vVW = 6, 7, 8, 9, 10, 11, 12, 13
L_SC = 30720
L_WOUT = 26624
S_KB, S_RHO, S_PASS = 51, 52, 53
S0, S1, S2, S3, S4, S5, S6 = 54, 55, 56, 57, 58, 59, 60
S_O, S_WO, S_LINE = 61, 62, 63
S_XB = 64

def attn_addr(K):
    P = K.P
    P(f"""v_lshrrev_b32 v{vt}, 5, v0
          v_lshlrev_b32 v{vt3}, 8, v{vt}
          v_bfe_u32 v{vt}, v0, 2, 1
          v_lshl_add_u32 v{vK}, v{vt}, 10, v{vt3}
          v_lshl_add_u32 v{vV}, v{vt}, 7, v{vt3}
          v_bfe_u32 v{vt}, v0, 3, 2
          v_lshl_add_u32 v{vK}, v{vt}, 6, v{vK}
          v_and_b32 v{vt}, 3, v0
          v_lshl_add_u32 v{vK}, v{vt}, 4, v{vK}
          v_lshl_add_u32 v{vV}, v{vt}, 4, v{vV}
          v_bfe_u32 v{vt}, v0, 3, 1
          v_lshl_add_u32 v{vV}, v{vt}, 6, v{vV}
          v_bfe_u32 v{vt}, v0, 4, 1
          v_lshl_add_u32 v{vV}, v{vt}, 10, v{vV}
          v_lshl_add_u32 v{vO}, v{vt}, 10, v{vt3}
          v_and_b32 v{vt}, 15, v0
          v_lshl_add_u32 v{vO}, v{vt}, 4, v{vO}
          v_min_u32 v{vt}, 13, v{vt}
          v_lshlrev_b32 v{vWIN}, 4, v{vt}
          v_lshrrev_b32 v{vt}, 4, v0
          v_mul_u32_u24 v{vt2}, 7168, v{vt}
          v_add_u32 v{vWIN}, v{vWIN}, v{vt2}
          v_lshlrev_b32 v{vSP}, 4, v{vt}
          v_bfe_u32 v{vt}, v0, 2, 2
          v_lshl_add_u32 v{vSP}, v{vt}, 15, v{vSP}
          v_and_b32 v{vt}, 3, v0
          v_lshl_add_u32 v{vSP}, v{vt}, 12, v{vSP}
          v_lshl_add_u32 v{vt}, v{vt}, 3, s{S_WB}
          v_lshrrev_b32 v{vt2}, 2, v0
          v_lshl_add_u32 v{vTIN}, v{vt2}, 8, v{vt}
          v_lshl_add_u32 v{vTOUT}, v{vt2}, 7, v{vt}
          v_lshrrev_b32 v{vt}, 3, v0
          v_and_b32 v{vt2}, 7, v0
          v_lshlrev_b32 v{vt2}, 4, v{vt2}
          v_lshl_add_u32 v{vWOUT}, v{vt}, 11, v{vt2}
          s_and_b32 s3, s{S_W}, 1
          s_lshl_b32 s3, s3, 11
          s_lshr_b32 s{S_A}, s{S_W}, 1
          s_mul_i32 s{S_A}, s{S_A}, {2*PW}
          s_add_u32 s{S_B}, s{S_A}, s3
          v_add_u32 v{vQ1}, s{S_B}, v{vO}
          s_sub_u32 s{S_B}, s3, s{S_A}
          s_add_u32 s{S_B}, s{S_B}, {2*PW}
          v_add_u32 v{vQ0}, s{S_B}, v{vO}
          v_mov_b32 v{vt2}, {OOB}
          v_cmp_gt_u32 vcc, 16, v0
          v_lshlrev_b32 v{vt}, 8, v0
          v_cndmask_b32 v{vFS}, v{vt2}, v{vt}, vcc
          v_cmp_gt_u32 vcc, 32, v0
          v_lshlrev_b32 v{vt}, 2, v0
          v_cndmask_b32 v{vFP}, v{vt2}, v{vt}, vcc
          s_lshl_b32 s{S_A}, s{S_CB}, 7""")
    swz_addr(P, vWO, 2048, S_A)

def passb_extra(K):
    return lines(f"""v_mov_b32 v{vt2}, {OOB}
          v_cmp_gt_u32 vcc, 16, v0
          v_lshlrev_b32 v{vt}, 13, v0
          v_cndmask_b32 v{vFC}, v{vt2}, v{vt}, vcc
          v_lshlrev_b32 v{vt}, 7, v0
          v_cmp_gt_u32 vcc, 32, v0
          v_lshlrev_b32 v{vL4}, 2, v0
          v_cndmask_b32 v{vF2}, v{vt2}, v{vt}, vcc
          v_add_u32 v{vEW}, s{S_WB}, v{V_X}
          s_xor_b32 s{S_D}, s{S_W}, 2
          s_mul_i32 s{S_D}, s{S_D}, {PW}
          v_add_u32 v{vER}, s{S_D}, v{V_X}
          v_and_b32 v{vt}, 3, v0
          v_lshl_add_u32 v{vVO}, v{vt}, 4, s{S_WB}
          s_lshl_b32 s{S_D}, s{S_W}, 4
          v_mul_u32_u24 v{vVW}, {PW}, v{vt}
          v_add_u32 v{vVW}, s{S_D}, v{vVW}
          v_lshlrev_b32 v{vXO}, 11, v{vt}
          v_bfe_u32 v{vt}, v0, 2, 2
          v_lshl_add_u32 v{vXO}, v{vt}, 14, v{vXO}
          v_bfe_u32 v{vt}, v0, 4, 1
          v_lshl_add_u32 v{vXO}, v{vt}, 5, v{vXO}
          v_lshrrev_b32 v{vt}, 5, v0
          v_lshl_add_u32 v{vXO}, v{vt}, 4, v{vXO}
          s_lshl_b32 s{S_RHO}, s{S_RB}, 1
          s_add_u32 s{S_RHO}, s{S_RHO}, s{S_CB}
          s_and_b32 s{S_RHO}, s{S_RHO}, 7
          s_mov_b32 s{S_PASS}, 0
          s_lshl_b32 s{S_LINE}, s{S_R32}, 4
          s_add_u32 s{S_LINE}, s{S_LINE}, s{S_CB}
          s_lshl_b32 s{S_LINE}, s{S_LINE}, 7
          s_lshl_b32 s{S_XB}, s{S_R32}, 16
          s_lshl_b32 s{S_D}, s{S_CB}, 7
          s_add_u32 s{S_XB}, s{S_XB}, s{S_D}""")

def kreg(kt, c): return ar(aKV + (kt & 7) * 16 + c * 4, 4)
def vreg(kt, u): return ar(aKV + (kt & 7) * 16 + 8 + u * 4, 4)
def kload(kt): return [f"buffer_load_dwordx4 {kreg(kt,c)}, v{vK}, {R(R_WS)}, s{S_XO} offen offset:{c*512} sc1" for c in range(2)]
def vload(kt): return [f"buffer_load_dwordx4 {vreg(kt,u)}, v{vV}, {R(R_WS)}, s{S_XO} offen offset:{2048+u*512} sc1" for u in range(2)]
KADV = f"s_add_u32 s{S_XO}, s{S_XO}, 4096"
NF = 4
def kv_first(K):
    r = [f"s_mov_b32 s{S_KB}, s{S_XO}"]
    for kt in range(NF): r += kload(kt) + vload(kt) + [KADV]
    return r
def qk(n, c): return mf32(SB + (n & 3) * 16, kreg(n >> 2, c), ar(aQ + ((n & 3) * 2 + c) * 4, 4), '0' if c == 0 else None)
def pv(n, u): return f"v_smfmac_f32_32x32x32_bf16 {vr(OB+(n&3)*16,16)}, {vreg(n>>2,u)}, {vr(SB+(n&3)*16+u*8,8)}, v{IDX}"
def sm(n, u): return f"v_smfmac_f32_16x16x64_bf16 {vr(LB+(n&3)*4,4)}, {vr(SEL,4)}, {vr(SB+(n&3)*16+u*8,8)}, v{IDX}"
def exw(t): return [f"ds_write_b128 v{vEW}, {vr(OB+t*16+q*4,4)} offset:{L_SC+(t*4+q)*1024}" for q in range(4)] + [f"ds_write_b32 v{vEW}, v{LB+t*4} offset:{L_SC+8192+t*4}"]
LP = CM
def exr(): return [f"ds_read_b64 {vr(LP,2)}, v{vER} offset:{L_SC+8192}"] + [f"ds_read_b128 {vr(SB+q*4,4)}, v{vER} offset:{L_SC+q*1024}" for q in range(8)]
def wodma(s, off):
    return [m0(off), G(*[T(f"buffer_load_dwordx4 v{vWO+rp}, {R(R_WO)}, s{S_WO} offen offset:{rp*1024} lds", f'wo{s}') for rp in range(2)]),
            f"s_add_u32 s{S_WO}, s{S_WO}, 131072", f"s_and_b32 s{S_WO}, s{S_WO}, 0x1fffff"]
def woloc(s): return s * 2048
def AT(n): return ('at', n)
def ST(regs, va, so, off, tag, w='x4'): return T(f"buffer_store_dword{w} {regs}, v{va}, {R(R_WS)}, s{so} offen offset:{off} sc1", tag)

def jobs(K):
    J = []
    J += [AT(K.t_in)] + lines(f"""s_lshr_b32 s{S0}, s{S_RB}, 1
          s_lshl_b32 s{S0}, s{S0}, 2
          s_add_u32 s{S0}, s{S0}, s{S_W}
          s_and_b32 s{S1}, s{S_RB}, 1
          s_mul_i32 s{S2}, s{S0}, {32*7168}
          s_mul_i32 s3, s{S1}, 3584
          s_add_u32 s{S2}, s{S2}, s3
          s_mul_i32 s3, s{S_CB}, 224
          s_add_u32 s{S2}, s{S2}, s3""")
    for p in range(4):
        if p % 2 == 0: J.append(m0(L_SC + p * 2048))
        if p: J.append(f"s_add_u32 s{S2}, s{S3}, {28672 + (3072 if p == 2 else -1024)}")
        J.append(f"s_add_u32 s{S3}, s{S2}, {28672-1024}")
        J.append(G(*[T(f"buffer_load_dwordx4 v{vWIN}, {R(R_WIN)}, s{S2+e} offen offset:{((2*p+e)&3)*1024} lds", 'win') for e in range(2)]))
    J += lines(f"""s_lshl_b32 s{S4}, s{S_R32}, 17
          s_lshl_b32 s3, s{S_CB}, 8
          s_add_u32 s{S2}, s{S4}, s3
          s_add_u32 s{S3}, s{S2}, 16384""")
    for kb in range(4):
        J.append(G(*[f"buffer_load_dwordx4 {ar(aSP+(kb*2+mb)*4,4)}, v{vSP}, {R(R_WSP)}, s{S2+mb} offen offset:{kb*64}" for mb in range(2)]))
    J += lines(f"""s_cmp_ge_u32 s{S_RB}, 14
          s_cselect_b32 s3, 2, 0
          s_sub_u32 s{S5}, s{S_RB}, s3
          s_lshl_b32 s{S5}, s{S5}, 2
          s_add_u32 s{S5}, s{S5}, s{S_W}
          s_mul_i32 s{S2}, s{S5}, 37
          s_lshr_b32 s{S2}, s{S2}, 8
          s_mul_i32 s3, s{S2}, 7
          s_sub_u32 s{S3}, s{S5}, s3
          s_mul_i32 s{S2}, s{S2}, 224
          s_lshl_b32 s{S6}, s{S3}, 5
          s_cmp_ge_u32 s{S3}, 3
          s_cselect_b32 s3, 16, 0
          s_add_u32 s{S6}, s{S6}, s3
          s_cmp_eq_u32 s{S3}, 6
          s_cselect_b32 s{S6}, 96, s{S6}
          s_cselect_b32 s3, {96*2048}, 0
          s_add_u32 s3, s3, 15360
          s_add_u32 s{S2}, s{S2}, s{S6}
          s_lshl_b32 s{S2}, s{S2}, 11
          s_lshl_b32 s{S6}, s{S_CB}, 7
          s_add_u32 s{S2}, s{S2}, s{S6}
          s_add_u32 s{S3}, s{S2}, 15360""")
    J.append(m0(L_WOUT))
    for p in range(2):
        if p: J += [f"s_add_u32 s{S2}, s{S3}, s3", f"s_add_u32 s{S3}, s{S2}, 15360"]
        J.append(G(*[T(f"buffer_load_dwordx4 v{vWOUT}, {R(R_WOUT)}, s{S2+e} offen offset:{(2*p+e)*1024} lds", 'wout') for e in range(2)]))
    J.append(f"s_add_u32 s{S2}, s{S_XB}, 8192")
    for mb in range(2):
        J.append(G(*[f"buffer_load_dwordx4 {vr(XR+(mb*2+p)*4,4)}, v{vXO}, {R(R_X)}, s{S2 if mb else S_XB} offen offset:{p*64}" for p in range(2)]))
    J2 = [AT(K.t_wo), f"s_lshl_b32 s{S_WO}, s{S_RHO}, 18"]
    for s in range(15): J2 += [AT(K.t_wo + (s * K.d_wo) // 2)] + wodma(s, woloc(s))
    J += [AT(K.t_out)] + lines(f"""s_lshl_b32 s3, s{S_CB}, 1
          s_add_u32 s3, s3, s{S1}
          s_lshl_b32 s3, s3, 5
          s_add_u32 s3, s3, s{S0}
          s_mul_i32 s{S2}, s3, 7168
          s_add_u32 s{S2}, s{S2}, {WS_WIN}
          s_add_u32 s{S3}, s{S2}, 4096""")
    J.append(W(tag='win'))
    rd = lambda nb: [f"ds_read_b64_tr_b16 {ar(aIN+nb*4+hf*2,2)}, v{vTIN} offset:{L_SC+hf*4096+nb*32}" for hf in range(2)]
    J += rd(0) + rd(1)
    for nb in range(7):
        if nb + 2 < 7: J += rd(nb + 2)
        J.append(G(W([ar(aIN + nb * 4, 4)]), ST(ar(aIN + nb * 4, 4), V_X, S2 + (nb >> 2), (nb & 3) * 1024, 'pt'), mf16(CD + nb * 4, vr(ONES, 4), ar(aIN + nb * 4, 4), '0')))
    J += lines(f"""s_lshl_b32 s3, s{S_CB}, 2
          s_add_u32 s3, s3, s{S_W}
          s_lshl_b32 s3, s3, 4
          s_add_u32 s3, s3, s{S_RB}
          s_lshl_b32 s3, s3, 9
          s_add_u32 s{S0}, s3, {WS_CSP}
          s_mul_i32 s{S2}, s{S_CB}, 56
          s_add_u32 s{S2}, s{S2}, s{S5}
          s_lshl_b32 s{S2}, s{S2}, 12
          s_add_u32 s{S2}, s{S2}, {WS_WOUT}""")
    J.append(G(*[f"v_mov_b32_dpp v{CD+(nb>>2)*16}, v{CD+nb*4} quad_perm:[0,1,2,3] row_mask:{hex(1<<(nb&3))} bank_mask:0xf" for nb in (1, 5, 2, 6, 3)]))
    rd = lambda nb: [f"ds_read_b64_tr_b16 {ar(aOUT+nb*4+hf*2,2)}, v{vTOUT} offset:{L_WOUT+hf*2048+nb*32}" for hf in range(2)]
    J += [W(tag='wout')] + rd(0) + [ST(vr(CD), vL4, S0, 0, 'pt', '')] + rd(1) + [ST(vr(CD + 16), vL4, S0, 256, 'pt', '')]
    for nb in range(4):
        if nb + 2 < 4: J += rd(nb + 2)
        J.append(G(W([ar(aOUT + nb * 4, 4)]), ST(ar(aOUT + nb * 4, 4), V_X, S2, nb * 1024, 'pt')))
    J += lines(f"""s_lshl_b32 s3, s{S_CB}, 13
          s_add_u32 s{S2}, s{S4}, s3
          s_add_u32 s{S2}, s{S2}, {WS_WSP}
          s_add_u32 s{S3}, s{S2}, 4096
          s_lshl_b32 s{S0}, s{S_W}, 11
          s_lshl_b32 s3, s{S_CB}, 7
          s_add_u32 s{S0}, s{S0}, s3
          s_lshl_b32 s3, s{S_RB}, 2
          s_add_u32 s{S0}, s{S0}, s3
          s_add_u32 s{S0}, s{S0}, {WS_FP}""")
    for i in range(8): J.append(ST(ar(aSP + i * 4, 4), V_X, S2 + (i >> 2), (i & 3) * 1024, 'sp'))
    J.append(G(W(tag='pt'), f"buffer_atomic_swap v{V_E}, v{vFC}, {R(R_WS)}, s{S0} offen sc1"))
    J += lines(f"""s_lshr_b32 s3, s{S_W}, 1
          s_lshl_b32 s{S4}, s{S_RBA}, 1
          s_add_u32 s{S4}, s{S4}, s3
          s_and_b32 s3, s{S_W}, 1
          s_lshl_b32 s{S5}, s{S_CBA}, 1
          s_add_u32 s{S5}, s{S5}, s3
          s_lshl_b32 s{S_O}, s{S4}, 17
          s_lshl_b32 s3, s{S5}, 11
          s_add_u32 s{S_O}, s{S_O}, s3
          s_add_u32 s{S_O}, s{S_O}, {WS_O}
          s_lshl_b32 s{S4}, s{S4}, 12
          s_lshl_b32 s3, s{S5}, 2
          s_add_u32 s{S4}, s{S4}, s3
          s_add_u32 s{S4}, s{S4}, {WS_F2}
          s_add_u32 s{S5}, s{S_O}, 65536
          s_add_u32 s{S0}, s{S_LINE}, {WS_FP}
          s_lshl_b32 s3, s{S_CB}, 2
          s_add_u32 s3, s3, s{S_W}
          s_lshl_b32 s3, s3, 13
          s_add_u32 s{S2}, s3, {WS_CSP}
          s_add_u32 s{S3}, s{S2}, 4096""")
    pl = [f"v_mov_b32 v{vPOLL}, 0", f"buffer_atomic_or v{vPOLL}, v{vFP}, {R(R_WS)}, s{S0} offen sc0 sc1"]
    ck = [f"v_cmp_ne_u32 vcc, v{vPOLL}, v{V_E}", "s_and_b64 vcc, vcc, 0xffff"]
    J += [AT(K.t_fp), G(*pl), AT(K.t_fp + 8), G(W([vr(vPOLL)]), ck[0]), ck[1], retry(K, 'RT_FP', pl, ck)]
    for p in range(4):
        J.append(G(*[f"buffer_load_dwordx4 {vr(CD+(2*p+e)*4,4)}, v{V_X}, {R(R_WS)}, s{S2+(p>>1)} offen offset:{((2*p+e)&3)*1024} sc1" for e in range(2)]))
    return J, J2

def phase2(K):
    P = K.P
    for t in range(4):
        for c in range(2): P(f"ds_read_b128 {ar(aQ+(t*2+c)*4,4)}, v{vQ0+(t>>1)} offset:{(t&1)*PW+L_QX+c*512}")
    P(f"""v_bfe_u32 v{vt}, v0, 2, 1
          v_mov_b32 v{ONES}, 0x3f803f80
          v_cmp_eq_u32 vcc, 0, v{vt}
          v_mov_b32 v{IDX}, 0xdddddddd
          v_mov_b32 v{ONES+1}, v{ONES}
          v_cndmask_b32 v{SEL}, 0, v{ONES}, vcc
          v_cndmask_b32 v{SEL+2}, v{ONES}, 0, vcc
          v_mov_b32 v{ONES+2}, v{ONES}
          v_mov_b32 v{ONES+3}, v{ONES}
          v_mov_b32 v{SEL+1}, v{SEL}
          v_mov_b32 v{SEL+3}, v{SEL+2}""")
    for n in range(2):
        for c in range(2): P(qk(n, c))
    stamp(P, 'at0')
    JJ = jobs(K)
    if K.nojobs:
        JJ = ([x for x in JJ[0] if isinstance(x, str) and x.startswith('s_')], [])
        K.ool.pop()
    fixed = {}
    def fx(n, pos, *items): fixed.setdefault((n, pos), []).extend(items)
    for kt in range(NF, 8):
        n = kt - NF
        fx(n, 2, *kload(kt)); fx(n, 5, *vload(kt)); fx(n + 1, 0, KADV)
    for kt in range(8, 32 if K.nojobs < 2 else 8):
        n = 4 * (kt - 8)
        if kt == 8: fx(4, 2, *kload(kt))
        else: fx(n + 2, 5, *kload(kt))
        fx(n + 4, 5, *vload(kt)); fx(n + 5, 4, KADV)
    for kt in range(1, 32): fx(4 * kt - 3, 5, W([ar(aKV + (kt & 7) * 16, 16)]))
    fx(0, 4, W(lg0=True)); fx(5, 2, "s_barrier")
    for t in range(2):
        w = exw(t); fx(126 + t, 1, *w[:2]); fx(126 + t, 4, *w[2:4]); fx(126 + t, 5, w[4])
    issalu = lambda it: itext(it).startswith('s_') or (not isinstance(it, str) and it[0] == 'fn')
    last = 0
    for n in range(128):
        ms = [pv(n - 1, 0), qk(n + 2, 0), sm(n - 1, 0), pv(n - 1, 1), qk(n + 2, 1), sm(n - 1, 1)]
        e = 0
        stamp(P, f't{n}')
        for pos, ne in enumerate((3, 3, 2, 3, 3, 2)):
            if not ((n == 0 and pos % 3 != 1) or (n >= 126 and pos % 3 == 1)): P(ms[pos])
            f = fixed.get((n, pos), [])
            for it in f: emit(P, it)
            for J in JJ[::-1]:
                while J and not isinstance(J[0], str) and J[0][0] == 'at' and J[0][1] <= n: J.pop(0)
                if J and not f and (isinstance(J[0], str) or J[0][0] != 'at'):
                    if issalu(J[0]) or pos % 3 == 2:
                        it = J.pop(0); emit(P, it); last = n; f = [it]
                        if 'wout' in str(it) or 'swap' in str(it) or 'wo13' in str(it): print('   tile', n, str(it)[:70])
            for i in range(ne):
                r = SB + (n & 3) * 16 + e; e += 1
                P(f"v_exp_f32 v{r}, v{r}")
    assert not JJ[0] and not JJ[1]
    print('  attention jobs end at tile', last)
    stamp(P, 'at1')
    P.wait(lg0=True); P("s_barrier")
    for l in exr(): P(l)
    for l in (pv(127, 0), sm(127, 0), pv(127, 1), sm(127, 1)): P(l)
    P.label('AT_FIN')
    RC, CH = CM + 2, SB + 32
    for a in range(2):
        o = OB + (2 + a) * 16; r = SB + a * 16; l = LB + (2 + a) * 4
        P(f"v_add_f32 v{LP+a}, v{LP+a}, v{l}")
        for i in range(4): P(pk('add', o + 2 * i, pr(o + 2 * i), pr(r + 2 * i)))
        P(f"v_rcp_f32 v{RC+a}, v{LP+a}")
        for i in range(4, 8): P(pk('add', o + 2 * i, pr(o + 2 * i), pr(r + 2 * i)))
        for c in range(2):
            for i in range(4): P(pk('mul', o + c * 8 + 2 * i, pr(o + c * 8 + 2 * i), bc(RC + a)))
            for i in range(4): P(f"v_cvt_pk_bf16_f32 v{r+c*4+i}, v{o+c*8+2*i}, v{o+c*8+2*i+1}")
            emit(P, ST(vr(r + c * 4, 4), vO, S5 if a else S_O, c * 512, 'ost'))
    for a in range(2):
        for c in range(2): P(mf16(CH, vr(ONES, 4), vr(SB + a * 16 + c * 4, 4), '0' if a + c == 0 else None))
    P(f"""v_min_f32 v{vt}, v{LP}, v{LP+1}
          v_max_f32 v{vt2}, v{LP}, v{LP+1}
          v_cmp_nle_f32 vcc, {f32(2.0**-40)}, v{vt}
          s_mov_b64 s[{S_A}:{S_A+1}], vcc
          v_cmp_nge_f32 vcc, {f32(2.0**64)}, v{vt2}
          s_or_b64 s[{S_A}:{S_A+1}], s[{S_A}:{S_A+1}], vcc
          v_cmp_u_f32 vcc, v{LP}, v{LP+1}
          s_or_b64 s[{S_A}:{S_A+1}], s[{S_A}:{S_A+1}], vcc
          v_mov_b32 v{vt}, 0x207
          v_cmp_class_f32 vcc, v{CH}, v{vt}
          s_or_b64 s[{S_A}:{S_A+1}], s[{S_A}:{S_A+1}], vcc
          s_cselect_b32 s3, 1, 0
          v_mov_b32 v{vt}, s3
          ds_write_b32 v{vVW}, v{vt} offset:{L_SC+8192+8}""")
    P.wait(lg0=True, tag='wo14')
    P(f"""s_barrier
          ds_read_b32 v{vt}, v{vVO} offset:{L_SC+8192+8}
          v_cmp_lt_u32 vcc, s{S_PASS}, v{vt}""")
    P("s_cbranch_vccnz AT_FB")
    def fb():
        M = 24
        P.label('AT_FB')
        P(f"s_mov_b32 s{S_PASS}, 1\n s_mov_b32 s{S_XO}, s{S_KB}\n s_mov_b32 s{S6}, 0")
        for t in range(4): P(f"v_mov_b32 v{M+t}, 0xff800000")
        P.label('AT_FB1')
        for l in kload(0): P(l)
        P(KADV); P(f"s_add_u32 s{S6}, s{S6}, 1\n s_cmp_lt_u32 s{S6}, 32")
        for t in range(4):
            for c in range(2): P(qk(t, c))
        for t in range(4):
            for j in range(8): P(f"v_max3_f32 v{M+t}, v{M+t}, v{SB+t*16+2*j}, v{SB+t*16+2*j+1}")
        P("s_cbranch_scc1 AT_FB1", trips=2)
        for t in range(4): P(f"v_mov_b32 v{vt}, v{M+t}\n v_permlane32_swap_b32 v{vt}, v{M+t}\n v_max_f32 v{M+t}, v{vt}, v{M+t}")
        P(f"ds_write_b128 v{vEW}, {vr(M,4)} offset:{L_SC+9216}")
        P.wait(lg0=True); P("s_barrier")
        P(f"ds_read_b128 {vr(M+4,4)}, v{vER} offset:{L_SC+9216}")
        for r in list(range(OB, OB + 64)) + list(range(LB, LB + 16)): P(f"v_mov_b32 v{r}, 0")
        for t in range(4): P(f"v_max_f32 v{M+t}, v{M+t}, v{M+4+(t^2)}")
        P(f"s_mov_b32 s{S_XO}, s{S_KB}\n s_mov_b32 s{S6}, 0")
        P.label('AT_FB2')
        for l in kload(0) + vload(0): P(l)
        P(KADV); P(f"s_add_u32 s{S6}, s{S6}, 1\n s_cmp_lt_u32 s{S6}, 32")
        for t in range(4):
            for c in range(2): P(qk(t, c))
        for t in range(4):
            for j in range(16): P(f"v_sub_f32 v{SB+t*16+j}, v{SB+t*16+j}, v{M+t}")
            for j in range(16): P(f"v_exp_f32 v{SB+t*16+j}, v{SB+t*16+j}")
            for l in (pv(t, 0), sm(t, 0), pv(t, 1), sm(t, 1)): P(l)
        P("s_cbranch_scc1 AT_FB2", trips=2)
        for t in range(2):
            for l in exw(t): P(l)
        P.wait(lg0=True); P("s_barrier")
        for l in exr(): P(l)
        P("s_branch AT_FIN")
    K.ool.append(fb)
    stamp(P, 'vote')
```

```python
from p2 import *

L_CSP = 32768
L_CSF, L_K, L_Z = 0, 1024, 1536
L_RING, SLOT = 5120, 7168
def slot(T): return L_RING + ((T + 4) % 5) * SLOT
ACC3, HR = 64, 176
vX4 = 13
vLR = [V_X, 14, 15, 24]
vTH, vTW, vTZ, vTS, vTU, vTO, vT3 = 25, 26, 27, 28, 29, 30, 31
vFR, vF5, vHS, vZS, vJ, vG, vZW, vB = 240, 241, 242, 243, 244, 245, 249, 250
S_SA, S_SW = 50, 51
SA, SW = [50, 66], [51, 67]
S_M = 54
S7, S8, S9, S10, S11 = 53, 60, 61, 62, 65
def RL(s, v, lane): return f"v_readlane_b32 s{s}, v{v}, {lane}"
def wdma(T):
    tab, ln = (vTW, T) if T < 16 else ((vTZ, T - 16) if T < 32 else (vTU, T - 32))
    d = [T_(f"buffer_load_dwordx4 v{vX4 if p >= 4 else V_X}, {R(R_WS)}, s{SW[T&1]} offen offset:{(p&3)*1024} sc1 lds", f'ring{T}') for p in range(7)]
    return [RL(SW[T & 1], tab, ln), m0(slot(T))] + d[:4] + [m0(slot(T) + 4096)] + d[4:]
T_ = T
def poll(so): return [f"v_mov_b32 v{vPOLL}, 0", f"buffer_atomic_or v{vPOLL}, v{vFP}, {R(R_WS)}, s{so} offen sc0 sc1"]
def pchk(n): return [f"v_cmp_ne_u32 vcc, v{vPOLL}, v{V_E}", "s_mov_b32 vcc_hi, 0" if n == 32 else f"s_and_b64 vcc, vcc, {hex((1<<n)-1)}"]
def send(va, so): return f"buffer_atomic_swap v{V_E}, v{va}, {R(R_WS)}, s{so} offen sc1"

def tables_a():
    a, b = vt, vt2
    return f"""v_add_u32 v{vX4}, 4096, v{V_X}
          v_add_u32 v{a}, s{S_RHO}, v0
          v_and_b32 v{vt3}, 7, v{a}
          s_lshl_b32 s3, s{S_CB}, 1
          s_add_u32 s3, s3, 1
          s_lshl_b32 s3, s3, 5
          s_add_u32 s3, s3, s{S_W}
          v_lshl_add_u32 v{a}, v{vt3}, 2, s3
          v_bfe_u32 v{b}, v0, 3, 1
          v_lshlrev_b32 v{b}, 5, v{b}
          v_sub_u32 v{a}, v{a}, v{b}
          v_mul_u32_u24 v{vTW}, 7168, v{a}
          v_add_u32 v{vTW}, {WS_WIN}, v{vTW}"""
def tables_b():
    a, b = vt, vt2
    return f"""s_lshl_b32 s{S7}, s{S_R32}, 16
          s_add_u32 s3, s{S7}, {WS_H}
          v_lshl_add_u32 v{vTH}, v{vt3}, 13, s3
          s_lshl_b32 s{S8}, s{S_RHO}, 1
          v_add_u32 v{a}, s{S8}, v0
          v_and_b32 v{b}, 15, v{a}
          s_add_u32 s3, s{S7}, {WS_O}
          v_lshl_add_u32 v{vT3}, v{b}, 12, s3
          s_sub_u32 s3, s{S_RB}, s{S8}
          s_and_b32 s3, s3, 15
          v_cmp_ge_u32 vcc, s3, v0
          v_subbrev_co_u32 v{a}, vcc, 0, v{a}, vcc
          v_and_b32 v{a}, 15, v{a}
          v_writelane_b32 v{a}, s{S_RB}, 0
          s_lshl_b32 s3, s{S7}, 1
          s_add_u32 s3, s3, {WS_WSP}
          v_lshl_add_u32 v{vTS}, v{a}, 13, s3
          s_lshl_b32 s3, s{S_CB}, 6
          s_add_u32 s3, s3, s{S_W}
          v_lshl_add_u32 v{a}, v{a}, 2, s3
          v_mul_u32_u24 v{vTZ}, 7168, v{a}
          v_add_u32 v{vTZ}, {WS_Z2}, v{vTZ}
          s_and_b32 s3, s{S_CB}, 1
          s_lshl_b32 s3, s3, 1
          s_lshr_b32 s{S8}, s{S_W}, 1
          s_add_u32 s3, s3, s{S8}
          s_lshl2_add_u32 s3, s{S_RB}, s3
          s_and_b32 s{S9}, s{S_W}, 1
          s_lshl4_add_u32 s3, s3, s{S9}
          v_lshl_add_u32 v{a}, v{vt3}, 1, s3
          v_mul_u32_u24 v{vTU}, 7168, v{a}
          v_add_u32 v{vTU}, {WS_U}, v{vTU}
          s_and_b32 s3, s{S_CB}, 14
          s_add_u32 s3, s3, s{S8}
          s_mul_i32 s3, s3, {56*4096}
          s_lshl_b32 s{S9}, s{S9}, 11
          s_add_u32 s3, s3, s{S9}
          s_add_u32 s3, s3, {WS_WOUT}
          v_mul_u32_u24 v{vTO}, {7*4096}, v{vt3}
          v_add_u32 v{vTO}, s3, v{vTO}
          v_add_u32 v{vLR[1]}, {PW}, v{V_X}
          v_add_u32 v{vLR[2]}, {2*PW}, v{V_X}
          v_add_u32 v{vLR[3]}, {3*PW}, v{V_X}
          v_mov_b32 v{b}, {OOB}
          v_cmp_gt_u32 vcc, 16, v0
          v_lshlrev_b32 v{a}, 7, v0
          v_cndmask_b32 v{vFR}, v{b}, v{a}, vcc
          v_cmp_gt_u32 vcc, 8, v0
          v_lshlrev_b32 v{a}, 8, v0
          v_cndmask_b32 v{vF5}, v{b}, v{a}, vcc
          v_lshrrev_b32 v{vG}, 4, v0
          v_bfe_u32 v{a}, v0, 2, 2
          v_and_b32 v{vJ}, 15, v0
          v_cmp_eq_u32 vcc, v{a}, v{vG}
          v_lshlrev_b32 v{vHS}, 4, v{vJ}
          v_and_b32 v{vt3}, 3, v0
          v_cndmask_b32 v{vHS}, v{b}, v{vHS}, vcc
          v_lshl_add_u32 v{vB}, v{a}, 3, v{vt3}
          v_lshlrev_b32 v{vB}, 1, v{vB}
          v_lshl_add_u32 v{vt3}, v{vG}, 2, v{vt3}
          v_and_b32 v{a}, 8, v0
          v_lshl_add_u32 v{vt3}, v{a}, 1, v{vt3}
          v_and_b32 v{a}, 4, v0
          v_cmp_eq_u32 vcc, 0, v{a}
          v_lshlrev_b32 v{vt3}, 4, v{vt3}
          v_lshl_add_u32 v{vJ}, v{vJ}, 2, s{S_WB}
          v_cndmask_b32 v{vZS}, v{b}, v{vt3}, vcc
          v_lshl_add_u32 v{vG}, v{vG}, 4, s{S_WB}
          v_and_b32 v{a}, 31, v0
          v_lshl_add_u32 v{vZW}, v{a}, 2, s{S_WB}
          s_mov_b32 s{S_M}, 0x22222222
          s_mov_b32 s{S_M+1}, 0x22222222
          s_mov_b32 s{S_M+2}, 0x44444444
          s_mov_b32 s{S_M+3}, 0x44444444
          s_mov_b32 s{S_M+4}, 0x88888888
          s_mov_b32 s{S_M+5}, 0x88888888"""

def unpack(acc, x):
    r = []
    for i in range(4): r += [f"v_lshlrev_b32 v{acc(i)}, 16, v{x+i}", f"v_and_b32 v{acc(i)+1}, 0xffff0000, v{x+i}"]
    return r
def oload(n, so): return f"buffer_load_dwordx4 {ar(n*4,4)}, v{V_X}, {R(R_WS)}, s{so} offen offset:{(n&3)*1024} sc1"

def phase3(K):
    P = K.P
    for it in wodma(15, L_SC)[:2]: emit(P, it)
    A3 = lambda nb, mb: ACC3 + nb * 8 + mb * 4
    for q in range(4):
        for r in range(2): P(f"v_permlane16_swap_b32 v{XR+q*4+r}, v{XR+q*4+r+2}")
    for i in (16, 8, 4):
        for r in range(0, i, 2): P(pk('add', CD + r, pr(CD + r), pr(CD + i + r)))
    for mb in range(2):
        for p in range(2):
            for l in unpack(lambda i: A3(2 * p + (i >> 1), mb) + (i & 1) * 2, XR + (mb * 2 + p) * 4): P(l)
    P(f"ds_write_b128 v{vEW}, {vr(CD,4)} offset:{L_CSP}")
    P(tables_a())
    P.wait(tag='ost'); P(send(vF2, S4))
    for it in wdma(0): emit(P, it)
    P(tables_b())
    steps = [(s, q) for s in range(16) for q in range(4)]
    for i in range(3):
        for l in trreads(i, steps[i][1], woloc(steps[i][0])): P(l)
    P(f"v_mov_b32 v{HR+16}, 0x3f803f80")
    for r in range(1, 4): P(f"v_mov_b32 v{HR+16+r}, v{HR+16}")
    SO = [S_SA, S7, S8, S9]
    for s in range(4): P(RL(SO[s], vT3, s))
    P(f"s_add_u32 s{S10}, s{S_LINE}, {WS_F2}")
    for it in poll(S10) + pchk(32) + [retry(K, 'RT_F2', poll(S10), pchk(32))]: emit(P, it)
    stamp(P, 'f2')
    N0 = K.n3
    for n in range(N0): P(oload(n, SO[n >> 2]))
    S = Sched(P, 'p3')
    for i, (s, q) in enumerate(steps):
        for mb in range(2):
            for kk in range(2):
                S.add(mf16(A3(q, mb), vr(WR + (i & 3) * 8 + kk * 4, 4), ar(s * 16 + (kk * 2 + mb) * 4, 4)))
        if i + 3 < 64:
            for k, l in enumerate(trreads((i + 3) & 3, steps[i + 3][1], woloc(steps[i + 3][0]))): S.put(4 * i + (k & 2), l)
        n = N0 + i
        if n < 64:
            S.put(4 * i + 1, oload(n, SO[(n >> 2) & 3]))
            if (n & 3) == 3 and (n >> 2) + 4 < 16: S.put(4 * i + 3, RL(SO[(n >> 2) & 3], vT3, (n >> 2) + 4))
    for k in range(N0 >> 2):
        if k + 4 < 16: S.put(4 * k + 3, RL(SO[k & 3], vT3, k + 4))
    BI = 51
    for i in range(63):
        regs = [vr(WR + ((i + 1) & 3) * 8, 8)]
        if (i + 1) % 4 == 0: regs.append(ar(steps[i + 1][0] * 16, 16))
        if i == BI: S.tail(4 * i + 3, W(regs, tag='wo15'), "s_barrier")
        else: S.tail(4 * i + 3, W(regs))
    w1 = wdma(1)
    i0 = max(64 - N0, BI + 1)
    S.put(4 * i0 - 5, w1[0]); S.put(4 * i0 - 9, w1[1])
    for k, it in enumerate(w1[2:6] + w1[7:]): S.put(4 * (i0 + k) + 1, it)
    S.put(4 * (i0 + 3) + 3, w1[6])
    for k in range(4): S.tail(4 * (BI + 1 + k) + 3, f"ds_read_b128 {vr(CD+4*k,4)}, v{vLR[k]} offset:{L_CSP}")
    sc = lines(f"""s_lshl_b32 s{S7}, s{S_R32}, 16
          s_lshl_b32 s3, s{S_CB}, 12
          s_add_u32 s{S7}, s{S7}, s3
          s_add_u32 s{S7}, s{S7}, {WS_H}
          s_lshl_b32 s{S8}, s{S_LINE}, 1
          s_add_u32 s{S8}, s{S8}, {WS_HST}
          s_lshl_b32 s{S9}, s{S_R32}, 11
          s_lshl2_add_u32 s{S9}, s{S_CB}, s{S9}
          s_add_u32 s{S9}, s{S9}, {WS_F3}
          s_add_u32 s{S10}, s{S_LINE}, {WS_F3}""")
    S.stream(sc, 4 * (64 - N0) + 2, 248)
    def cvt(mb, p): return [f"v_cvt_pk_bf16_f32 v{HR+(mb*2+p)*4+i}, v{A3(2*p+(i>>1),mb)+(i&1)*2}, v{A3(2*p+(i>>1),mb)+(i&1)*2+1}" for i in range(4)]
    def hst(mb, p): return ST(vr(HR + (mb * 2 + p) * 4, 4), V_X, S7, p * 2048 + mb * 1024, 'hst')
    c = cvt(0, 0) + cvt(1, 0)
    for k in range(4): S.put(249 + k + (k >= 2), *c[2 * k:2 * k + 2])
    S.put(254, hst(0, 0)); S.put(255, hst(1, 0))
    P.wait([ar(0, 16), vr(WR, 8)])
    S.emit()
    stamp(P, 'p3e')
    SS = HR + 20
    def stat(mb, p):
        h = vr(HR + (mb * 2 + p) * 4, 4)
        return [mf16(SS + mb * 8, vr(HR + 16, 4), h, None if p else '0'), mf16(SS + mb * 8 + 4, h, h, None if p else '0')]
    for l in stat(0, 0): P(l)
    for l in cvt(0, 1): P(l)
    emit(P, hst(0, 1))
    for l in stat(1, 0): P(l)
    for l in cvt(1, 1): P(l)
    emit(P, hst(1, 1))
    for l in stat(0, 1) + stat(1, 1): P(l)
    P("s_barrier")
    w2 = wdma(2)
    for it in w2[:2]: emit(P, it)
    for i in (8, 4):
        for r in range(0, i, 2): P(pk('add', CD + r, pr(CD + r), pr(CD + i + r)))
    for mb in range(2):
        q = SS + mb * 8 + 4
        P(f"""v_cndmask_b32 v{q}, v{q}, v{q+1}, s[{S_M}:{S_M+1}]
              v_cndmask_b32 v{q+2}, v{q+2}, v{q+3}, s[{S_M+4}:{S_M+5}]""")
    P(f"v_mov_b32 v{SS+2}, v{SS+8}")
    P(f"s_or_b64 vcc, s[{S_M+2}:{S_M+3}], s[{S_M+4}:{S_M+5}]")
    for mb in range(2):
        q = SS + mb * 8 + 4
        P(f"v_cndmask_b32 v{SS+1+2*mb}, v{q}, v{q+2}, vcc")
    emit(P, ST(vr(SS, 4), vHS, S8, 0, 'hst'))
    for it in w2[2:]: emit(P, it)
    P(f"ds_write_b128 v{vEW}, {vr(CD,4)} offset:{L_CSF}")
    P.wait(tag='hst sp'); P(send(vFR, S9))
```

```python
from p3 import *

C1 = 2 * math.sqrt(2 / math.pi) * math.log2(math.e)
C2 = C1 * 0.044715
A2, A1 = 64, 120
RC, CS2, TT, BQ, GZ, SQ, KC = 120, 152, 176, 184, 192, 224, 16
ZC, CQ, HQ, A6 = SQ, BQ, 176, 64
vU1, vU3 = 16, 17
def a2(nb, mb): return A2 + nb * 8 + mb * 4
def a1(nb, mb): return A1 + nb * 8 + mb * 4
def a6(f, nb): return A6 + (f * 2 + nb) * 4
def wf(i, k): return WR + (i & 1) * 16 + k * 4
def af(T, kb, mb): return ar((T & 7) * 32 + (kb * 2 + mb) * 4, 4)
def oloc(n):
    if n >= 96: n -= 96
    if n < 12: return vr(GZ + 4 * n, 4)
    if n < 76: return ar(4 * (n - 12), 4)
    return vr(96 + 4 * (n - 76), 4)
def pack(a0, b0): return [f"v_cvt_pk_bf16_f32 v{a0}, v{a0}, v{a0+1}", f"v_cvt_pk_bf16_f32 v{a0+1}, v{a0+2}, v{a0+3}",
                          f"v_cvt_pk_bf16_f32 v{a0+2}, v{b0}, v{b0+1}", f"v_cvt_pk_bf16_f32 v{a0+3}, v{b0+2}, v{b0+3}"]
def LD(regs, p, so, tag=None): return T(f"buffer_load_dwordx4 {regs}, v{vX4 if p >= 4 else V_X}, {R(R_WS)}, s{so} offen offset:{(p&3)*1024} sc1", tag)
def ST7(reg, p, so, tag): return ST(vr(reg, 4), vX4 if p >= 4 else V_X, so, (p & 3) * 1024, tag)
def isvm(it): return itext(it).startswith('buffer_') or (not isinstance(it, str) and it[0] == 'grp' and any(isvm(x) for x in it[1]))

class Sch(Sched):
    hold = True
    def fits(self, i, it, extra):
        x = self.s[i]
        if isvm(it): return x.get('vm', False) and x['load'] == 0
        if x['cap'] > 2: return itext(it).startswith(('s_', 'v_readlane'))
        if x.get('vm') and (self.hold or x['load']): return False
        return super().fits(i, it, extra)
    def back(self, it, lo, hi):
        for extra in range(6):
            for i in range(hi, lo - 1, -1):
                if self.fits(i, it, extra): self.put(i, it); return i
        raise ValueError('no room ' + itext(it))
    def dag(self, ops, start, end):
        pos = [None] * len(ops); tw = sum(weight(o[0]) for o in ops); acc = 0; first = 0
        for i in range(start, end):
            while first < len(ops) and pos[first] is not None: first += 1
            k = first
            while k < min(len(ops), first + 80) and acc * (end - start) * 0.93 <= (i - start + 1) * tw:
                it, deps = ops[k]
                if pos[k] is None and all(pos[d] is not None and pos[d] < i for d in deps) and self.fits(i, it, 0):
                    self.put(i, it); pos[k] = i; acc += weight(it)
                k += 1
        assert all(p is not None for p in pos), 'dag does not fit'
        return max(pos)

def frag_reads(i):
    T_, q = divmod(i, 7)
    if T_ < 32: return [f"ds_read_b128 {vr(wf(i,k),4)}, v{vLR[k]} offset:{slot(T_)+q*1024}" for k in range(4)]
    if q < 6: return [f"ds_read_b128 {vr(wf(i,f),4)}, v{vLR[(f&2)+q//3]} offset:{slot(T_)+((q%3)*2+(f&1))*1024}" for f in range(4)]
    o = (slot(T_) + 6144) // 512
    return [f"ds_read2st64_b64 {vr(wf(i,f),4)}, v{(vLR[0], vU1, vLR[2], vU3)[f]} offset0:{o} offset1:{o+PW//512}" for f in range(4)]

def phase45(K):
    P = K.P
    NT = 40 if UPTO >= 6 else 32
    for T_ in (3, 4):
        for it in wdma(T_): emit(P, it)
    P(f"""{RL(SA[0], vTH, 0)}
          {RL(SA[1], vTH, 1)}
          s_lshl_b32 s{S7}, s{S_R32}, 12
          s_add_u32 s{S7}, s{S7}, {WS_HST}
          s_lshl_b32 s{S8}, s{S_R32}, 6""")
    for mb in range(2): P(f"buffer_load_ushort v{BQ+4*mb}, v{vB}, {R(R_BSP)}, s{S8} offen offset:{mb*8}")
    P.wait(tag='ring0'); P("s_barrier")
    for i in range(2):
        for l in frag_reads(i): P(l)
    for it in poll(S10) + pchk(16) + [retry(K, 'RT_F3', poll(S10), pchk(16))]: emit(P, it)
    stamp(P, 'f3')
    S = Sch(P, 'p456'); at = {}; mark = {}
    def mm(i):
        T_, q = divmod(i, 7); r = []
        if T_ >= 32:
            o = [(f, nb) for f in range(4) for nb in range(2)] if i == 279 else [(f, nb) for nb in range(2) for f in range(4)]
            return [mf16(a6(f, nb), oloc((T_ - 32) * 14 + q * 2 + nb), vr(wf(i, f), 4)) for f, nb in o]
        for mb in range(2):
            for kb in range(4):
                w = vr(wf(i, kb), 4); x = af(T_, kb, mb); first = kb == 0 and T_ in (0, 8, 16)
                if T_ < 8: r.append(mf16(a2(q, mb), x, w, '0' if first else None))
                elif T_ < 16: r.append(mf16(a1(q, mb), w, x, '0' if first else None))
                else: r.append(mf16(a2(q, mb), w, x, vr(BQ + 4 * mb, 4) if first else None))
        return r
    def gelu_window():
        mark['g0'] = len(S.s)
        for nb in range(7):
            for mb in range(2):
                a = a2(nb, mb); t = TT + mb * 4; c = lambda k, i: pr(RC + (k * 2 + mb) * 4 + 2 * i); A = lambda i: pr(a + 2 * i); t_ = lambda i: pr(t + 2 * i)
                x = [pk('mul', t + 2 * i, A(i), A(i)) for i in (0, 1)] + [pk('fma', t + 2 * i, t_(i), c(3, i), c(2, i)) for i in (0, 1)]
                x += [pk('mul', t + 2 * i, t_(i), A(i)) for i in (0, 1)] + [f"v_exp_f32 v{t+i}, v{t+i}" for i in range(4)]
                y = [pk('fma', t + 2 * i, t_(i), c(1, i), c(1, i)) for i in (0, 1)] + [f"v_rcp_f32 v{t+i}, v{t+i}" for i in range(4)]
                y += [pk('mul', a + 2 * i, A(i), t_(i)) for i in (0, 1)]
                for i in (0, 1):
                    s, q = SQ + mb * 4 + 2 * i, SQ + 8 + mb * 4 + 2 * i
                    y += [pk('add', s, pr(s), A(i)), pk('fma', q, A(i), A(i), pr(q))]
                for z in (x, y): S.s[S.add('\n'.join(z), cap=4)]['vm'] = True
        mark['g1'] = len(S.s)
    def window5():
        mark['w0'] = len(S.s)
        for k in range(K.n5 + 1): S.s[S.add('', cap=4)]['vm'] = True
        mark['w1'] = len(S.s)
        for k in range(K.n6 + 1): S.s[S.add('', cap=4)]['vm'] = True
        mark['w2'] = len(S.s)
    for i in range(NT * 7):
        if i == 56: gelu_window()
        if i == 224: window5()
        if i == 56 + K.zpos and K.zpos:
            mark['n0'] = len(S.s)
            for nb in range(7):
                x = [pk('fma', a2(nb, 0) + 2 * j, pr(a2(nb, 0) + 2 * j), pr(ZC + 2 * j), pr(ZC + 8 + 2 * j)) for j in range(4)] + pack(a2(nb, 0), a2(nb, 1))
                S.put(S.add('\n'.join(x), cap=2), ST7(a2(nb, 0), nb, S11, 'z2'))
        at[i] = len(S.s)
        for g, m in enumerate(mm(i)): S.s[S.add(m)]['vm'] = g in (0, 2)
    if NT == 32: window5()
    sl = lambda T_, q=0, g=0: at[T_ * 7 + q] + g
    endof = lambda T_: at[T_ * 7 + 6] + 8
    bar = lambda T_: sl(T_, 5, 3)
    for i in range(NT * 7):
        T_, q = divmod(i, 7)
        if i + 2 < NT * 7 and i + 2 not in (224, 225):
            for k, l in enumerate(frag_reads(i + 2)): S.put(at[i] + 4 + k, l)
        if q == 5 and T_ < NT - 1 + (NT == 32): S.tail(at[i] + 3, W(tag=f'ring{T_+1}' if T_ != 31 else None, lg0=True), "s_barrier")
        if i + 1 < NT * 7 and i + 1 != 224:
            regs = [vr(wf(i + 1, 0), 16)]
            if q == 6 and T_ < 31: regs.append(ar(((T_ + 1) & 7) * 32, 32))
            if i + 1 > 224: regs += [oloc((i + 1 - 224) * 2 + nb) for nb in range(2)]
            S.tail(at[i] + 7, W(regs))
        if q == 5 and (K.skip >> (0 if T_ < 8 else 1 if T_ < 16 else 2 if T_ < 32 else 3)) & 1: S.s[at[i] + 2]['vm'] = False
    e = S.stream([LD(vr(GZ + 4 * i, 4), i, S7) for i in range(4)], sl(0, 2), sl(1), even=False)
    x = [f"v_lshlrev_b32 v{BQ+4*mb}, 16, v{BQ+4*mb}" for mb in range(2)] + [f"v_mov_b32 v{BQ+4*mb+r}, v{BQ+4*mb}" for r in range(1, 4) for mb in range(2)]
    x += [f"v_lshrrev_b32 v{vt}, 5, v0", f"v_lshl_add_u32 v{vt}, v{vt}, 6, v{vJ}"]
    x += [f"ds_read_b32 v{CS2+nb}, v{vJ} offset:{L_CSF+512+nb*64}" for nb in range(7)]
    x += [f"v_mov_b32 v{SQ+r}, 0" for r in range(16)]
    S.stream(x, sl(1), sl(2))
    x = [W([vr(GZ, 16)])]
    for a, b in ((0, 4), (8, 12), (0, 8)): x += [f"v_add_f32 v{GZ+a+r}, v{GZ+a+r}, v{GZ+b+r}" for r in range(4)]
    x += [f"v_permlane32_swap_b32 v{GZ+r}, v{GZ+2+r}" for r in range(2)] + [f"v_add_f32 v{GZ+r}, v{GZ+r}, v{GZ+2+r}" for r in range(2)]
    x += interleave(xsum(GZ, GZ + 2, 16), xsum(GZ + 1, GZ + 3, 16))
    def meanvar(n): return lines(f"""v_mul_f32 v{GZ}, {f32(-1/n)}, v{GZ}
          v_mul_f32 v{GZ+1}, {f32(1/n)}, v{GZ+1}
          v_fma_f32 v{GZ+1}, -v{GZ}, v{GZ}, v{GZ+1}
          v_max_f32 v{GZ+1}, 0, v{GZ+1}
          v_add_f32 v{GZ+1}, {f32(1e-5)}, v{GZ+1}
          v_rsq_f32 v{GZ+2}, v{GZ+1}""")
    x += meanvar(1024) + lines(f"""v_mul_f32 v{GZ+1}, v{GZ+1}, v{GZ+2}
          v_mul_f32 v{GZ+3}, v{GZ+2}, v{GZ+2}
          v_mul_f32 v{GZ+3}, v{GZ+3}, v{GZ+2}
          v_mul_f32 v{GZ+2}, {f32(-C1)}, v{GZ+2}
          v_mul_f32 v{GZ+3}, {f32(-C2)}, v{GZ+3}""")
    x += [f"ds_write_b32 v{vt}, v{GZ+c} offset:{L_K+c*128}" for c in range(4)]
    x += [f"ds_read_b128 {vr(RC+4*i,4)}, v{vG} offset:{L_K+i*64}" for i in range(8)]
    x += [f"ds_read_b32 v{KC+i}, v{vJ} offset:{L_K+i*64}" for i in range(8)]
    x += lines(f"""s_lshl_b32 s{S8}, s{S_R32}, 13
          s_add_u32 s{S8}, s{S8}, {WS_ZST}
          s_lshl_b32 s3, s{S_CB}, 9
          s_add_u32 s{S7}, s{S8}, s3
          s_lshl_b32 s{S9}, s{S_W}, 11
          s_lshl_b32 s3, s{S_CB}, 7
          s_add_u32 s{S9}, s{S9}, s3
          s_lshl2_add_u32 s{S9}, s{S_RB}, s{S9}
          s_add_u32 s{S9}, s{S9}, {WS_F4}
          s_add_u32 s{S10}, s{S_LINE}, {WS_F4}""") + [RL(S11, vTZ, 0)]
    S.stream(x, sl(2), sl(5))
    for mb in range(2):
        for q in range(7):
            nb = (q + 4) % 7
            S.stream([f"v_fmac_f32 v{a2(nb,mb)+r}, v{RC+4*mb+r}, v{CS2+nb}" for r in range(4)], sl(5 + mb, q), sl(5 + mb, q, 7))
    x = []
    for bm, o in (('0x3', 0), ('0xc', 4)):
        x += [f"v_add_f32_dpp v{SQ+sq*8+r}, v{SQ+sq*8+r+o}, v{SQ+sq*8+r+o} row_ror:8 row_mask:0xf bank_mask:{bm}" for sq in range(2) for r in range(4)]
    for bm, o in (('0x5', 0), ('0xa', 8)):
        x += [f"v_add_f32_dpp v{SQ+r}, v{SQ+r+o}, v{SQ+r+o} row_half_mirror row_mask:0xf bank_mask:{bm}" for r in range(4)]
    for perm in ('[1,0,3,2]', '[2,3,0,1]'):
        x += [f"v_add_f32_dpp v{SQ+r}, v{SQ+r}, v{SQ+r} quad_perm:{perm} row_mask:0xf bank_mask:0xf" for r in range(4)]
    x += [f"v_cndmask_b32 v{SQ}, v{SQ}, v{SQ+r}, s[{S_M+2*r-2}:{S_M+2*r-1}]" for r in range(1, 4)]
    x += [f"v_mov_b32 v{SQ+2}, v{V_E}", f"v_mov_b32 v{SQ+3}, v{V_E}", f"v_mov_b32_dpp v{SQ+1}, v{SQ} row_shl:4 row_mask:0xf bank_mask:0xf"]
    zs = ST(vr(SQ, 4), vZS, S7, 0, 'zst')
    if K.g1:
        S.hold = False; e = S.stream(x, sl(8), None, even=False); S.hold = True
        e = S.stream([zs], e + 1, None, even=False)
    else:
        S.put(mark['g1'] - 1, *x, zs); S.s[mark['g1'] - 1]['vm'] = False; e = sl(8)
    gl = [LD(vr(GZ + 4 * i, 4), i, S8) for i in range(8)]
    ck = [f"v_bitop3_b32 v{vt}, v{GZ+2}, v{V_E}, v{GZ+6} bitop3:0x7e"] + [f"v_bitop3_b32 v{vt}, v{GZ+4*i+2}, v{V_E}, v{vt} bitop3:0xbe" for i in range(2, 8)] + [f"v_cmp_ne_u32 vcc, 0, v{vt}"]
    e = S.stream(gl, e + K.zg, None, even=False)
    S.hold = bool(K.zh & 1)
    e = S.stream([W([vr(GZ, 32)])] + ck, e + K.zc, None, even=False)
    x = [retry(K, 'RT_ZG', gl, ck)]
    for d in (16, 8, 4): x += [f"v_add_f32 v{GZ+b+r}, v{GZ+b+r}, v{GZ+b+d+r}" for b in range(0, d, 4) for r in range(2)]
    x += interleave(xsum(GZ, GZ + 2, 32), xsum(GZ + 1, GZ + 3, 32)) + meanvar(1792) + [f"v_mul_f32 v{GZ}, v{GZ}, v{GZ+2}"]
    x += [f"ds_write_b32 v{vZW}, v{GZ+2} offset:{L_Z}", f"ds_write_b32 v{vZW}, v{GZ} offset:{L_Z+128}"]
    x += [f"ds_read_b128 {vr(ZC+4*i,4)}, v{vG} offset:{L_Z+i*64}" for i in range(4)]
    e = S.stream(x, e + 3, None, even=False)
    x = []
    for nb in range(7):
        x += [f"v_fma_f32 v{a2(nb,mb)+r}, v{a2(nb,mb)+r}, v{ZC+4*mb+r}, v{ZC+8+4*mb+r}" for mb in range(2) for r in range(4)]
        x += pack(a2(nb, 0), a2(nb, 1)) + [ST7(a2(nb, 0), nb, S11, 'z2')]
    S.hold = bool(K.zh & 2)
    if K.zpos:
        print('  LN3 constants read', mark['n0'] - e, 'slots before use'); assert mark['n0'] > e; e = mark['n0'] + 6
    else: e = S.stream(x, e + 8, None, even=False)
    S.hold = True
    print('  z2 stored at', (e - sl(8)) / 56)
    e = S.stream([G(W(tag='z2'), send(vFC, S9))], e + K.zd, None, even=False); f4s = e
    S.back(poll(S10)[0], e, e + K.f4p - 1)
    e = S.stream([poll(S10)[1]], e + K.f4p, None, even=False)
    e = S.stream([G(W([vr(vPOLL)]), pchk(16)[0]), pchk(16)[1]], e + K.f4c, None, even=False)
    e = S.stream([retry(K, 'RT_F4', poll(S10), pchk(16))], e + 2, None, even=False); f4c = e
    print('  f4 sent at', (f4s - sl(8)) / 56, 'checked at', (f4c - sl(8)) / 56)
    assert f4s + 20 < bar(15) and f4c + 20 < bar(16)
    x = lines(f"""s_mul_i32 s{S7}, s{S_LINE}, 56
          s_add_u32 s{S7}, s{S7}, {WS_U}
          s_and_b32 s{S8}, s{S_CB}, 1
          s_and_b32 s3, s{S_W}, 1
          s_lshl1_add_u32 s3, s3, s{S8}
          s_lshl2_add_u32 s3, s{S_RB}, s3
          s_lshr_b32 s{S9}, s{S_W}, 1
          s_lshl4_add_u32 s3, s3, s{S9}
          s_lshl_b32 s3, s3, 5
          s_lshr_b32 s{S11}, s{S_CB}, 1
          s_add_u32 s3, s3, s{S11}
          s_lshl_b32 s3, s3, 2
          s_add_u32 s{S9}, s3, {WS_F5}
          s_add_u32 s{S10}, s{S_LINE}, {WS_F5}
          s_lshl1_add_u32 s{S8}, s{S_RB}, s{S8}
          s_lshl_b32 s{S8}, s{S8}, 17
          s_lshl2_add_u32 s{S11}, s{S11}, s{S_W}
          s_lshl_b32 s3, s{S11}, 6
          s_add_u32 s{S_XB}, s{S8}, s3
          s_lshl_b32 s3, s{S11}, 11
          s_add_u32 s{S8}, s{S8}, s3
          s_add_u32 s{S8}, s{S8}, {WS_H}
          s_add_u32 s{S11}, s{S8}, 65536""")
    S.stream(x, sl(18), sl(20))
    S.hold = False
    x = []; e = 0
    def um(nb): return [f"v_mul_f32 v{a1(nb,mb)+r}, v{a1(nb,mb)+r}, v{a2(nb,mb)+r}" for mb in range(2) for r in range(4)]
    def up(p, mb): return pack(a1(2 * p, mb), a1(2 * p + 1, mb)) + [ST7(a1(2 * p, mb), 2 * p + mb, S7, 'ust')]
    for nb in range(5):
        x = um(nb) + (up(nb >> 1, 0) + up(nb >> 1, 1) if nb & 1 else [])
        e = S.stream(x, max(e, sl(31, nb + 1, 2)), endof(31), even=False)
    e = S.stream(um(5), max(e, sl(31, 6, 2)), endof(31), even=False)
    S.hold = True
    w0, w1, w2 = mark['w0'], mark['w1'], mark['w2']
    S.put(w0, F(lambda: stamp(P, 'p5e')), *up(2, 0), *um(6)[:4], *up(2, 1), *um(6)[4:], *pack(a1(6, 0), a1(6, 1)), ST7(a1(6, 0), 6, S7, 'ust'))
    S.s[w0]['vm'] = False
    k = w0 + 1 + K.n5 // 4
    S.tail(k, W(tag='ust'), send(vF5, S9)); usent = k
    if NT == 40:
        x = [f"v_add_u32 v{vU1}, 8, v{vLR[0]}", f"v_add_u32 v{vU3}, 8, v{vLR[2]}"]
        for f in range(4): x += unpack(lambda i: a6(f, i >> 1) + (i & 1) * 2, HQ + 4 * f)
        S.tail(w1 - 1, *x)
        S.put(w1, *poll(S10), *pchk(8), retry(K, 'RT_F5', poll(S10), pchk(8)), F(lambda: stamp(P, 'f5'))); S.s[w1]['vm'] = False
        S.tail(w2 - 1, W(tag='ring32'), "s_barrier", *frag_reads(224), *frag_reads(225), W([vr(wf(224, 0), 16), oloc(0), oloc(1)]))
        S.stream([LD(vr(HQ + 4 * f, 4), f & 1, S11 if f >> 1 else S8) for f in range(4)], sl(30, 4), sl(31, 1), even=False)
        so = [S_XB, S7, S8, S9]
        S.stream([f"s_add_u32 s{so[f]}, s{S_XB}, {(f>>1)*65536+(f&1)*8192}" for f in range(1, 4)], sl(33), sl(34))
    ring = []; reg = []
    for T_ in range(5, NT):
        w = wdma(T_)
        rel = max(bar(T_ - 5) + 1, f4s + 1 if T_ == 16 else (f4c + 1 if T_ > 16 else 0), w1 + 1 if T_ >= 32 else 0)
        dl = bar(T_ - 1) if T_ != 32 else w1
        ring.append(dict(pre=w[0], m0=w[1], it=[(x, rel, dl) for x in w[2:6]]))
        ring.append(dict(pre=None, m0=w[6], it=[(x, rel, dl) for x in w[7:]]))
    for u in range(24):
        rel = 0 if u < 8 else endof(u)
        reg.append(dict(pre=RL(SA[u & 1], vTH if u < 8 else vTS, u if u < 8 else u - 8) if u >= 2 else None, m0=None,
                        it=[(LD(ar((u & 7) * 32 + 4 * p, 4), p, SA[u & 1]), rel, sl(u if u < 8 else u + 8)) for p in range(8)]))
    if NT == 40:
        k = 0
        for s in range(8):
            for h in range(4):
                its = []
                for n in range(s * 14 + 4 * h, s * 14 + min(4 * h + 4, 14)):
                    rel = sl(16) if n < 12 else (endof(24 + ((n - 12) >> 3)) if n < 76 else (w0 + 1 if n < 82 else (usent + 1 if n < 96 else at[224 + (n - 96) // 2] + 8)))
                    its.append((LD(oloc(n), ((n - s * 14) & 2) * 2 + (n & 1), SA[k & 1]), rel, at[224 + n // 2]))
                reg.append(dict(pre=RL(SA[k & 1], vTO, s) if h == 0 else f"s_add_u32 s{SA[k&1]}, s{SA[(k-1)&1]}, 8192", m0=None, it=its)); k += 1
    q = [[(g, j) for g in st for j in range(len(g['it']))] for st in (ring, reg)]
    for g in ring + reg: g['pos'] = []
    for n in range(K.n4):
        g, j = q[1].pop(0); emit(P, g['it'][j][0]); g['pos'].append(-1)
    cnt = {}
    for i, x in enumerate(S.s):
        if not x.get('vm') or x['load'] - sum(weight(t) for t in x['tail']): continue
        c = [st for st in q if st and st[0][0]['it'][st[0][1]][1] <= i]
        if not c: continue
        st = min(c, key=lambda st: st[0][0]['it'][st[0][1]][2])
        g, j = st.pop(0); S.put(i, g['it'][j][0]); g['pos'].append(i)
        assert i < g['it'][j][2] or mark['w1'] < i < mark['w2'], (i, g['it'][j])
    assert not q[0] and not q[1]
    print('  vmem/stage', [sum(1 for x in S.s[sl(T_):endof(T_)] for it in x['post'] if isvm(it)) for T_ in range(NT)], 'gelu window', sum(1 for x in S.s[mark['g0']:mark['g1']] for it in x['post'] if isvm(it)))
    print('  ring issued at', [round((g['pos'][-1] - bar(5 + k // 2 - 1)) / 56, 1) for k, g in enumerate(ring) if k & 1])
    print('  reg issued at', [round((g['pos'][-1] - g['it'][-1][2]) / 56, 1) for g in reg])
    for st in (ring, reg):
        last = {}; lp = -1; pp = -1
        for g in st:
            if g['pre']:
                d = g['pre'].split()[1].rstrip(',')
                lo = max(last.get(d, -1), pp, 0)
                pp = S.back(g['pre'], lo, max(lo, g['pos'][0] - 3))
            if g['m0']: S.back(g['m0'], max(lp, 0), max(g['pos'][0] - 1, 0))
            d = re.search(r'\], (s\d+) offen', itext(g['it'][0][0])).group(1)
            last[d] = lp = g['pos'][-1]
    S.hold = False
    for k in range(7):
        nb = (2 * k + 4) % 7; cq = TT + 4 * (k & 1); i = 13 * 7 + 2 * k
        S.stream([f"ds_read_b128 {vr(cq,4)}, v{vG} offset:{L_CSF+nb*64}"], at[i - 2] + 1, at[i - 1], even=False)
        S.stream([f"v_fmac_f32 v{a1(nb,mb)+r}, v{KC+mb}, v{cq+r}" for mb in range(2) for r in range(4)], at[i], at[i + 1] + 7)
    ops = []; fin = []
    for nb in range(7):
        base = len(ops)
        for stp in range(7):
            for mb in range(2):
                for r in range(4):
                    a = a1(nb, mb) + r; t = TT + mb * 4 + r; k = lambda c_: KC + 2 * c_ + mb
                    txt = [f"v_mul_f32 v{t}, v{a}, v{a}", f"v_fma_f32 v{t}, v{t}, v{k(3)}, v{k(2)}", f"v_mul_f32 v{t}, v{t}, v{a}",
                           f"v_exp_f32 v{t}, v{t}", f"v_fma_f32 v{t}, v{t}, v{k(1)}, v{k(1)}", f"v_rcp_f32 v{t}, v{t}", f"v_mul_f32 v{a}, v{a}, v{t}"][stp]
                    ops.append((txt, [base + (stp - 1) * 8 + mb * 4 + r] if stp else fin[-8 + mb * 4 + r:][:1]))
        fin += [base + 48 + j for j in range(8)]
    e = S.dag(ops, sl(16), sl(30, 4))
    print('  gelu z1 ends', (e - sl(16)) / 56)
    for nm, T_ in [('pa4', 4), ('pb0', 8), ('p50', 16), ('p58', 24), ('p64', 36)] + [(f's{t}', t) for t in range(40)]:
        if T_ < NT: S.put(sl(T_, 5, 1), F(lambda nm=nm: stamp(P, nm), 0))
    S.put(mark['g0'], F(lambda: stamp(P, 'g0'), 0))
    P.wait([ar(0, 32), vr(wf(0, 0), 16)])
    S.emit()
    if NT == 32: return
    stamp(P, 'p6e')
    for f in range(4):
        a = a6(f, 0)
        for l in pack(a, a6(f, 1)): P(l)
        for r in range(2): P(f"v_permlane16_swap_b32 v{a+r}, v{a+r+2}")
        P(f"buffer_store_dwordx4 {vr(a,4)}, v{vXO}, {R(R_OUT)}, s{so[f]} offen")
```

```python
import sys, os
sys.path.insert(0, os.path.dirname(os.path.abspath(__file__)))
from p2 import *
import p2
NAME = 'sequential_preLN__mha_block__mixer_gmlp__prompt'
REF = f'cdna_kernels/{NAME}.s.ref'

def header():
    out = []
    for l in open(REF):
        if l.startswith('; Override'): break
        out.append(l)
    return ''.join(out)

class KK:
    csbar = 100; f1send = 48; f1poll = 200; f1chk = 232
    t_in = 1; t_wo = 32; d_wo = 10; t_out = 36; t_fp = 106; nojobs = 0; xp = 0; xr = 0; n3 = 12
    n4 = 12; skip = 1; zh = 3; zpos = 26; zg = 64; zc = 36; zd = 36; f4p = 56; f4c = 36; n5 = 24; n6 = 14; wz = 4; g1 = 0
    def __init__(self, **kw):
        self.P = Prog('k'); self.ool = []
        for k, v in os.environ.items():
            if k.startswith('K_'): setattr(self, k[2:], int(v))
        self.__dict__.update(kw)
    def attn_addr(self): attn_addr(self)
    def kv_first(self): return kv_first(self)
    def passb_extra(self): return passb_extra(self)

def finish(K):
    P = K.P
    P(f"s_or_b32 s3, s2, s{S_W}\n s_cmp_lg_u32 s3, 0")
    P("s_cbranch_scc1 NOEP")
    P(f"v_mov_b32 v{vt}, {WS_EP}\n buffer_store_dword v{V_E}, v{vt}, {R(R_WS)}, 0 offen sc1")
    P.label('NOEP')
    if PROF:
        P.wait(vm0=True)
        stamp(P, 'end')
        P("s_memtime s[100:101]")
        P(f"""s_lshl_b32 s3, s2, 2
              s_add_u32 s3, s3, s{S_W}
              s_lshl_b32 s3, s3, 6
              s_add_u32 s3, s3, {WS_PROF}
              v_mov_b32 v{vt}, 0""")
        P.wait(lg0=True)
        P(f"s_sub_u32 s98, s100, s98")
        for q in range(4):
            for i in range(4):
                k = q * 4 + i
                P(f"v_mov_b32 v{8+i}, {'s%d' % (S_ST+2*k) if k < 13 else ('s98' if k == 13 else 's%d' % S_SPIN)}")
            P(f"buffer_store_dwordx4 v[8:11], v{vt}, {R(R_WS)}, s3 offen offset:{q*16}")
    P.wait(vm0=True)
    P.label('END'); P("s_endpgm")
    for f in K.ool: f()
    P.label('CODE_END')

def build(path, verbose=1, **kw):
    K = KK(**kw)
    P = K.P
    if PROF:
        for i in range(13): P(f"s_mov_b32 s{S_ST+2*i}, 0")
    prologue(K); phase1(K)
    if UPTO >= 2: phase2(K)
    if UPTO >= 3:
        import p3; p3.phase3(K)
    if UPTO >= 4:
        import p4; p4.phase45(K)
    finish(K)
    body = P.finalize(verbose)
    lab = NAME + '_kernel'
    mx = dict(P.maxreg); mx['v'] = 255; mx['a'] = 255
    txt = header() + f"; @launch grid=(256,1,1) block=(256,1,1) lds={4*PW}\n" + '.amdgcn_target "amdgcn-amd-amdhsa--gfx950"\n' + kernel_text(lab, body, mx)
    open(path, 'w').write(txt)
    print('bytes', len(txt))

if __name__ == '__main__':
    build(sys.argv[1] if len(sys.argv) > 1 else 'f.s', int(os.environ.get('V', 1)))
```

```python
from p2 import *

L_CSP = 32768
L_CSF, L_K, L_Z = 0, 1024, 1536
L_RING, SLOT = 5120, 7168
def slot(T): return L_RING + ((T + 4) % 5) * SLOT
ACC3, HR = 64, 176
vX4 = 13
vLR = [V_X, 14, 15, 24]
vTH, vTW, vTZ, vTS, vTU, vTO, vT3 = 25, 26, 27, 28, 29, 30, 31
vFR, vF5, vHS, vZS, vJ, vG, vZW, vB = 240, 241, 242, 243, 244, 245, 249, 250
S_SA, S_SW = 50, 51
SA, SW = [50, 66], [51, 67]
S_M = 54
S7, S8, S9, S10, S11 = 53, 60, 61, 62, 65
def RL(s, v, lane): return f"v_readlane_b32 s{s}, v{v}, {lane}"
def wdma(T):
    tab, ln = (vTW, T) if T < 16 else ((vTZ, T - 16) if T < 32 else (vTU, T - 32))
    d = [T_(f"buffer_load_dwordx4 v{vX4 if p >= 4 else V_X}, {R(R_WS)}, s{SW[T&1]} offen offset:{(p&3)*1024} sc1 lds", f'ring{T}') for p in range(7)]
    return [RL(SW[T & 1], tab, ln), m0(slot(T))] + d[:4] + [m0(slot(T) + 4096)] + d[4:]
T_ = T
def poll(so): return [f"v_mov_b32 v{vPOLL}, 0", f"buffer_atomic_or v{vPOLL}, v{vFP}, {R(R_WS)}, s{so} offen sc0 sc1"]
def pchk(n): return [f"v_cmp_ne_u32 vcc, v{vPOLL}, v{V_E}", "s_mov_b32 vcc_hi, 0" if n == 32 else f"s_and_b64 vcc, vcc, {hex((1<<n)-1)}"]
def send(va, so): return f"buffer_atomic_swap v{V_E}, v{va}, {R(R_WS)}, s{so} offen sc1"

def tables_a():
    a, b = vt, vt2
    return f"""v_add_u32 v{vX4}, 4096, v{V_X}
          v_add_u32 v{a}, s{S_RHO}, v0
          v_and_b32 v{vt3}, 7, v{a}
          s_lshl_b32 s3, s{S_CB}, 1
          s_add_u32 s3, s3, 1
          s_lshl_b32 s3, s3, 5
          s_add_u32 s3, s3, s{S_W}
          v_lshl_add_u32 v{a}, v{vt3}, 2, s3
          v_bfe_u32 v{b}, v0, 3, 1
          v_lshlrev_b32 v{b}, 5, v{b}
          v_sub_u32 v{a}, v{a}, v{b}
          v_mul_u32_u24 v{vTW}, 7168, v{a}
          v_add_u32 v{vTW}, {WS_WIN}, v{vTW}"""
def tables_b(wz):
    a, b = vt, vt2
    return f"""s_lshl_b32 s{S7}, s{S_R32}, 16
          s_add_u32 s3, s{S7}, {WS_H}
          v_lshl_add_u32 v{vTH}, v{vt3}, 13, s3
          s_lshl_b32 s{S8}, s{S_RHO}, 1
          v_add_u32 v{a}, s{S8}, v0
          v_and_b32 v{b}, 15, v{a}
          s_add_u32 s3, s{S7}, {WS_O}
          v_lshl_add_u32 v{vT3}, v{b}, 12, s3
          {f's_mov_b32 s{S8}, s{S_RHO}' if wz == 8 else (f's_add_u32 s{S8}, s{S_RB}, s{S_CB}' if wz < 8 else '')}
          s_sub_u32 s3, s{S_RB}, s{S8}
          s_and_b32 s3, s3, {wz-1}
          s_and_b32 s{S9}, s{S_RB}, {16-wz}
          s_or_b32 s3, s3, s{S9}
          v_cmp_ge_u32 vcc, s3, v0
          v_subbrev_co_u32 v{a}, vcc, 0, v0, vcc
          v_add_u32 v{b}, s{S8}, v{a}
          v_and_b32 v{a}, 15, v{a}
          v_bfi_b32 v{a}, {wz-1}, v{b}, v{a}
          v_writelane_b32 v{a}, s{S_RB}, 0
          s_lshl_b32 s3, s{S7}, 1
          s_add_u32 s3, s3, {WS_WSP}
          v_lshl_add_u32 v{vTS}, v{a}, 13, s3
          s_lshl_b32 s3, s{S_CB}, 6
          s_add_u32 s3, s3, s{S_W}
          v_lshl_add_u32 v{a}, v{a}, 2, s3
          v_mul_u32_u24 v{vTZ}, 7168, v{a}
          v_add_u32 v{vTZ}, {WS_Z2}, v{vTZ}
          s_and_b32 s3, s{S_CB}, 1
          s_lshl_b32 s3, s3, 1
          s_lshr_b32 s{S8}, s{S_W}, 1
          s_add_u32 s3, s3, s{S8}
          s_lshl2_add_u32 s3, s{S_RB}, s3
          s_and_b32 s{S9}, s{S_W}, 1
          s_lshl4_add_u32 s3, s3, s{S9}
          v_lshl_add_u32 v{a}, v{vt3}, 1, s3
          v_mul_u32_u24 v{vTU}, 7168, v{a}
          v_add_u32 v{vTU}, {WS_U}, v{vTU}
          s_and_b32 s3, s{S_CB}, 14
          s_add_u32 s3, s3, s{S8}
          s_mul_i32 s3, s3, {56*4096}
          s_lshl_b32 s{S9}, s{S9}, 11
          s_add_u32 s3, s3, s{S9}
          s_add_u32 s3, s3, {WS_WOUT}
          v_mul_u32_u24 v{vTO}, {7*4096}, v{vt3}
          v_add_u32 v{vTO}, s3, v{vTO}
          v_add_u32 v{vLR[1]}, {PW}, v{V_X}
          v_add_u32 v{vLR[2]}, {2*PW}, v{V_X}
          v_add_u32 v{vLR[3]}, {3*PW}, v{V_X}
          v_mov_b32 v{b}, {OOB}
          v_cmp_gt_u32 vcc, 16, v0
          v_lshlrev_b32 v{a}, 7, v0
          v_cndmask_b32 v{vFR}, v{b}, v{a}, vcc
          v_cmp_gt_u32 vcc, 8, v0
          v_lshlrev_b32 v{a}, 8, v0
          v_cndmask_b32 v{vF5}, v{b}, v{a}, vcc
          v_lshrrev_b32 v{vG}, 4, v0
          v_bfe_u32 v{a}, v0, 2, 2
          v_and_b32 v{vJ}, 15, v0
          v_cmp_eq_u32 vcc, v{a}, v{vG}
          v_lshlrev_b32 v{vHS}, 4, v{vJ}
          v_and_b32 v{vt3}, 3, v0
          v_cndmask_b32 v{vHS}, v{b}, v{vHS}, vcc
          v_lshl_add_u32 v{vB}, v{a}, 3, v{vt3}
          v_lshlrev_b32 v{vB}, 1, v{vB}
          v_lshl_add_u32 v{vt3}, v{vG}, 2, v{vt3}
          v_and_b32 v{a}, 8, v0
          v_lshl_add_u32 v{vt3}, v{a}, 1, v{vt3}
          v_and_b32 v{a}, 4, v0
          v_cmp_eq_u32 vcc, 0, v{a}
          v_lshlrev_b32 v{vt3}, 4, v{vt3}
          v_lshl_add_u32 v{vJ}, v{vJ}, 2, s{S_WB}
          v_cndmask_b32 v{vZS}, v{b}, v{vt3}, vcc
          v_lshl_add_u32 v{vG}, v{vG}, 4, s{S_WB}
          v_and_b32 v{a}, 31, v0
          v_lshl_add_u32 v{vZW}, v{a}, 2, s{S_WB}
          s_mov_b32 s{S_M}, 0x22222222
          s_mov_b32 s{S_M+1}, 0x22222222
          s_mov_b32 s{S_M+2}, 0x44444444
          s_mov_b32 s{S_M+3}, 0x44444444
          s_mov_b32 s{S_M+4}, 0x88888888
          s_mov_b32 s{S_M+5}, 0x88888888"""

def unpack(acc, x):
    r = []
    for i in range(4): r += [f"v_lshlrev_b32 v{acc(i)}, 16, v{x+i}", f"v_and_b32 v{acc(i)+1}, 0xffff0000, v{x+i}"]
    return r
def oload(n, so): return f"buffer_load_dwordx4 {ar(n*4,4)}, v{V_X}, {R(R_WS)}, s{so} offen offset:{(n&3)*1024} sc1"

def phase3(K):
    P = K.P
    for it in wodma(15, L_SC)[:2]: emit(P, it)
    A3 = lambda nb, mb: ACC3 + nb * 8 + mb * 4
    for q in range(4):
        for r in range(2): P(f"v_permlane16_swap_b32 v{XR+q*4+r}, v{XR+q*4+r+2}")
    for i in (16, 8, 4):
        for r in range(0, i, 2): P(pk('add', CD + r, pr(CD + r), pr(CD + i + r)))
    for mb in range(2):
        for p in range(2):
            for l in unpack(lambda i: A3(2 * p + (i >> 1), mb) + (i & 1) * 2, XR + (mb * 2 + p) * 4): P(l)
    P(f"ds_write_b128 v{vEW}, {vr(CD,4)} offset:{L_CSP}")
    P(tables_a())
    P.wait(tag='ost'); P(send(vF2, S4))
    for it in wdma(0): emit(P, it)
    P(tables_b(K.wz))
    steps = [(s, q) for s in range(16) for q in range(4)]
    for i in range(3):
        for l in trreads(i, steps[i][1], woloc(steps[i][0])): P(l)
    P(f"v_mov_b32 v{HR+16}, 0x3f803f80")
    for r in range(1, 4): P(f"v_mov_b32 v{HR+16+r}, v{HR+16}")
    SO = [S_SA, S7, S8, S9]
    for s in range(4): P(RL(SO[s], vT3, s))
    P(f"s_add_u32 s{S10}, s{S_LINE}, {WS_F2}")
    for it in poll(S10) + pchk(32) + [retry(K, 'RT_F2', poll(S10), pchk(32))]: emit(P, it)
    stamp(P, 'f2')
    N0 = K.n3
    for n in range(N0): P(oload(n, SO[n >> 2]))
    S = Sched(P, 'p3')
    for i, (s, q) in enumerate(steps):
        for mb in range(2):
            for kk in range(2):
                S.add(mf16(A3(q, mb), vr(WR + (i & 3) * 8 + kk * 4, 4), ar(s * 16 + (kk * 2 + mb) * 4, 4)))
        if i + 3 < 64:
            for k, l in enumerate(trreads((i + 3) & 3, steps[i + 3][1], woloc(steps[i + 3][0]))): S.put(4 * i + (k & 2), l)
        n = N0 + i
        if n < 64:
            S.put(4 * i + 1, oload(n, SO[(n >> 2) & 3]))
            if (n & 3) == 3 and (n >> 2) + 4 < 16: S.put(4 * i + 3, RL(SO[(n >> 2) & 3], vT3, (n >> 2) + 4))
    for k in range(N0 >> 2):
        if k + 4 < 16: S.put(4 * k + 3, RL(SO[k & 3], vT3, k + 4))
    BI = 51
    for i in range(63):
        regs = [vr(WR + ((i + 1) & 3) * 8, 8)]
        if (i + 1) % 4 == 0: regs.append(ar(steps[i + 1][0] * 16, 16))
        if i == BI: S.tail(4 * i + 3, W(regs, tag='wo15'), "s_barrier")
        else: S.tail(4 * i + 3, W(regs))
    w1 = wdma(1)
    i0 = max(64 - N0, BI + 1)
    S.put(4 * i0 - 5, w1[0]); S.put(4 * i0 - 9, w1[1])
    for k, it in enumerate(w1[2:6] + w1[7:]): S.put(4 * (i0 + k) + 1, it)
    S.put(4 * (i0 + 3) + 3, w1[6])
    for k in range(4): S.tail(4 * (BI + 1 + k) + 3, f"ds_read_b128 {vr(CD+4*k,4)}, v{vLR[k]} offset:{L_CSP}")
    sc = lines(f"""s_lshl_b32 s{S7}, s{S_R32}, 16
          s_lshl_b32 s3, s{S_CB}, 12
          s_add_u32 s{S7}, s{S7}, s3
          s_add_u32 s{S7}, s{S7}, {WS_H}
          s_lshl_b32 s{S8}, s{S_LINE}, 1
          s_add_u32 s{S8}, s{S8}, {WS_HST}
          s_lshl_b32 s{S9}, s{S_R32}, 11
          s_lshl2_add_u32 s{S9}, s{S_CB}, s{S9}
          s_add_u32 s{S9}, s{S9}, {WS_F3}
          s_add_u32 s{S10}, s{S_LINE}, {WS_F3}""")
    S.stream(sc, 4 * (64 - N0) + 2, 248)
    def cvt(mb, p): return [f"v_cvt_pk_bf16_f32 v{HR+(mb*2+p)*4+i}, v{A3(2*p+(i>>1),mb)+(i&1)*2}, v{A3(2*p+(i>>1),mb)+(i&1)*2+1}" for i in range(4)]
    def hst(mb, p): return ST(vr(HR + (mb * 2 + p) * 4, 4), V_X, S7, p * 2048 + mb * 1024, 'hst')
    c = cvt(0, 0) + cvt(1, 0)
    for k in range(4): S.put(249 + k + (k >= 2), *c[2 * k:2 * k + 2])
    S.put(254, hst(0, 0)); S.put(255, hst(1, 0))
    P.wait([ar(0, 16), vr(WR, 8)])
    S.emit()
    stamp(P, 'p3e')
    SS = HR + 20
    def stat(mb, p):
        h = vr(HR + (mb * 2 + p) * 4, 4)
        return [mf16(SS + mb * 8, vr(HR + 16, 4), h, None if p else '0'), mf16(SS + mb * 8 + 4, h, h, None if p else '0')]
    for l in stat(0, 0): P(l)
    for l in cvt(0, 1): P(l)
    emit(P, hst(0, 1))
    for l in stat(1, 0): P(l)
    for l in cvt(1, 1): P(l)
    emit(P, hst(1, 1))
    for l in stat(0, 1) + stat(1, 1): P(l)
    P("s_barrier")
    w2 = wdma(2)
    for it in w2[:2]: emit(P, it)
    for i in (8, 4):
        for r in range(0, i, 2): P(pk('add', CD + r, pr(CD + r), pr(CD + i + r)))
    for mb in range(2):
        q = SS + mb * 8 + 4
        P(f"""v_cndmask_b32 v{q}, v{q}, v{q+1}, s[{S_M}:{S_M+1}]
              v_cndmask_b32 v{q+2}, v{q+2}, v{q+3}, s[{S_M+4}:{S_M+5}]""")
    P(f"v_mov_b32 v{SS+2}, v{SS+8}")
    P(f"s_or_b64 vcc, s[{S_M+2}:{S_M+3}], s[{S_M+4}:{S_M+5}]")
    for mb in range(2):
        q = SS + mb * 8 + 4
        P(f"v_cndmask_b32 v{SS+1+2*mb}, v{q}, v{q+2}, vcc")
    emit(P, ST(vr(SS, 4), vHS, S8, 0, 'hst'))
    for it in w2[2:]: emit(P, it)
    P(f"ds_write_b128 v{vEW}, {vr(CD,4)} offset:{L_CSF}")
    P.wait(tag='hst sp'); P(send(vFR, S9))
```

```python
from lib2 import *

PIECE_ROW = [0, 16, 4, 20]
L_XR, L_KV, L_QE, L_MISC = 0, 16384, 36864, 38912
L_CS = L_MISC
L_ST = L_MISC + 1024
L_QX = L_KV
vt, vt2, vt3 = 3, 4, 5
vXG, vXL, vWD, vQD, vRB = 6, 10, 12, 14, 16
vCS, vST, vCW, vSW, vG16, vJ4, vTAU, vG32 = 24, 25, 26, 27, 28, 29, 30, 31
WR = 32
AKV, AQ = 64, 128
CSK, CSQ, CSV, NMV, RSV, NM, RS, RSQ, GT = 160, 176, 192, 196, 204, 212, 214, 216, 220
vK, vV, vQ0, vQ1, vO, vFS, vFP, vWO, vWIN, vTIN, vWOUT, vTOUT, vSP = 240, 241, 242, 243, 244, 245, 246, 247, 249, 250, 251, 252, 253
vPOLL, vDUM = 254, 255
S_XO, S_T, S_TAB, S_A, S_B, S_C, S_D = 50, 51, 52, 68, 69, 70, 71
GL = int(os.environ.get('GL', 7))

def retry(K, name, reissue, check, cond='vccnz'):
    def ool():
        P = K.P
        P.label(name)
        for it in reissue: emit(P, it)
        P(f"s_add_u32 s{S_SPIN}, s{S_SPIN}, 1")
        if PROF: P(f"s_add_u32 s99, s99, {1 << (4 * ['G1', 'F1', 'FP', 'F2', 'F3', 'ZG', 'F4', 'F5'].index(name[3:5]))}")
        for it in check: emit(P, it)
        P(f"""s_cmp_lt_u32 s{S_SPIN}, {SPIN}
              s_cselect_b64 s[{S_C}:{S_C+1}], -1, 0
              s_and_b64 vcc, vcc, s[{S_C}:{S_C+1}]""")
        P(f"s_cbranch_vccnz {name}", trips=2)
        P(f"s_branch {name}_B")
    K.ool.append(ool)
    def br():
        K.P(f"s_cbranch_vccnz {name}"); K.P.label(name + '_B')
    return F(br)

def prologue(K):
    P = K.P
    P("s_cmp_ge_u32 s2, 256"); P("s_cbranch_scc1 END")
    for r, off in ((R_X, 0), (R_WQKV, 8), (R_WS, 80), (R_WO, 16), (R_WIN, 32), (R_WSP, 40), (R_BSP, 48), (R_WOUT, 56), (R_OUT, 64)):
        P(f"s_load_dwordx2 s[{r}:{r+1}], s[0:1], {off}")
    P(f"s_getpc_b64 s[{S_A}:{S_A+1}]"); P.label('PC0')
    P(f"""s_bfe_u32 s3, s2, 0x20003
          s_lshl_b32 s3, s3, 15
          v_lshl_add_u32 v{vt}, v0, 7, s3
          v_min_u32 v{vt}, CODE_END-PC0-4, v{vt}
          global_load_dword v{vDUM}, v{vt}, s[{S_A}:{S_A+1}]""")
    if PROF: P("s_memtime s[98:99]")
    stamp(P, 'start')
    P(f"""v_lshrrev_b32 v1, 6, v0
          v_and_b32 v0, 63, v0
          v_readfirstlane_b32 s{S_W}, v1
          v_lshlrev_b32 v{V_X}, 4, v0
          s_and_b32 s{S_RBA}, s2, 1
          s_lshl_b32 s{S_RBA}, s{S_RBA}, 3
          s_bfe_u32 s3, s2, 0x30003
          s_or_b32 s{S_RBA}, s{S_RBA}, s3
          s_bfe_u32 s{S_CBA}, s2, 0x20001
          s_lshl_b32 s{S_CBA}, s{S_CBA}, 2
          s_lshr_b32 s3, s2, 6
          s_or_b32 s{S_CBA}, s{S_CBA}, s3
          s_lshl_b32 s{S_R32A}, s{S_RBA}, 2
          s_add_u32 s{S_R32A}, s{S_R32A}, s{S_W}
          s_mul_i32 s{S_WB}, s{S_W}, {PW}
          s_and_b32 s{S_RB}, s2, 3
          s_lshl_b32 s{S_RB}, s{S_RB}, 2
          s_bfe_u32 s3, s2, 0x20003
          s_or_b32 s{S_RB}, s{S_RB}, s3
          s_bfe_u32 s{S_CB}, s2, 0x10002
          s_lshl_b32 s{S_CB}, s{S_CB}, 3
          s_lshr_b32 s3, s2, 5
          s_or_b32 s{S_CB}, s{S_CB}, s3
          s_lshl_b32 s{S_R32}, s{S_RB}, 2
          s_add_u32 s{S_R32}, s{S_R32}, s{S_W}
          s_mov_b32 s{S_SPIN}, 0""")
    for r, n in ((R_X, 4 * MB), (R_WQKV, 6 * MB), (R_WS, 256 * MB), (R_WO, 2 * MB), (R_WIN, 7 * MB), (R_WSP, 8 * MB), (R_BSP, 4096), (R_WOUT, 1792 * 2048), (R_OUT, 4 * MB)):
        P(f"s_mov_b32 s{r+2}, {n}\n s_mov_b32 s{r+3}, 0x20000")

def swz_addr(P, d, pitch, scol):
    P(f"""v_lshrrev_b32 v{vt}, 3, v0
          s_lshl_b32 s3, s{S_W}, 4
          v_add_u32 v{vt2}, s3, v{vt}
          v_mul_u32_u24 v{d}, {pitch}, v{vt2}
          v_add_u32 v{d}, s{scol}, v{d}
          v_bfe_u32 v{vt}, v0, 4, 1
          v_bfe_u32 v{vt2}, v0, 1, 2
          v_xor_b32 v{vt}, v{vt}, v{vt2}
          v_lshlrev_b32 v{vt}, 5, v{vt}
          v_and_b32 v{vt2}, 1, v0
          v_lshl_add_u32 v{vt}, v{vt2}, 4, v{vt}
          v_xor_b32 v{vt2}, 64, v{vt}
          v_add_u32 v{vt2}, {8*pitch-1024}, v{vt2}
          v_add_u32 v{d+1}, v{d}, v{vt2}
          v_add_u32 v{d}, v{d}, v{vt}""")

def row_addr(P, d, sbase):
    P(f"""v_lshrrev_b32 v{vt}, 3, v0
          v_and_b32 v{vt2}, 7, v0
          v_xor_b32 v{vt2}, v{vt2}, v{vt}
          v_lshlrev_b32 v{d}, 4, v{vt2}
          v_and_b32 v{vt2}, 3, v{vt}
          v_lshrrev_b32 v{vt}, 2, v{vt}
          v_lshl_add_u32 v{vt2}, v{vt}, 3, v{vt2}
          v_lshl_add_u32 v{d}, v{vt2}, 11, v{d}
          v_add_u32 v{d}, s{sbase}, v{d}""")
    for pc in range(1, 4): P(f"v_add_u32 v{d+pc}, {PIECE_ROW[pc]*2048 - pc*1024}, v{d}")

def xdma(s): return [T(f"buffer_load_dwordx4 v{vXG+pc}, {R(R_X)}, s{S_XO} offen offset:{pc*1024} lds", f'x{s}') for pc in range(4)]
def xadv(): return [f"s_add_u32 s{S_XO}, s{S_XO}, 128", f"s_and_b32 s{S_XO}, s{S_XO}, 0x7ff"]
def m0(off): return f"s_add_u32 m0, s{S_WB}, {off}"
def kvdma(s): return [T(f"buffer_load_dwordx4 v{vWD+rp}, {R(R_WQKV)}, s{S_TAB+s} offen offset:{seg*2048+rp*1024} lds", f'w{s}') for seg in range(2) for rp in range(2)]
def qdma(t): return [T(f"buffer_load_dwordx4 v{vQD+rp}, {R(R_WQKV)}, s{S_TAB+t} offen offset:{rp*1024} lds", f'q{t}') for rp in range(2)]
def kvslot(s): return L_KV + (s % 5) * 4096
def qloc(t):
    if t == 0: return L_QE
    u, e = (t - 1) >> 1, (t - 1) & 1
    return (L_XR + (u >> 1) * 4096 if u % 2 == 0 else kvslot(11 + (u >> 1))) + e * 2048
def xread(s): return [f"ds_read_b128 {ar(s*16+(kk*2+mb)*4,4)}, v{vXL+kk} offset:{L_XR+(s&3)*4096+mb*2048}" for kk in range(2) for mb in range(2)]
def trreads(slot, q, off): return [f"ds_read_b64_tr_b16 {vr(WR+slot*8+kk*4+hf*2,2)}, v{vRB+kk*4+q} offset:{off+hf*512}" for kk in range(2) for hf in range(2)]

def rb_addr(P):
    P(f"""v_lshrrev_b32 v{vt}, 5, v0
          v_mul_u32_u24 v{vt3}, {PW}, v{vt}
          v_bfe_u32 v{vt}, v0, 4, 1
          v_lshl_add_u32 v{vt3}, v{vt}, 10, v{vt3}
          v_bfe_u32 v{vt2}, v0, 2, 2
          v_lshl_add_u32 v{vt3}, v{vt2}, 7, v{vt3}
          v_and_b32 v{vt2}, 3, v0
          v_lshl_add_u32 v{vt3}, v{vt2}, 3, v{vt3}
          v_bfe_u32 v{vt2}, v0, 3, 2
          v_lshl_add_u32 v{vRB}, v{vt2}, 5, v{vt3}""")
    for q in range(1, 4): P(f"v_xor_b32 v{vRB+q}, {q*32}, v{vRB}")
    for q in range(4): P(f"v_add_u32 v{vRB+4+q}, {2*PW}, v{vRB+q}")

def phase1(K):
    P = K.P
    SX = AKV
    P(f"""s_lshl_b32 s{S_A}, s{S_R32A}, 16
          s_lshl_b32 s{S_B}, s{S_CBA}, 7
          s_lshl_b32 s{S_T}, s{S_RBA}, 4
          s_add_u32 s{S_T}, s{S_T}, s{S_CBA}
          s_lshl_b32 s{S_T}, s{S_T}, 2
          s_add_u32 s{S_T}, s{S_T}, s{S_W}
          s_lshl_b32 s{S_D}, s{S_T}, 12
          v_lshrrev_b32 v{vt}, 5, v0
          v_and_b32 v{vt2}, 31, v0
          v_lshlrev_b32 v{vST}, 4, v{vt2}
          v_lshl_add_u32 v{vt3}, v{vt}, 11, v{vST}
          s_lshr_b32 s3, s{S_RBA}, 3
          s_lshl_b32 s{S_XO}, s{S_RBA}, 1
          s_add_u32 s{S_XO}, s{S_XO}, s3
          {[f"s_lshl_b32 s3, s{S_CBA}, 2", f"s_and_b32 s3, s{S_CBA}, 12", f"s_lshl_b32 s3, s{S_CBA}, 3", f"s_mov_b32 s3, s{S_CBA}"][K.r1]}
          s_add_u32 s{S_XO}, s{S_XO}, s3
          s_and_b32 s{S_XO}, s{S_XO}, 15
          s_lshl_b32 s{S_XO}, s{S_XO}, 7""")
    P.wait(lg0=True)
    if PROF: P("s_mov_b32 s99, 0")
    P(f"s_load_dword s{S_E}, s[{R_WS}:{R_WS+1}], {WS_EP}")
    for p in range(4): P(f"buffer_load_dwordx4 {vr(SX+4*p,4)}, v{vt3}, {R(R_X)}, s{S_D} offen offset:{p*512}")
    row_addr(P, vXG, S_A)
    swz_addr(P, vQD, 6144, S_B)
    for rp in range(2): P(f"v_add_u32 v{vWD+rp}, 2048, v{vQD+rp}")
    for s in range(16):
        if s == 0: P(f"s_mul_i32 s{S_TAB}, s{S_XO}, 3072")
        else: P(f"s_add_u32 s3, s{S_XO}, {128*s}\n s_and_b32 s3, s3, 0x7ff\n s_mul_i32 s{S_TAB+s}, s3, 3072")
        if s == 0 or s == 4:
            for j in ([0] if s == 0 else [1, 2, 3, 4]):
                if j < 4:
                    P(m0(L_XR + j * 4096))
                    if j: P(f"s_add_u32 s{S_C}, s{S_XO}, {128*j}\n s_and_b32 s{S_C}, s{S_C}, 0x7ff")
                    for it in xdma(j): emit(P, T(it[1].replace(f's{S_XO} ', f's{S_C} ') if j else it[1], it[2]))
                P(m0(kvslot(j)))
                for it in kvdma(j): emit(P, it)
                if j == 0:
                    P(m0(qloc(0)))
                    for it in qdma(0): emit(P, it)
    P(f"s_add_u32 s{S_XO}, s{S_XO}, 384")
    P(f"""v_and_b32 v{vt}, 7, v0
          v_lshrrev_b32 v{vt2}, 4, v0
          v_xor_b32 v{vt}, v{vt}, v{vt2}
          v_lshlrev_b32 v{vXL}, 4, v{vt}
          v_and_b32 v{vt}, 15, v0
          v_lshl_add_u32 v{vXL}, v{vt}, 7, v{vXL}
          v_add_u32 v{vXL}, s{S_WB}, v{vXL}
          v_xor_b32 v{vXL+1}, 64, v{vXL}
          v_lshlrev_b32 v{vG16}, 4, v{vt2}
          v_lshlrev_b32 v{vJ4}, 2, v{vt}
          s_mul_i32 s3, s{S_W}, 192
          v_add_u32 v{vCW}, s3, v{vJ4}
          s_add_u32 s3, s{S_WB}, {L_ST}
          v_lshl_add_u32 v{vG32}, v{vt2}, 5, s3
          v_lshrrev_b32 v{vSW}, 2, v{vST}
          v_add_u32 v{vSW}, s3, v{vSW}
          v_bfe_u32 v{vt}, v0, 2, 2
          v_and_b32 v{vt2}, 3, v0
          v_lshl_add_u32 v{vt}, v{vt}, 3, v{vt2}
          v_lshl_add_u32 v{vTAU}, v{vt}, 2, s3""")
    rb_addr(P)
    K.attn_addr()
    A = AKV + 16; ONE = AKV + 24
    P(f"v_mov_b32 v{ONE}, 0x3f803f80")
    for i in range(16):
        P(f"v_dot2_f32_bf16 v{A+(i&3)}, v{SX+i}, v{ONE}, {'v%d'%(A+(i&3)) if i > 3 else 0}")
        P(f"v_dot2_f32_bf16 v{A+4+(i&3)}, v{SX+i}, v{SX+i}, {'v%d'%(A+4+(i&3)) if i > 3 else 0}")
    P(f"""s_add_u32 s{S_E}, s{S_E}, 0x9e3779b9
          s_lshl_b32 s{S_T}, s{S_T}, 5
          v_mov_b32 v{V_E}, s{S_E}
          v_add_f32 v{A}, v{A}, v{A+1}
          v_add_f32 v{A+2}, v{A+2}, v{A+3}
          v_add_f32 v{A+4}, v{A+4}, v{A+5}
          v_add_f32 v{A+6}, v{A+6}, v{A+7}
          v_add_f32 v{A}, v{A}, v{A+2}
          v_add_f32 v{A+1}, v{A+4}, v{A+6}
          s_add_u32 s{S_T}, s{S_T}, {WS_ST1}""")
    for n in (8, 4, 2, 1):
        for v in (A, A + 1): P(f"v_add_f32_dpp v{v}, v{v}, v{v} row_ror:{n} row_mask:0xf bank_mask:0xf")
    for l in interleave(xsum(A, A + 2, 16), xsum(A + 1, A + 3, 16)): P(l)
    P(f"""v_mul_f32 v{A}, {f32(-1/1024)}, v{A}
          v_mul_f32 v{A+1}, {f32(1/1024)}, v{A+1}
          v_fma_f32 v{A+1}, -v{A}, v{A}, v{A+1}
          v_max_f32 v{A+1}, 0, v{A+1}
          v_add_f32 v{A+1}, {f32(1e-5)}, v{A+1}
          v_rsq_f32 v{A+1}, v{A+1}
          v_mov_b32 v{A+2}, v{V_E}
          v_mov_b32 v{A+3}, v{V_E}
          v_lshrrev_b32 v{vt}, 1, v0
          v_and_b32 v{vt2}, 31, v0
          v_cmp_eq_u32 vcc, 0, v{vt2}
          v_mov_b32 v{vt2}, {OOB}
          v_cndmask_b32 v{vt}, v{vt2}, v{vt}, vcc
          buffer_store_dwordx4 {vr(A,4)}, v{vt}, {R(R_WS)}, s{S_T} offen sc1""")
    SEL = AKV + 32; CF = AKV + 48; CD = CSK; CA = CSK + 4
    P(f"v_and_b32 v{vt}, 3, v0")
    for i in range(3):
        P(f"""s_mul_i32 s3, s{S_W}, 3
              s_add_u32 s3, s3, {i}
              s_and_b32 s{S_A}, s3, 3
              s_lshl_b32 s{S_A}, s{S_A}, 5
              s_lshr_b32 s3, s3, 2
              s_lshl_b32 s{S_B}, s3, 11
              s_add_u32 s{S_B}, s{S_B}, {L_KV - 2048}
              s_cmp_eq_u32 s3, 0
              s_cselect_b32 s{S_B}, {L_QE}, s{S_B}
              v_xor_b32 v{CA+2*i}, s{S_A}, v{vRB}
              v_add_u32 v{CA+2*i}, s{S_B}, v{CA+2*i}
              v_add_u32 v{CA+2*i+1}, {2*PW}, v{CA+2*i}
              v_cmp_eq_u32 vcc, {i}, v{vt}
              v_cndmask_b32 v{SEL+4*i}, 0, v{ONE}, vcc""")
        for r in range(1, 4): P(f"v_mov_b32 v{SEL+4*i+r}, v{SEL+4*i}")
    P(f"""s_lshl_b32 s{S_A}, s{S_CBA}, 2
          s_add_u32 s{S_A}, s{S_A}, s{S_W}
          s_lshl_b32 s{S_A}, s{S_A}, 12
          s_add_u32 s{S_A}, s{S_A}, {WS_CS1}
          s_lshl_b32 s{S_B}, s{S_RBA}, 8
          s_add_u32 s{S_B}, s{S_B}, s{S_A}
          v_cmp_gt_u32 vcc, 16, v0
          v_cndmask_b32 v{vCS}, v{vt2}, v{V_X}, vcc
          s_lshl_b32 s{S_T}, s{S_R32A}, 9
          s_add_u32 s{S_T}, s{S_T}, {WS_ST1}""")
    stamp(P, 'pre0')
    P.wait(tag='x0')
    for l in xread(0): P(l)
    P.wait(tag='q0'); P("s_barrier")
    stamp(P, 'bar0')
    for i in range(3):
        for kk in range(2):
            for hf in range(2): P(f"ds_read_b64_tr_b16 {vr(CF+(i*2+kk)*4+hf*2,2)}, v{CA+2*i+kk} offset:{hf*512}")
    for i in range(6): P(mf16(CD, vr(SEL + 4 * (i >> 1), 4), vr(CF + 4 * i, 4), '0' if i == 0 else None))
    steps = []
    for s in range(16):
        for nb in range(8): steps.append((s, AKV + nb * 8, nb < 4, nb & 3, kvslot(s) + (nb >> 2) * 2048))
    for t in range(16):
        for q in range(4): steps.append((t, AQ + q * 8, True, q, qloc(t)))
    for i in range(3):
        for l in trreads(i, steps[i][3], steps[i][4]): P(l)
    P(f"v_mov_b32 v{CD+3}, v{V_E}")
    P(f"buffer_store_dwordx4 {vr(CD,4)}, v{vCS}, {R(R_WS)}, s{S_B} offen sc1")
    S = Sched(P, 'p1')
    for i, (s, acc, sw, q, off) in enumerate(steps):
        for mb in range(2):
            for kk in range(2):
                x = ar(s * 16 + (kk * 2 + mb) * 4, 4); w = vr(WR + (i & 3) * 8 + kk * 4, 4)
                c = '0' if s == 0 and kk == 0 else None
                S.add(mf16(acc + mb * 4, w, x, c) if sw else mf16(acc + mb * 4, x, w, c))
        if i + 3 < len(steps):
            for k, l in enumerate(trreads((i + 3) & 3, steps[i + 3][3], steps[i + 3][4])): S.put(4 * i + k, l)
    bar = {8 * s - 4: f'w{s} x{s}' for s in range(1, 16)}
    bar.update({124: 'q6', 128 + 28 - 4: 'q14', 128 + 60 - 4: 'q15'})
    for i in range(len(steps) - 1):
        regs = [vr(WR + ((i + 1) & 3) * 8, 8)]
        if i + 1 < 128 and (i + 1) % 8 == 0: regs.append(ar(steps[i + 1][0] * 16, 16))
        if i in bar: S.tail(4 * i + 3, W(regs, tag=bar[i], lg0=(i == K.csbar)), "s_barrier")
        else: S.tail(4 * i + 3, W(regs))
    for s in range(16):
        b = 32 * s
        if 2 <= s <= 12:
            S.put(b - 2, m0(kvslot(s + 3)))
            for k, it in enumerate(kvdma(s + 3)): S.put(b + 4 * k, it)
        if s >= 13:
            for e in range(2):
                t = 3 + 4 * (s - 13) + e
                S.put(b + 8 * e - 2, m0(qloc(t)))
                for k, it in enumerate(qdma(t)): S.put(b + 8 * e + 4 * k, it)
        if s < 12:
            S.put(b + 9, xadv()[0]); S.put(b + 10, xadv()[1]); S.put(b + 14, m0(L_XR + (s & 3) * 4096))
            for k, it in enumerate(xdma(s + 4)): S.put(b + 16 + 4 * k, it)
        else:
            for e in range(2):
                t = 1 + 4 * (s - 12) + e
                S.put(b + 16 + 8 * e - 2, m0(qloc(t)))
                for k, it in enumerate(qdma(t)): S.put(b + 16 + 8 * e + 4 * k, it)
        if s < 15:
            for g, l in zip(((21, 25, 26, 29), (21, 22, 25, 26), (20, 21, 22, 23))[K.xr], xread(s + 1)): S.put(b + g, l)
    gl = [f"buffer_load_dwordx4 {vr(GT+4*i,4)}, v{V_X}, {R(R_WS)}, s{S_A} offen offset:{i*1024} sc1" for i in range(4)]
    gl.append(f"buffer_load_dwordx4 {vr(GT+16,4)}, v{vST}, {R(R_WS)}, s{S_T} offen sc1")
    chk = [f"v_bitop3_b32 v{vt}, v{GT+3}, v{V_E}, v{GT+7} bitop3:0x7e"] + [f"v_bitop3_b32 v{vt}, v{GT+r}, v{V_E}, v{vt} bitop3:0xbe" for r in (11, 15, 18)] + [f"v_cmp_ne_u32 vcc, 0, v{vt}"]
    S.stream(gl, 32 * GL, 32 * GL + 20)
    e = S.stream(chk, 32 * (GL + 2) + 20, 32 * (GL + 3) + 16, even=False)
    red = [retry(K, 'RT_G1', gl, chk)]
    red += [f"ds_write_b32 v{vSW}, v{GT+16}", f"ds_write_b32 v{vSW}, v{GT+17} offset:128"]
    for a, b_ in ((0, 4), (8, 12), (0, 8)): red += [f"v_add_f32 v{GT+a+r}, v{GT+a+r}, v{GT+b_+r}" for r in range(3)]
    for op in (16, 32): red += interleave(*[xsum(GT + r, GT + 4 + r, op) for r in range(3)])
    red += [f"ds_write_b32 v{vCW}, v{GT+r} offset:{L_CS+r*64}" for r in range(3)]
    e = S.stream(red, e + 3, 4 * K.csbar + 2)
    rd = [f"ds_read2_b32 {vr(NM,2)}, v{vTAU} offset0:0 offset1:4", f"ds_read2_b32 {vr(RS,2)}, v{vTAU} offset0:32 offset1:36"]
    rd += [f"ds_read_b128 {vr(CSK+4*nb,4)}, v{vG16} offset:{L_CS+(4+nb)*64}" for nb in range(4)]
    rd += [f"ds_read_b128 {vr(NMV+4*i,4)}, v{vG32} offset:{(i>>1)*128+(i&1)*16}" for i in range(4)]
    rd += [f"ds_read_b32 v{CSV+nb}, v{vJ4} offset:{L_CS+(8+nb)*64}" for nb in range(4)]
    rd += [f"s_lshl_b32 s{S_A}, s{S_CBA}, 19", f"s_lshl_b32 s3, s{S_R32A}, 12", f"s_add_u32 s{S_A}, s{S_A}, s3", f"s_add_u32 s{S_A}, s{S_A}, {WS_KV}", f"s_add_u32 s{S_B}, s{S_A}, 262144"]
    S.stream(rd, 4 * K.csbar + 4, 504)
    b = 512
    S.put(b + 1, m0(qloc(15)))
    for k, it in enumerate(qdma(15)): S.put(b + 2 + 2 * k, it)
    fl = lines(f"""s_lshl_b32 s{S_T}, s{S_CBA}, 12
          s_lshl_b32 s3, s{S_R32A}, 2
          s_add_u32 s3, s3, {WS_F1}
          s_add_u32 s{S_T}, s{S_T}, s3""")
    S.stream(fl, b + 8, b + 30)
    S.put(b + K.f1send, W(tag='kvst')); S.put(b + K.f1send + 1, f"buffer_atomic_swap v{V_E}, v{vFS}, {R(R_WS)}, s{S_T} offen sc1")
    if K.tb:
        y = lines(f"""s_lshr_b32 s{S_D}, s2, 3
          s_lshl2_add_u32 s{S_D}, s{S_D}, s{S_W}
          s_lshr_b32 s{S_C}, s{S_CB}, 3
          s_lshl4_add_u32 s{S_D}, s{S_D}, s{S_C}
          s_lshl_b32 s{S_D}, s{S_D}, 10
          v_lshrrev_b32 v{GT}, 3, v0
          v_and_b32 v{GT+1}, 7, v0
          v_lshl_add_u32 v{GT}, v{GT}, 11, s{S_D}
          v_lshl_add_u32 v{GT}, v{GT+1}, 7, v{GT}
          v_cmp_gt_u32 vcc, {64 // K.n_tw}, v0
          v_mov_b32 v{vDUM}, {OOB}
          v_cndmask_b32 v{vDUM}, v{vDUM}, v{GT}, vcc
          v_lshlrev_b32 v{GT+1}, 6, v0
          v_lshrrev_b32 v{GT+2}, 1, v0
          v_and_b32 v{GT+3}, 1, v0
          s_lshl_b32 s{S_D}, s{S_R32}, 9
          s_add_u32 s{S_D}, s{S_D}, s{S_CB}
          s_lshl_b32 s{S_D}, s{S_D}, 8
          v_lshl_add_u32 v{GT+3}, v{GT+3}, 7, s{S_D}
          v_lshl_add_u32 v{GT+2}, v{GT+2}, 12, v{GT+3}""")
        S.stream(y, b + 8, b + 31)
        y = [f"buffer_load_dword v{GT+k}, v{GT+k}, {R(r)}, 0 offen" for k, r in enumerate((R_WO, R_BSP, R_WSP)) if K.tb >> k & 1]
        S.stream(y, b + K.f1send + K.tbd, None, even=False)
    z = [f"ds_read_b128 {vr(CSQ+4*nb,4)}, v{vG16} offset:{L_CS+nb*64}" for nb in range(4)]
    z += [f"v_mul_f32 v{RSQ+mb}, {f32(math.log2(math.e)/math.sqrt(32))}, v{RS+mb}" for mb in range(2)]
    z += [f"v_mov_b32 v{r}, 0" for r in list(range(AKV, AKV + 64)) + list(range(CSK, CSK + 16))]
    z += lines(f"""s_lshl_b32 s{S_A}, s{S_CBA}, 4
          s_add_u32 s{S_A}, s{S_A}, s{S_RBA}
          s_lshl_b32 s{S_A}, s{S_A}, 1
          s_lshr_b32 s3, s{S_W}, 1
          s_add_u32 s{S_A}, s{S_A}, s3
          s_lshl_b32 s{S_A}, s{S_A}, 7
          s_add_u32 s{S_A}, s{S_A}, {WS_F1}
          s_lshl_b32 s{S_XO}, s{S_CBA}, 1
          s_and_b32 s{S_B}, s{S_W}, 1
          s_add_u32 s{S_XO}, s{S_XO}, s{S_B}
          s_lshl_b32 s{S_XO}, s{S_XO}, 1
          s_add_u32 s{S_XO}, s{S_XO}, s3
          s_lshl_b32 s{S_XO}, s{S_XO}, 17
          s_add_u32 s{S_XO}, s{S_XO}, {WS_KV}""")
    z += K.passb_extra()
    S.stream(z, b + 32, b + K.f1poll - 2)
    pl = [f"v_mov_b32 v{vPOLL}, 0", f"buffer_atomic_or v{vPOLL}, v{vFP}, {R(R_WS)}, s{S_A} offen sc0 sc1"]
    ck = [f"v_cmp_ne_u32 vcc, v{vPOLL}, v{V_E}", "s_mov_b32 vcc_hi, 0"]
    S.stream(pl, b + K.f1poll - 2, b + K.f1poll + 4, even=False)
    e = S.stream([W([vr(vPOLL)])] + ck, b + K.f1chk, b + K.f1chk + 5, even=False)
    e = S.stream([retry(K, 'RT_F1', pl, ck)], e + 2, e + 4, even=False)
    S.stream(K.kv_first(), e + 1)
    if K.xp:
        for x in S.s[:512]:
            def keep(it):
                t = itext(it)
                if K.xp & 1 and 'lds' in t and f'{R(R_X)}' in t: return False
                if K.xp & 2 and 'lds' in t and f'{R(R_WQKV)}' in t: return False
                if K.xp & 4 and t.startswith('ds_read_b128 a'): return False
                if K.xp & 8 and t.startswith('ds_read_b64_tr'): return False
                if K.xp & 16 and t.startswith('s_barrier'): return False
                return True
            x['post'] = [i for i in x['post'] if keep(i)]; x['tail'] = [i for i in x['tail'] if keep(i)]
    S.emit(0, 512)
    stamp(P, 'pa1')
    def pack(a0, a1): return [f"v_cvt_pk_bf16_f32 v{a0}, v{a0}, v{a0+1}", f"v_cvt_pk_bf16_f32 v{a0+1}, v{a0+2}, v{a0+3}",
                              f"v_cvt_pk_bf16_f32 v{a0+2}, v{a1}, v{a1+1}", f"v_cvt_pk_bf16_f32 v{a0+3}, v{a1+2}, v{a1+3}"]
    def swapped(acc, cs, rs, hh, mb):
        aa = [(acc + (2 * hh + e) * 8 + mb * 4 + 2 * i, cs + (2 * hh + e) * 4 + 2 * i) for e in range(2) for i in range(2)]
        for a, c in aa: P(pk('fma', a, bc(NM + mb), pr(c), pr(a)))
        for a, c in aa: P(pk('mul', a, pr(a), bc(rs + mb)))
        for l in pack(aa[0][0], aa[2][0]): P(l)
        return aa[0][0]
    for hh in range(2):
        for mb in range(2):
            t = swapped(AKV, CSK, RS, hh, mb)
            P(f"buffer_store_dwordx4 {vr(t,4)}, v{V_X}, {R(R_WS)}, s{S_B if hh else S_A} offen offset:{mb*1024} sc1", tag='kvst')
    for nb in range(4):
        a = AKV + 32 + nb * 8
        for i in range(4): P(pk('fma', a + 2 * i, pr(NMV + 2 * i), bc(CSV + nb), pr(a + 2 * i)))
        for i in range(4): P(pk('mul', a + 2 * i, pr(a + 2 * i), pr(RSV + 2 * i)))
        for l in pack(a, a + 4): P(l)
        P(f"buffer_store_dwordx4 {vr(a,4)}, v{V_X}, {R(R_WS)}, s{S_B if nb >> 1 else S_A} offen offset:{2048+(nb&1)*1024} sc1", tag='kvst')
    S.emit(512)
    stamp(P, 'pb1')
    P(f"v_add_u32 v{vt}, s{S_WB}, v{V_X}")
    if DBG: P(f"s_lshl_b32 s{S_A}, s{S_CBA}, 18\n s_lshl_b32 s3, s{S_R32A}, 11\n s_add_u32 s{S_A}, s{S_A}, s3\n s_add_u32 s{S_A}, s{S_A}, {WS_DQ}\n s_add_u32 s{S_B}, s{S_A}, 131072")
    for hh in range(2):
        for mb in range(2):
            t = swapped(AQ, CSQ, RSQ, hh, mb)
            P(f"ds_write_b128 v{vt}, {vr(t,4)} offset:{L_QX+hh*2048+mb*1024}")
            if DBG: P(f"buffer_store_dwordx4 {vr(t,4)}, v{V_X}, {R(R_WS)}, s{S_B if hh else S_A} offen offset:{mb*1024}")
    P.wait(lg0=True); P("s_barrier")
```

```python
from p1 import *

SB, OB, LB = 176, 64, 160
aQ, aKV, aSP, aIN, aOUT = 0, 32, 160, 192, 224
SEL, IDX, ONES, CM, XR = 32, 36, 40, 44, 48
CD = 128
vFC, vL4, vEW, vER, vXO, vF2, vVO, vVW = 6, 7, 8, 9, 10, 11, 12, 13
L_SC = 30720
L_WOUT = 26624
S_KB, S_RHO, S_PASS = 51, 52, 53
S0, S1, S2, S3, S4, S5, S6 = 54, 55, 56, 57, 58, 59, 60
S_O, S_WO, S_LINE = 61, 62, 63
S_XB = 64

def attn_addr(K):
    P = K.P
    P(f"""v_lshrrev_b32 v{vt}, 5, v0
          v_lshlrev_b32 v{vt3}, 8, v{vt}
          v_bfe_u32 v{vt}, v0, 2, 1
          v_lshl_add_u32 v{vK}, v{vt}, 10, v{vt3}
          v_lshl_add_u32 v{vV}, v{vt}, 7, v{vt3}
          v_bfe_u32 v{vt}, v0, 3, 2
          v_lshl_add_u32 v{vK}, v{vt}, 6, v{vK}
          v_and_b32 v{vt}, 3, v0
          v_lshl_add_u32 v{vK}, v{vt}, 4, v{vK}
          v_lshl_add_u32 v{vV}, v{vt}, 4, v{vV}
          v_bfe_u32 v{vt}, v0, 3, 1
          v_lshl_add_u32 v{vV}, v{vt}, 6, v{vV}
          v_bfe_u32 v{vt}, v0, 4, 1
          v_lshl_add_u32 v{vV}, v{vt}, 10, v{vV}
          v_lshl_add_u32 v{vO}, v{vt}, 10, v{vt3}
          v_and_b32 v{vt}, 15, v0
          v_lshl_add_u32 v{vO}, v{vt}, 4, v{vO}
          v_min_u32 v{vt}, 13, v{vt}
          v_lshlrev_b32 v{vWIN}, 4, v{vt}
          v_lshrrev_b32 v{vt}, 4, v0
          v_mul_u32_u24 v{vt2}, 7168, v{vt}
          v_add_u32 v{vWIN}, v{vWIN}, v{vt2}
          v_lshlrev_b32 v{vSP}, 4, v{vt}
          v_bfe_u32 v{vt}, v0, 2, 2
          v_lshl_add_u32 v{vSP}, v{vt}, 15, v{vSP}
          v_and_b32 v{vt}, 3, v0
          v_lshl_add_u32 v{vSP}, v{vt}, 12, v{vSP}
          v_lshl_add_u32 v{vt}, v{vt}, 3, s{S_WB}
          v_lshrrev_b32 v{vt2}, 2, v0
          v_lshl_add_u32 v{vTIN}, v{vt2}, 8, v{vt}
          v_lshl_add_u32 v{vTOUT}, v{vt2}, 7, v{vt}
          v_lshrrev_b32 v{vt}, 3, v0
          v_and_b32 v{vt2}, 7, v0
          v_lshlrev_b32 v{vt2}, 4, v{vt2}
          v_lshl_add_u32 v{vWOUT}, v{vt}, 11, v{vt2}
          s_and_b32 s3, s{S_W}, 1
          s_lshl_b32 s3, s3, 11
          s_lshr_b32 s{S_A}, s{S_W}, 1
          s_mul_i32 s{S_A}, s{S_A}, {2*PW}
          s_add_u32 s{S_B}, s{S_A}, s3
          v_add_u32 v{vQ1}, s{S_B}, v{vO}
          s_sub_u32 s{S_B}, s3, s{S_A}
          s_add_u32 s{S_B}, s{S_B}, {2*PW}
          v_add_u32 v{vQ0}, s{S_B}, v{vO}
          v_mov_b32 v{vt2}, {OOB}
          v_cmp_gt_u32 vcc, 16, v0
          v_lshlrev_b32 v{vt}, 8, v0
          v_cndmask_b32 v{vFS}, v{vt2}, v{vt}, vcc
          v_cmp_gt_u32 vcc, 32, v0
          v_lshlrev_b32 v{vt}, 2, v0
          v_cndmask_b32 v{vFP}, v{vt2}, v{vt}, vcc
          s_lshl_b32 s{S_A}, s{S_CB}, 7""")
    swz_addr(P, vWO, 2048, S_A)

def passb_extra(K):
    return lines(f"""v_mov_b32 v{vt2}, {OOB}
          v_cmp_gt_u32 vcc, 16, v0
          v_lshlrev_b32 v{vt}, 13, v0
          v_cndmask_b32 v{vFC}, v{vt2}, v{vt}, vcc
          v_lshlrev_b32 v{vt}, 7, v0
          v_cmp_gt_u32 vcc, 32, v0
          v_lshlrev_b32 v{vL4}, 2, v0
          v_cndmask_b32 v{vF2}, v{vt2}, v{vt}, vcc
          v_add_u32 v{vEW}, s{S_WB}, v{V_X}
          s_xor_b32 s{S_D}, s{S_W}, 2
          s_mul_i32 s{S_D}, s{S_D}, {PW}
          v_add_u32 v{vER}, s{S_D}, v{V_X}
          v_and_b32 v{vt}, 3, v0
          v_lshl_add_u32 v{vVO}, v{vt}, 4, s{S_WB}
          s_lshl_b32 s{S_D}, s{S_W}, 4
          v_mul_u32_u24 v{vVW}, {PW}, v{vt}
          v_add_u32 v{vVW}, s{S_D}, v{vVW}
          v_lshlrev_b32 v{vXO}, 11, v{vt}
          v_bfe_u32 v{vt}, v0, 2, 2
          v_lshl_add_u32 v{vXO}, v{vt}, 14, v{vXO}
          v_bfe_u32 v{vt}, v0, 4, 1
          v_lshl_add_u32 v{vXO}, v{vt}, 5, v{vXO}
          v_lshrrev_b32 v{vt}, 5, v0
          v_lshl_add_u32 v{vXO}, v{vt}, 4, v{vXO}
          {[f"s_lshl1_add_u32 s{S_RHO}, s{S_RB}, s{S_CB}", f"s_mov_b32 s{S_RHO}, s2", f"s_mov_b32 s{S_RHO}, s{S_RB}", f"s_lshl2_add_u32 s{S_RHO}, s{S_CB}, s{S_RB}"][K.r3]}
          s_and_b32 s{S_RHO}, s{S_RHO}, 7
          s_mov_b32 s{S_PASS}, 0
          s_lshl_b32 s{S_LINE}, s{S_R32}, 4
          s_add_u32 s{S_LINE}, s{S_LINE}, s{S_CB}
          s_lshl_b32 s{S_LINE}, s{S_LINE}, 7
          s_lshl_b32 s{S_XB}, s{S_R32}, 16
          s_lshl_b32 s{S_D}, s{S_CB}, 7
          s_add_u32 s{S_XB}, s{S_XB}, s{S_D}""")

def kreg(kt, c): return ar(aKV + (kt & 7) * 16 + c * 4, 4)
def vreg(kt, u): return ar(aKV + (kt & 7) * 16 + 8 + u * 4, 4)
def kload(kt): return [f"buffer_load_dwordx4 {kreg(kt,c)}, v{vK}, {R(R_WS)}, s{S_XO} offen offset:{c*512} sc1" for c in range(2)]
def vload(kt): return [f"buffer_load_dwordx4 {vreg(kt,u)}, v{vV}, {R(R_WS)}, s{S_XO} offen offset:{2048+u*512} sc1" for u in range(2)]
KADV = f"s_add_u32 s{S_XO}, s{S_XO}, 4096"
NF = 4
def kv_first(K):
    r = [f"s_mov_b32 s{S_KB}, s{S_XO}"]
    for kt in range(NF): r += kload(kt) + vload(kt) + [KADV]
    return r
def qk(n, c): return mf32(SB + (n & 3) * 16, kreg(n >> 2, c), ar(aQ + ((n & 3) * 2 + c) * 4, 4), '0' if c == 0 else None)
def pv(n, u): return f"v_smfmac_f32_32x32x32_bf16 {vr(OB+(n&3)*16,16)}, {vreg(n>>2,u)}, {vr(SB+(n&3)*16+u*8,8)}, v{IDX}"
def sm(n, u): return f"v_smfmac_f32_16x16x64_bf16 {vr(LB+(n&3)*4,4)}, {vr(SEL,4)}, {vr(SB+(n&3)*16+u*8,8)}, v{IDX}"
def exw(t): return [f"ds_write_b128 v{vEW}, {vr(OB+t*16+q*4,4)} offset:{L_SC+(t*4+q)*1024}" for q in range(4)] + [f"ds_write_b32 v{vEW}, v{LB+t*4} offset:{L_SC+8192+t*4}"]
LP = CM
def exr(): return [f"ds_read_b64 {vr(LP,2)}, v{vER} offset:{L_SC+8192}"] + [f"ds_read_b128 {vr(SB+q*4,4)}, v{vER} offset:{L_SC+q*1024}" for q in range(8)]
def wodma(s, off):
    return [m0(off), G(*[T(f"buffer_load_dwordx4 v{vWO+rp}, {R(R_WO)}, s{S_WO} offen offset:{rp*1024} lds", f'wo{s}') for rp in range(2)]),
            f"s_add_u32 s{S_WO}, s{S_WO}, 131072", f"s_and_b32 s{S_WO}, s{S_WO}, 0x1fffff"]
def woloc(s): return s * 2048
def AT(n): return ('at', n)
def ST(regs, va, so, off, tag, w='x4'): return T(f"buffer_store_dword{w} {regs}, v{va}, {R(R_WS)}, s{so} offen offset:{off} sc1", tag)

def jobs(K):
    U2, U3, UT = 65, 66, 67
    class Pace:
        def __init__(self, t, d): self.t = t * 2; self.d = d
        def __call__(self): r = AT(self.t // 2); self.t += self.d; return r
    J = []; pl_ = Pace(K.t_in, K.d_l)
    J += lines(f"""s_lshr_b32 s{S0}, s{S_RB}, 1
          s_lshl2_add_u32 s{S0}, s{S0}, s{S_W}
          s_and_b32 s{S1}, s{S_RB}, 1
          s_mul_i32 s{S2}, s{S0}, {32*7168}
          s_mul_i32 s3, s{S1}, 3584
          s_add_u32 s{S2}, s{S2}, s3
          s_mul_i32 s3, s{S_CB}, 224
          s_add_u32 s{S2}, s{S2}, s3""")
    for p in range(8):
        if p: J.append(f"s_add_u32 s{S2}, s{S2}, {28672 + (3072 if p == 4 else -1024)}")
        J += [pl_(), G(m0(L_SC + (p >> 2) * 4096), T(f"buffer_load_dwordx4 v{vWIN}, {R(R_WIN)}, s{S2} offen offset:{(p&3)*1024} lds", 'win'))]
    J += lines(f"""s_cmp_ge_u32 s{S_RB}, 14
          s_cselect_b32 s3, 2, 0
          s_sub_u32 s{S5}, s{S_RB}, s3
          s_lshl2_add_u32 s{S5}, s{S5}, s{S_W}
          s_mul_i32 s{S2}, s{S5}, 37
          s_lshr_b32 s{S2}, s{S2}, 8
          s_mul_i32 s3, s{S2}, 7
          s_sub_u32 s{S3}, s{S5}, s3
          s_mul_i32 s{S2}, s{S2}, 224
          s_lshl_b32 s{S6}, s{S3}, 5
          s_cmp_ge_u32 s{S3}, 3
          s_cselect_b32 s3, 16, 0
          s_add_u32 s{S6}, s{S6}, s3
          s_cmp_eq_u32 s{S3}, 6
          s_cselect_b32 s{S6}, 96, s{S6}
          s_cselect_b32 s3, {96*2048}, 0
          s_add_u32 s3, s3, 15360
          s_add_u32 s{S2}, s{S2}, s{S6}
          s_lshl_b32 s{S2}, s{S2}, 11
          s_lshl_b32 s{S6}, s{S_CB}, 7
          s_add_u32 s{S2}, s{S2}, s{S6}""")
    for p in range(4):
        if p: J.append(f"s_add_u32 s{S2}, s{S2}, {'s3' if p == 2 else 15360}")
        J += [pl_(), G(m0(L_WOUT), T(f"buffer_load_dwordx4 v{vWOUT}, {R(R_WOUT)}, s{S2} offen offset:{p*1024} lds", 'wout'))]
    J += lines(f"""s_lshl_b32 s{S4}, s{S_R32}, 17
          s_lshl_b32 s3, s{S_CB}, 8
          s_add_u32 s{S2}, s{S4}, s3
          s_add_u32 s{S3}, s{S2}, 16384""")
    for mb in range(2):
        for kb in range(0, 4, 2):
            J += [pl_(), G(*[f"buffer_load_dwordx4 {ar(aSP+((kb+e)*2+mb)*4,4)}, v{vSP}, {R(R_WSP)}, s{S2+mb} offen offset:{(kb+e)*64}" for e in range(2)])]; pl_()
    J.append(f"s_add_u32 s{S2}, s{S_XB}, 8192")
    for mb in range(2):
        J += [pl_(), G(*[f"buffer_load_dwordx4 {vr(XR+(mb*2+p)*4,4)}, v{vXO}, {R(R_X)}, s{S2 if mb else S_XB} offen offset:{p*64}" for p in range(2)])]; pl_()
    J2 = []
    if K.t_tw:
        for p in range(K.n_tw): J2 += [f"s_mov_b32 s{S_WO}, {p * 16384 // K.n_tw}", AT(K.t_tw + p * K.d_tw), f"buffer_load_dword v{vPOLL}, v{vDUM}, {R(R_WO)}, s{S_WO} offen"]
    J2 += [AT(K.t_wo), f"s_lshl_b32 s{S_WO}, s{S_RHO}, 18"]
    for s in range(15):
        w = wodma(s, woloc(s)); J2 += [AT(K.t_wo + (s * K.d_wo) // 2), G(w[0], *w[1][1])] + w[2:]
    ps = Pace(K.t_out, K.d_s)
    JS = [AT(K.t_out - 4)] + lines(f"""s_lshl1_add_u32 s{UT}, s{S_CB}, s{S1}
          s_lshl_b32 s{UT}, s{UT}, 5
          s_add_u32 s{UT}, s{UT}, s{S0}
          s_mul_i32 s{U2}, s{UT}, 7168
          s_add_u32 s{U2}, s{U2}, {WS_WIN}
          s_add_u32 s{U3}, s{U2}, 4096""")
    JS += [AT(K.t_out - 2), W(tag='win')]
    rd = lambda nb: [G(*[f"ds_read_b64_tr_b16 {ar(aIN+nb*4+hf*2,2)}, v{vTIN} offset:{L_SC+hf*4096+nb*32}" for hf in range(2)])]
    JS += rd(0)
    for nb in range(7):
        JS += [ps(), G(W([ar(aIN + nb * 4, 4)]), ST(ar(aIN + nb * 4, 4), V_X, U2 + (nb >> 2), (nb & 3) * 1024, 'pt'), mf16(CD + nb * 4, vr(ONES, 4), ar(aIN + nb * 4, 4), '0'))]
        if nb + 1 < 7: JS += rd(nb + 1)
    JS += lines(f"""s_lshl2_add_u32 s{UT}, s{S_CB}, s{S_W}
          s_lshl4_add_u32 s{UT}, s{UT}, s{S_RB}
          s_lshl_b32 s{UT}, s{UT}, 9
          s_add_u32 s{U3}, s{UT}, {WS_CSP}
          s_mul_i32 s{U2}, s{S_CB}, 56
          s_add_u32 s{U2}, s{U2}, s{S5}
          s_lshl_b32 s{U2}, s{U2}, 12
          s_add_u32 s{U2}, s{U2}, {WS_WOUT}""")
    JS.append(G(*[f"v_mov_b32_dpp v{CD+(nb>>2)*16}, v{CD+nb*4} quad_perm:[0,1,2,3] row_mask:{hex(1<<(nb&3))} bank_mask:0xf" for nb in (1, 5, 2, 6, 3)]))
    rd = lambda nb: [G(*[f"ds_read_b64_tr_b16 {ar(aOUT+nb*4+hf*2,2)}, v{vTOUT} offset:{L_WOUT+hf*2048+nb*32}" for hf in range(2)])]
    JS += [W(tag='wout')] + rd(0) + [G(ST(vr(CD), vL4, U3, 0, 'pt', ''), ST(vr(CD + 16), vL4, U3, 256, 'pt', ''))]
    for nb in range(4):
        JS += [ps(), G(W([ar(aOUT + nb * 4, 4)]), ST(ar(aOUT + nb * 4, 4), V_X, U2, nb * 1024, 'pt'))]
        if nb + 1 < 4: JS += rd(nb + 1)
    JS += lines(f"""s_lshl_b32 s{UT}, s{S_CB}, 13
          s_add_u32 s{U2}, s{S4}, s{UT}
          s_add_u32 s{U2}, s{U2}, {WS_WSP}
          s_add_u32 s{U3}, s{U2}, 4096
          s_lshl4_add_u32 s{S0}, s{S_W}, s{S_CB}
          s_lshl_b32 s{S0}, s{S0}, 7
          s_lshl2_add_u32 s{S0}, s{S_RB}, s{S0}
          s_add_u32 s{S0}, s{S0}, {WS_FP}""")
    for i in range(8):
        JS += [ps(), ST(ar(aSP + i * 4, 4), V_X, U2 + (i >> 2), (i & 3) * 1024, 'sp')]
        if i == K.i_fp: JS.append(G(W(tag='pt'), f"buffer_atomic_swap v{V_E}, v{vFC}, {R(R_WS)}, s{S0} offen sc1"))
    J += [AT(K.t_fp - 8)] + lines(f"""s_lshr_b32 s3, s{S_W}, 1
          s_lshl1_add_u32 s{S4}, s{S_RBA}, s3
          s_and_b32 s3, s{S_W}, 1
          s_lshl1_add_u32 s{S5}, s{S_CBA}, s3
          s_lshl_b32 s{S_O}, s{S4}, 17
          s_lshl_b32 s3, s{S5}, 11
          s_add_u32 s{S_O}, s{S_O}, s3
          s_add_u32 s{S_O}, s{S_O}, {WS_O}
          s_lshl_b32 s{S4}, s{S4}, 12
          s_lshl2_add_u32 s{S4}, s{S5}, s{S4}
          s_add_u32 s{S4}, s{S4}, {WS_F2}
          s_add_u32 s{S5}, s{S_O}, 65536
          s_add_u32 s{S1}, s{S_LINE}, {WS_FP}
          s_lshl2_add_u32 s3, s{S_CB}, s{S_W}
          s_lshl_b32 s3, s3, 13
          s_add_u32 s{S2}, s3, {WS_CSP}
          s_add_u32 s{S3}, s{S2}, 4096""")
    pl = [f"v_mov_b32 v{vPOLL}, 0", f"buffer_atomic_or v{vPOLL}, v{vFP}, {R(R_WS)}, s{S1} offen sc0 sc1"]
    ck = [f"v_cmp_ne_u32 vcc, v{vPOLL}, v{V_E}", "s_and_b64 vcc, vcc, 0xffff"]
    J += [AT(K.t_fp), G(*pl), AT(K.t_fp + 8), G(W([vr(vPOLL)]), ck[0]), ck[1], retry(K, 'RT_FP', pl, ck)]
    for p in range(4):
        J.append(G(*[f"buffer_load_dwordx4 {vr(CD+(2*p+e)*4,4)}, v{V_X}, {R(R_WS)}, s{S2+(p>>1)} offen offset:{((2*p+e)&3)*1024} sc1" for e in range(2)]))
    return J, JS, J2

def phase2(K):
    P = K.P
    for t in range(4):
        for c in range(2): P(f"ds_read_b128 {ar(aQ+(t*2+c)*4,4)}, v{vQ0+(t>>1)} offset:{(t&1)*PW+L_QX+c*512}")
    P(f"""v_bfe_u32 v{vt}, v0, 2, 1
          v_mov_b32 v{ONES}, 0x3f803f80
          v_cmp_eq_u32 vcc, 0, v{vt}
          v_mov_b32 v{IDX}, 0xdddddddd
          v_mov_b32 v{ONES+1}, v{ONES}
          v_cndmask_b32 v{SEL}, 0, v{ONES}, vcc
          v_cndmask_b32 v{SEL+2}, v{ONES}, 0, vcc
          v_mov_b32 v{ONES+2}, v{ONES}
          v_mov_b32 v{ONES+3}, v{ONES}
          v_mov_b32 v{SEL+1}, v{SEL}
          v_mov_b32 v{SEL+3}, v{SEL+2}""")
    for n in range(2):
        for c in range(2): P(qk(n, c))
    stamp(P, 'at0')
    JJ = jobs(K)
    if K.nojobs:
        JJ = ([x for x in JJ[0] if isinstance(x, str) and x.startswith('s_')], [], [])
        K.ool.pop()
    fixed = {}
    def fx(n, pos, *items): fixed.setdefault((n, pos), []).extend(items)
    for kt in range(NF, 8):
        n = kt - NF
        fx(n, 2, *kload(kt)); fx(n, 5, *vload(kt)); fx(n + 1, 0, KADV)
    for kt in range(8, 32 if K.nojobs < 2 else 8):
        n = 4 * (kt - 8)
        if kt == 8: fx(4, 2, *kload(kt))
        else: fx(n + 2, 5, *kload(kt))
        fx(n + 4, 5, *vload(kt)); fx(n + 5, 4, KADV)
    for kt in range(1, 32): fx(4 * kt - 3, 5, W([ar(aKV + (kt & 7) * 16, 16)]))
    fx(0, 4, W(lg0=True)); fx(5, 2, "s_barrier")
    for t in range(2):
        w = exw(t); fx(126 + t, 1, *w[:2]); fx(126 + t, 4, *w[2:4]); fx(126 + t, 5, w[4])
    issalu = lambda it: (itext(it).startswith('s_') and 'buffer' not in str(it)) or (not isinstance(it, str) and it[0] == 'fn')
    last = 0; log = []
    for n in range(128):
        ms = [pv(n - 1, 0), qk(n + 2, 0), sm(n - 1, 0), pv(n - 1, 1), qk(n + 2, 1), sm(n - 1, 1)]
        e = 0
        stamp(P, f't{n}')
        for pos, ne in enumerate((3, 3, 2, 3, 3, 2)):
            if not ((n == 0 and pos % 3 != 1) or (n >= 126 and pos % 3 == 1)): P(ms[pos])
            f = fixed.get((n, pos), [])
            for it in f: emit(P, it)
            for J in JJ[::-1]:
                while J and not isinstance(J[0], str) and J[0][0] == 'at' and J[0][1] <= n: J.pop(0)
                if J and not f and (isinstance(J[0], str) or J[0][0] != 'at'):
                    if issalu(J[0]) or pos % 3 == 2:
                        it = J.pop(0); emit(P, it); last = n; f = [it]
                        if 'buffer' in str(it) or 'tag' in str(it): log.append(f"{n}:{re.findall(r'buffer_(.....).*?, (s.[0-9]+)', str(it))[:1] or 'W'}")
            for i in range(ne):
                r = SB + (n & 3) * 16 + e; e += 1
                P(f"v_exp_f32 v{r}, v{r}")
    assert not any(JJ)
    print(re.sub(r"[\[\]'() ,]", '', ';'.join(log)).replace(';', ' '))
    print('  attention jobs end at tile', last)
    stamp(P, 'at1')
    P.wait(lg0=True); P("s_barrier")
    for l in exr(): P(l)
    for l in (pv(127, 0), sm(127, 0), pv(127, 1), sm(127, 1)): P(l)
    P.label('AT_FIN')
    RC, CH = CM + 2, SB + 32
    for a in range(2):
        o = OB + (2 + a) * 16; r = SB + a * 16; l = LB + (2 + a) * 4
        P(f"v_add_f32 v{LP+a}, v{LP+a}, v{l}")
        for i in range(4): P(pk('add', o + 2 * i, pr(o + 2 * i), pr(r + 2 * i)))
        P(f"v_rcp_f32 v{RC+a}, v{LP+a}")
        for i in range(4, 8): P(pk('add', o + 2 * i, pr(o + 2 * i), pr(r + 2 * i)))
        for c in range(2):
            for i in range(4): P(pk('mul', o + c * 8 + 2 * i, pr(o + c * 8 + 2 * i), bc(RC + a)))
            for i in range(4): P(f"v_cvt_pk_bf16_f32 v{r+c*4+i}, v{o+c*8+2*i}, v{o+c*8+2*i+1}")
            emit(P, ST(vr(r + c * 4, 4), vO, S5 if a else S_O, c * 512, 'ost'))
    for a in range(2):
        for c in range(2): P(mf16(CH, vr(ONES, 4), vr(SB + a * 16 + c * 4, 4), '0' if a + c == 0 else None))
    P(f"""v_min_f32 v{vt}, v{LP}, v{LP+1}
          v_max_f32 v{vt2}, v{LP}, v{LP+1}
          v_cmp_nle_f32 vcc, {f32(2.0**-40)}, v{vt}
          s_mov_b64 s[{S_A}:{S_A+1}], vcc
          v_cmp_nge_f32 vcc, {f32(2.0**64)}, v{vt2}
          s_or_b64 s[{S_A}:{S_A+1}], s[{S_A}:{S_A+1}], vcc
          v_cmp_u_f32 vcc, v{LP}, v{LP+1}
          s_or_b64 s[{S_A}:{S_A+1}], s[{S_A}:{S_A+1}], vcc
          v_mov_b32 v{vt}, 0x207
          v_cmp_class_f32 vcc, v{CH}, v{vt}
          s_or_b64 s[{S_A}:{S_A+1}], s[{S_A}:{S_A+1}], vcc
          s_cselect_b32 s3, 1, 0
          v_mov_b32 v{vt}, s3
          ds_write_b32 v{vVW}, v{vt} offset:{L_SC+8192+8}""")
    P.wait(lg0=True, tag='wo14')
    P(f"""s_barrier
          ds_read_b32 v{vt}, v{vVO} offset:{L_SC+8192+8}
          v_cmp_lt_u32 vcc, s{S_PASS}, v{vt}""")
    P("s_cbranch_vccnz AT_FB")
    def fb():
        M = 24
        P.label('AT_FB')
        P(f"s_mov_b32 s{S_PASS}, 1\n s_mov_b32 s{S_XO}, s{S_KB}\n s_mov_b32 s{S6}, 0")
        for t in range(4): P(f"v_mov_b32 v{M+t}, 0xff800000")
        P.label('AT_FB1')
        for l in kload(0): P(l)
        P(KADV); P(f"s_add_u32 s{S6}, s{S6}, 1\n s_cmp_lt_u32 s{S6}, 32")
        for t in range(4):
            for c in range(2): P(qk(t, c))
        for t in range(4):
            for j in range(8): P(f"v_max3_f32 v{M+t}, v{M+t}, v{SB+t*16+2*j}, v{SB+t*16+2*j+1}")
        P("s_cbranch_scc1 AT_FB1", trips=2)
        for t in range(4): P(f"v_mov_b32 v{vt}, v{M+t}\n v_permlane32_swap_b32 v{vt}, v{M+t}\n v_max_f32 v{M+t}, v{vt}, v{M+t}")
        P(f"ds_write_b128 v{vEW}, {vr(M,4)} offset:{L_SC+9216}")
        P.wait(lg0=True); P("s_barrier")
        P(f"ds_read_b128 {vr(M+4,4)}, v{vER} offset:{L_SC+9216}")
        for r in list(range(OB, OB + 64)) + list(range(LB, LB + 16)): P(f"v_mov_b32 v{r}, 0")
        for t in range(4): P(f"v_max_f32 v{M+t}, v{M+t}, v{M+4+(t^2)}")
        P(f"s_mov_b32 s{S_XO}, s{S_KB}\n s_mov_b32 s{S6}, 0")
        P.label('AT_FB2')
        for l in kload(0) + vload(0): P(l)
        P(KADV); P(f"s_add_u32 s{S6}, s{S6}, 1\n s_cmp_lt_u32 s{S6}, 32")
        for t in range(4):
            for c in range(2): P(qk(t, c))
        for t in range(4):
            for j in range(16): P(f"v_sub_f32 v{SB+t*16+j}, v{SB+t*16+j}, v{M+t}")
            for j in range(16): P(f"v_exp_f32 v{SB+t*16+j}, v{SB+t*16+j}")
            for l in (pv(t, 0), sm(t, 0), pv(t, 1), sm(t, 1)): P(l)
        P("s_cbranch_scc1 AT_FB2", trips=2)
        for t in range(2):
            for l in exw(t): P(l)
        P.wait(lg0=True); P("s_barrier")
        for l in exr(): P(l)
        P("s_branch AT_FIN")
    K.ool.append(fb)
    stamp(P, 'vote')
```

```python
from p2 import *

L_CSP = 32768
L_CSF, L_K, L_Z = 0, 1024, 1536
L_RING, SLOT = 5120, 7168
def slot(T): return L_RING + ((T + 4) % 5) * SLOT
ACC3, HR = 64, 176
vX4 = 13
vLR = [V_X, 14, 15, 24]
vTH, vTW, vTZ, vTS, vTU, vTO, vT3 = 25, 26, 27, 28, 29, 30, 31
vFR, vF5, vHS, vZS, vJ, vG, vZW, vB = 240, 241, 242, 243, 244, 245, 249, 250
S_SA, S_SW = 50, 51
SA, SW = [50, 66], [51, 67]
S_M = 54
S7, S8, S9, S10, S11 = 53, 60, 61, 62, 65
def RL(s, v, lane): return f"v_readlane_b32 s{s}, v{v}, {lane}"
def wdma(T):
    tab, ln = (vTW, T) if T < 16 else ((vTZ, T - 16) if T < 32 else (vTU, T - 32))
    d = [T_(f"buffer_load_dwordx4 v{vX4 if p >= 4 else V_X}, {R(R_WS)}, s{SW[T&1]} offen offset:{(p&3)*1024} sc1 lds", f'ring{T}') for p in range(7)]
    return [RL(SW[T & 1], tab, ln), m0(slot(T))] + d[:4] + [m0(slot(T) + 4096)] + d[4:]
T_ = T
def poll(so): return [f"v_mov_b32 v{vPOLL}, 0", f"buffer_atomic_or v{vPOLL}, v{vFP}, {R(R_WS)}, s{so} offen sc0 sc1"]
def pchk(n): return [f"v_cmp_ne_u32 vcc, v{vPOLL}, v{V_E}", "s_mov_b32 vcc_hi, 0" if n == 32 else f"s_and_b64 vcc, vcc, {hex((1<<n)-1)}"]
def send(va, so): return f"buffer_atomic_swap v{V_E}, v{va}, {R(R_WS)}, s{so} offen sc1"

def rot(d, mode, sh):
    if mode == 1: return f"s_lshr_b32 s{d}, s{S_RB}, 2"
    if mode == 2: return f"s_lshr_b32 s{d}, s{S_CB}, {sh}\n s_add_u32 s{d}, s{d}, s{S_RB}"
    if mode == 3: return f"s_lshr_b32 s{d}, s{S_CB}, {sh}\n s_add_u32 s{d}, s{d}, s{S_RB}\n s_lshl_b32 s{d}, s{d}, 1\n s_lshr_b32 s3, s{S_RB}, 2\n s_add_u32 s{d}, s{d}, s3"
    if mode == 4: return f"s_mov_b32 s{d}, s{S_RB}"
    if mode == 5: return f"s_lshr_b32 s{d}, s{S_CB}, {sh}"
    if mode == 6: return f"s_mov_b32 s{d}, 0"
def order8(mode, sh):
    a, b = vt, vt2
    if mode == 0: return f"v_add_u32 v{a}, s{S_RHO}, v0\n v_and_b32 v{vt3}, 7, v{a}"
    return rot(S8, mode, sh) + f"""
          v_add_u32 v{a}, s{S8}, v0
          v_and_b32 v{a}, 3, v{a}
          s_lshr_b32 s3, s{S_CB}, 1
          s_and_b32 s3, s3, 4
          v_add_u32 v{b}, s3, v0
          v_and_or_b32 v{vt3}, v{b}, 4, v{a}"""
def order16(wz, mode):
    a, b = vt, vt2
    if mode == 0: return f"""{f's_mov_b32 s{S8}, s{S_RHO}' if wz == 8 else (f's_add_u32 s{S8}, s{S_RB}, s{S_CB}' if wz < 8 else '')}
          s_sub_u32 s3, s{S_RB}, s{S8}
          s_and_b32 s3, s3, {wz-1}
          s_and_b32 s{S9}, s{S_RB}, {16-wz}
          s_or_b32 s3, s3, s{S9}
          v_cmp_ge_u32 vcc, s3, v0
          v_subbrev_co_u32 v{a}, vcc, 0, v0, vcc
          v_add_u32 v{b}, s{S8}, v{a}
          v_and_b32 v{a}, 15, v{a}
          v_bfi_b32 v{a}, {wz-1}, v{b}, v{a}
          v_writelane_b32 v{a}, s{S_RB}, 0"""
    return rot(S8, mode, 0) + f"""
          v_mov_b32 v{a}, s{S8}
          v_mov_b32 v{b}, s{S_RB}
          v_cmp_gt_u32 vcc, 4, v0
          v_cndmask_b32 v{a}, v{a}, v{b}, vcc
          v_add_u32 v{a}, v{a}, v0
          v_and_b32 v{a}, 3, v{a}
          s_and_b32 s3, s{S_RB}, 12
          v_add_u32 v{b}, s3, v0
          v_and_or_b32 v{a}, v{b}, 12, v{a}"""
def tables_a(K):
    a, b = vt, vt2
    return f"""v_add_u32 v{vX4}, 4096, v{V_X}
          {order8(K.r4, 0)}
          s_lshl_b32 s3, s{S_CB}, 1
          s_add_u32 s3, s3, 1
          s_lshl_b32 s3, s3, 5
          s_add_u32 s3, s3, s{S_W}
          v_lshl_add_u32 v{a}, v{vt3}, 2, s3
          v_bfe_u32 v{b}, v0, 3, 1
          v_lshlrev_b32 v{b}, 5, v{b}
          v_sub_u32 v{a}, v{a}, v{b}
          v_mul_u32_u24 v{vTW}, 7168, v{a}
          v_add_u32 v{vTW}, {WS_WIN}, v{vTW}"""
def tables_b(K):
    a, b = vt, vt2
    return f"""s_lshl_b32 s{S7}, s{S_R32}, 16
          s_add_u32 s3, s{S7}, {WS_H}
          v_lshl_add_u32 v{vTH}, v{vt3}, 13, s3
          s_lshl_b32 s{S8}, s{S_RHO}, 1
          v_add_u32 v{a}, s{S8}, v0
          v_and_b32 v{b}, 15, v{a}
          s_add_u32 s3, s{S7}, {WS_O}
          v_lshl_add_u32 v{vT3}, v{b}, 12, s3
          {order16(K.wz, K.r5)}
          s_lshl_b32 s3, s{S7}, 1
          s_add_u32 s3, s3, {WS_WSP}
          v_lshl_add_u32 v{vTS}, v{a}, 13, s3
          s_lshl_b32 s3, s{S_CB}, 6
          s_add_u32 s3, s3, s{S_W}
          v_lshl_add_u32 v{a}, v{a}, 2, s3
          v_mul_u32_u24 v{vTZ}, 7168, v{a}
          v_add_u32 v{vTZ}, {WS_Z2}, v{vTZ}
          {order8(K.r6, 1)}
          s_and_b32 s3, s{S_CB}, 1
          s_lshl_b32 s3, s3, 1
          s_lshr_b32 s{S8}, s{S_W}, 1
          s_add_u32 s3, s3, s{S8}
          s_lshl2_add_u32 s3, s{S_RB}, s3
          s_and_b32 s{S9}, s{S_W}, 1
          s_lshl4_add_u32 s3, s3, s{S9}
          v_lshl_add_u32 v{a}, v{vt3}, 1, s3
          v_mul_u32_u24 v{vTU}, 7168, v{a}
          v_add_u32 v{vTU}, {WS_U}, v{vTU}
          s_and_b32 s3, s{S_CB}, 14
          s_add_u32 s3, s3, s{S8}
          s_mul_i32 s3, s3, {56*4096}
          s_lshl_b32 s{S9}, s{S9}, 11
          s_add_u32 s3, s3, s{S9}
          s_add_u32 s3, s3, {WS_WOUT}
          v_mul_u32_u24 v{vTO}, {7*4096}, v{vt3}
          v_add_u32 v{vTO}, s3, v{vTO}
          v_add_u32 v{vLR[1]}, {PW}, v{V_X}
          v_add_u32 v{vLR[2]}, {2*PW}, v{V_X}
          v_add_u32 v{vLR[3]}, {3*PW}, v{V_X}
          v_mov_b32 v{b}, {OOB}
          v_cmp_gt_u32 vcc, 16, v0
          v_lshlrev_b32 v{a}, 7, v0
          v_cndmask_b32 v{vFR}, v{b}, v{a}, vcc
          v_cmp_gt_u32 vcc, 8, v0
          v_lshlrev_b32 v{a}, 8, v0
          v_cndmask_b32 v{vF5}, v{b}, v{a}, vcc
          v_lshrrev_b32 v{vG}, 4, v0
          v_bfe_u32 v{a}, v0, 2, 2
          v_and_b32 v{vJ}, 15, v0
          v_cmp_eq_u32 vcc, v{a}, v{vG}
          v_lshlrev_b32 v{vHS}, 4, v{vJ}
          v_and_b32 v{vt3}, 3, v0
          v_cndmask_b32 v{vHS}, v{b}, v{vHS}, vcc
          v_lshl_add_u32 v{vB}, v{a}, 3, v{vt3}
          v_lshlrev_b32 v{vB}, 1, v{vB}
          v_lshl_add_u32 v{vt3}, v{vG}, 2, v{vt3}
          v_and_b32 v{a}, 8, v0
          v_lshl_add_u32 v{vt3}, v{a}, 1, v{vt3}
          v_and_b32 v{a}, 4, v0
          v_cmp_eq_u32 vcc, 0, v{a}
          v_lshlrev_b32 v{vt3}, 4, v{vt3}
          v_lshl_add_u32 v{vJ}, v{vJ}, 2, s{S_WB}
          v_cndmask_b32 v{vZS}, v{b}, v{vt3}, vcc
          v_lshl_add_u32 v{vG}, v{vG}, 4, s{S_WB}
          v_and_b32 v{a}, 31, v0
          v_lshl_add_u32 v{vZW}, v{a}, 2, s{S_WB}
          s_mov_b32 s{S_M}, 0x22222222
          s_mov_b32 s{S_M+1}, 0x22222222
          s_mov_b32 s{S_M+2}, 0x44444444
          s_mov_b32 s{S_M+3}, 0x44444444
          s_mov_b32 s{S_M+4}, 0x88888888
          s_mov_b32 s{S_M+5}, 0x88888888"""

def unpack(acc, x):
    r = []
    for i in range(4): r += [f"v_lshlrev_b32 v{acc(i)}, 16, v{x+i}", f"v_and_b32 v{acc(i)+1}, 0xffff0000, v{x+i}"]
    return r
def oload(n, so): return f"buffer_load_dwordx4 {ar(n*4,4)}, v{V_X}, {R(R_WS)}, s{so} offen offset:{(n&3)*1024} sc1"

def phase3(K):
    P = K.P
    for it in wodma(15, L_SC)[:2]: emit(P, it)
    A3 = lambda nb, mb: ACC3 + nb * 8 + mb * 4
    for q in range(4):
        for r in range(2): P(f"v_permlane16_swap_b32 v{XR+q*4+r}, v{XR+q*4+r+2}")
    for i in (16, 8, 4):
        for r in range(0, i, 2): P(pk('add', CD + r, pr(CD + r), pr(CD + i + r)))
    for mb in range(2):
        for p in range(2):
            for l in unpack(lambda i: A3(2 * p + (i >> 1), mb) + (i & 1) * 2, XR + (mb * 2 + p) * 4): P(l)
    P(f"ds_write_b128 v{vEW}, {vr(CD,4)} offset:{L_CSP}")
    P(tables_a(K))
    stamp(P, 'f2w'); P.wait(tag='ost'); P(send(vF2, S4)); stamp(P, 'f2s')
    for it in wdma(0): emit(P, it)
    P(tables_b(K))
    steps = [(s, q) for s in range(16) for q in range(4)]
    for i in range(3):
        for l in trreads(i, steps[i][1], woloc(steps[i][0])): P(l)
    P(f"v_mov_b32 v{HR+16}, 0x3f803f80")
    for r in range(1, 4): P(f"v_mov_b32 v{HR+16+r}, v{HR+16}")
    SO = [S_SA, S7, S8, S9]
    for s in range(4): P(RL(SO[s], vT3, s))
    P(f"s_add_u32 s{S10}, s{S_LINE}, {WS_F2}")
    stamp(P, 'f2p')
    for it in poll(S10) + pchk(32) + [retry(K, 'RT_F2', poll(S10), pchk(32))]: emit(P, it)
    stamp(P, 'f2')
    N0 = K.n3
    for n in range(N0): P(oload(n, SO[n >> 2]))
    S = Sched(P, 'p3')
    for i, (s, q) in enumerate(steps):
        for mb in range(2):
            for kk in range(2):
                S.add(mf16(A3(q, mb), vr(WR + (i & 3) * 8 + kk * 4, 4), ar(s * 16 + (kk * 2 + mb) * 4, 4)))
        if i + 3 < 64:
            for k, l in enumerate(trreads((i + 3) & 3, steps[i + 3][1], woloc(steps[i + 3][0]))): S.put(4 * i + (k & 2), l)
        n = N0 + i
        if n < 64:
            S.put(4 * i + 1, oload(n, SO[(n >> 2) & 3]))
            if (n & 3) == 3 and (n >> 2) + 4 < 16: S.put(4 * i + 3, RL(SO[(n >> 2) & 3], vT3, (n >> 2) + 4))
    for k in range(N0 >> 2):
        if k + 4 < 16: S.put(4 * k + 3, RL(SO[k & 3], vT3, k + 4))
    BI = 51
    for i in range(63):
        regs = [vr(WR + ((i + 1) & 3) * 8, 8)]
        if (i + 1) % 4 == 0: regs.append(ar(steps[i + 1][0] * 16, 16))
        if i == BI: S.tail(4 * i + 3, W(regs, tag='wo15'), "s_barrier")
        else: S.tail(4 * i + 3, W(regs))
    w1 = wdma(1)
    i0 = max(64 - N0, BI + 1)
    S.put(4 * i0 - 5, w1[0]); S.put(4 * i0 - 9, w1[1])
    for k, it in enumerate(w1[2:6] + w1[7:]): S.put(4 * (i0 + k) + 1, it)
    S.put(4 * (i0 + 3) + 3, w1[6])
    for k in range(4): S.tail(4 * (BI + 1 + k) + 3, f"ds_read_b128 {vr(CD+4*k,4)}, v{vLR[k]} offset:{L_CSP}")
    sc = lines(f"""s_lshl_b32 s{S7}, s{S_R32}, 16
          s_lshl_b32 s3, s{S_CB}, 12
          s_add_u32 s{S7}, s{S7}, s3
          s_add_u32 s{S7}, s{S7}, {WS_H}
          s_lshl_b32 s{S8}, s{S_LINE}, 1
          s_add_u32 s{S8}, s{S8}, {WS_HST}
          s_lshl_b32 s{S9}, s{S_R32}, 11
          s_lshl2_add_u32 s{S9}, s{S_CB}, s{S9}
          s_add_u32 s{S9}, s{S9}, {WS_F3}
          s_add_u32 s{S10}, s{S_LINE}, {WS_F3}""")
    S.stream(sc, 4 * (64 - N0) + 2, 248)
    def cvt(mb, p): return [f"v_cvt_pk_bf16_f32 v{HR+(mb*2+p)*4+i}, v{A3(2*p+(i>>1),mb)+(i&1)*2}, v{A3(2*p+(i>>1),mb)+(i&1)*2+1}" for i in range(4)]
    def hst(mb, p): return ST(vr(HR + (mb * 2 + p) * 4, 4), V_X, S7, p * 2048 + mb * 1024, 'hst')
    c = cvt(0, 0) + cvt(1, 0)
    for k in range(4): S.put(249 + k + (k >= 2), *c[2 * k:2 * k + 2])
    S.put(254, hst(0, 0)); S.put(255, hst(1, 0))
    P.wait([ar(0, 16), vr(WR, 8)])
    S.emit()
    stamp(P, 'p3e')
    SS = HR + 20
    def stat(mb, p):
        h = vr(HR + (mb * 2 + p) * 4, 4)
        return [mf16(SS + mb * 8, vr(HR + 16, 4), h, None if p else '0'), mf16(SS + mb * 8 + 4, h, h, None if p else '0')]
    for l in stat(0, 0): P(l)
    for l in cvt(0, 1): P(l)
    emit(P, hst(0, 1))
    for l in stat(1, 0): P(l)
    for l in cvt(1, 1): P(l)
    emit(P, hst(1, 1))
    for l in stat(0, 1) + stat(1, 1): P(l)
    P("s_barrier")
    w2 = wdma(2)
    for it in w2[:2]: emit(P, it)
    for i in (8, 4):
        for r in range(0, i, 2): P(pk('add', CD + r, pr(CD + r), pr(CD + i + r)))
    for mb in range(2):
        q = SS + mb * 8 + 4
        P(f"""v_cndmask_b32 v{q}, v{q}, v{q+1}, s[{S_M}:{S_M+1}]
              v_cndmask_b32 v{q+2}, v{q+2}, v{q+3}, s[{S_M+4}:{S_M+5}]""")
    P(f"v_mov_b32 v{SS+2}, v{SS+8}")
    P(f"s_or_b64 vcc, s[{S_M+2}:{S_M+3}], s[{S_M+4}:{S_M+5}]")
    for mb in range(2):
        q = SS + mb * 8 + 4
        P(f"v_cndmask_b32 v{SS+1+2*mb}, v{q}, v{q+2}, vcc")
    emit(P, ST(vr(SS, 4), vHS, S8, 0, 'hst'))
    for it in w2[2:]: emit(P, it)
    P(f"ds_write_b128 v{vEW}, {vr(CD,4)} offset:{L_CSF}")
    stamp(P, 'f3w'); P.wait(tag='hst sp'); P(send(vFR, S9)); stamp(P, 'f3s')
```

```python
from p3 import *

C1 = 2 * math.sqrt(2 / math.pi) * math.log2(math.e)
C2 = C1 * 0.044715
A2, A1 = 64, 120
RC, CS2, TT, BQ, GZ, SQ, KC = 120, 152, 176, 184, 192, 224, 16
ZC, CQ, HQ, A6 = SQ, BQ, 176, 64
vU1, vU3 = 16, 17
def a2(nb, mb): return A2 + nb * 8 + mb * 4
def a1(nb, mb): return A1 + nb * 8 + mb * 4
def a6(f, nb): return A6 + (f * 2 + nb) * 4
def wf(i, k): return WR + (i & 1) * 16 + k * 4
def af(T, kb, mb): return ar((T & 7) * 32 + (kb * 2 + mb) * 4, 4)
def oloc(n):
    if n >= 96: n -= 96
    if n < 12: return vr(GZ + 4 * n, 4)
    if n < 76: return ar(4 * (n - 12), 4)
    return vr(96 + 4 * (n - 76), 4)
def pack(a0, b0): return [f"v_cvt_pk_bf16_f32 v{a0}, v{a0}, v{a0+1}", f"v_cvt_pk_bf16_f32 v{a0+1}, v{a0+2}, v{a0+3}",
                          f"v_cvt_pk_bf16_f32 v{a0+2}, v{b0}, v{b0+1}", f"v_cvt_pk_bf16_f32 v{a0+3}, v{b0+2}, v{b0+3}"]
def LD(regs, p, so, tag=None): return T(f"buffer_load_dwordx4 {regs}, v{vX4 if p >= 4 else V_X}, {R(R_WS)}, s{so} offen offset:{(p&3)*1024} sc1", tag)
def ST7(reg, p, so, tag): return ST(vr(reg, 4), vX4 if p >= 4 else V_X, so, (p & 3) * 1024, tag)
def isvm(it): return itext(it).startswith('buffer_') or (not isinstance(it, str) and it[0] == 'grp' and any(isvm(x) for x in it[1]))

class Sch(Sched):
    hold = True
    def fits(self, i, it, extra):
        x = self.s[i]
        if isvm(it): return x.get('vm', False) and x['load'] == 0
        if x['cap'] > 2: return itext(it).startswith(('s_', 'v_readlane'))
        if x.get('vm') and (self.hold or x['load']): return False
        return super().fits(i, it, extra)
    def back(self, it, lo, hi):
        for extra in range(6):
            for i in range(hi, lo - 1, -1):
                if self.fits(i, it, extra): self.put(i, it); return i
        raise ValueError('no room ' + itext(it))
    def dag(self, ops, start, end):
        pos = [None] * len(ops); tw = sum(weight(o[0]) for o in ops); acc = 0; first = 0
        for i in range(start, end):
            while first < len(ops) and pos[first] is not None: first += 1
            k = first
            while k < min(len(ops), first + 80) and acc * (end - start) * 0.93 <= (i - start + 1) * tw:
                it, deps = ops[k]
                if pos[k] is None and all(pos[d] is not None and pos[d] < i for d in deps) and self.fits(i, it, 0):
                    self.put(i, it); pos[k] = i; acc += weight(it)
                k += 1
        assert all(p is not None for p in pos), 'dag does not fit'
        return max(pos)

def frag_reads(i):
    T_, q = divmod(i, 7)
    if T_ < 32: return [f"ds_read_b128 {vr(wf(i,k),4)}, v{vLR[k]} offset:{slot(T_)+q*1024}" for k in range(4)]
    if q < 6: return [f"ds_read_b128 {vr(wf(i,f),4)}, v{vLR[(f&2)+q//3]} offset:{slot(T_)+((q%3)*2+(f&1))*1024}" for f in range(4)]
    o = (slot(T_) + 6144) // 512
    return [f"ds_read2st64_b64 {vr(wf(i,f),4)}, v{(vLR[0], vU1, vLR[2], vU3)[f]} offset0:{o} offset1:{o+PW//512}" for f in range(4)]

def phase45(K):
    P = K.P
    NT = 40 if UPTO >= 6 else 32
    for T_ in (3, 4):
        for it in wdma(T_): emit(P, it)
    P(f"""{RL(SA[0], vTH, 0)}
          {RL(SA[1], vTH, 1)}
          s_lshl_b32 s{S7}, s{S_R32}, 12
          s_add_u32 s{S7}, s{S7}, {WS_HST}
          s_lshl_b32 s{S8}, s{S_R32}, 6""")
    for mb in range(2): P(f"buffer_load_ushort v{BQ+4*mb}, v{vB}, {R(R_BSP)}, s{S8} offen offset:{mb*8}")
    P.wait(tag='ring0'); P("s_barrier")
    for i in range(2):
        for l in frag_reads(i): P(l)
    stamp(P, 'f3p')
    for it in poll(S10) + pchk(16) + [retry(K, 'RT_F3', poll(S10), pchk(16))]: emit(P, it)
    stamp(P, 'f3')
    S = Sch(P, 'p456'); at = {}; mark = {}
    def mm(i):
        T_, q = divmod(i, 7); r = []
        if T_ >= 32:
            o = [(f, nb) for f in range(4) for nb in range(2)] if i == 279 else [(f, nb) for nb in range(2) for f in range(4)]
            return [mf16(a6(f, nb), oloc((T_ - 32) * 14 + q * 2 + nb), vr(wf(i, f), 4)) for f, nb in o]
        for mb in range(2):
            for kb in range(4):
                w = vr(wf(i, kb), 4); x = af(T_, kb, mb); first = kb == 0 and T_ in (0, 8, 16)
                if T_ < 8: r.append(mf16(a2(q, mb), x, w, '0' if first else None))
                elif T_ < 16: r.append(mf16(a1(q, mb), w, x, '0' if first else None))
                else: r.append(mf16(a2(q, mb), w, x, vr(BQ + 4 * mb, 4) if first else None))
        return r
    def gelu_window():
        mark['g0'] = len(S.s)
        for nb in range(7):
            for mb in range(2):
                a = a2(nb, mb); t = TT + mb * 4; c = lambda k, i: pr(RC + (k * 2 + mb) * 4 + 2 * i); A = lambda i: pr(a + 2 * i); t_ = lambda i: pr(t + 2 * i)
                x = [pk('mul', t + 2 * i, A(i), A(i)) for i in (0, 1)] + [pk('fma', t + 2 * i, t_(i), c(3, i), c(2, i)) for i in (0, 1)]
                x += [pk('mul', t + 2 * i, t_(i), A(i)) for i in (0, 1)] + [f"v_exp_f32 v{t+i}, v{t+i}" for i in range(4)]
                y = [pk('fma', t + 2 * i, t_(i), c(1, i), c(1, i)) for i in (0, 1)] + [f"v_rcp_f32 v{t+i}, v{t+i}" for i in range(4)]
                y += [pk('mul', a + 2 * i, A(i), t_(i)) for i in (0, 1)]
                for i in (0, 1):
                    s, q = SQ + mb * 4 + 2 * i, SQ + 8 + mb * 4 + 2 * i
                    y += [pk('add', s, pr(s), A(i)), pk('fma', q, A(i), A(i), pr(q))]
                for z in (x, y): S.s[S.add('\n'.join(z), cap=4)]['vm'] = True
        mark['g1'] = len(S.s)
    def window5():
        mark['w0'] = len(S.s)
        for k in range(K.n5 + 1): S.s[S.add('', cap=4)]['vm'] = True
        mark['w1'] = len(S.s)
        for k in range(K.n6 + 1): S.s[S.add('', cap=4)]['vm'] = True
        mark['w2'] = len(S.s)
    for i in range(NT * 7):
        if i == 56: gelu_window()
        if i == 224: window5()
        if i == 56 + K.zpos and K.zpos:
            mark['n0'] = len(S.s)
            for nb in range(7):
                x = [pk('fma', a2(nb, 0) + 2 * j, pr(a2(nb, 0) + 2 * j), pr(ZC + 2 * j), pr(ZC + 8 + 2 * j)) for j in range(4)] + pack(a2(nb, 0), a2(nb, 1))
                k = S.add('\n'.join(x), cap=4 if K.zs else 2)
                if not K.zs: S.put(k, ST7(a2(nb, 0), nb, S11, 'z2'))
                else: S.s[k]['vm'] = True
        at[i] = len(S.s)
        for g, m in enumerate(mm(i)): S.s[S.add(m)]['vm'] = g in (0, 2)
    if NT == 32: window5()
    sl = lambda T_, q=0, g=0: at[T_ * 7 + q] + g
    endof = lambda T_: at[T_ * 7 + 6] + 8
    bar = lambda T_: sl(T_, 5, 3)
    for i in range(NT * 7):
        T_, q = divmod(i, 7)
        if i + 2 < NT * 7 and i + 2 not in (224, 225):
            for k, l in enumerate(frag_reads(i + 2)): S.put(at[i] + 4 + k, l)
        if q == 5 and T_ < NT - 1 + (NT == 32): S.tail(at[i] + 3, W(tag=f'ring{T_+1}' if T_ != 31 and not (T_ == 15 and K.zl) else None, lg0=True), "s_barrier")
        if i + 1 < NT * 7 and i + 1 != 224:
            regs = [vr(wf(i + 1, 0), 16)]
            if q == 6 and T_ < 31: regs.append(ar(((T_ + 1) & 7) * 32, 32))
            if i + 1 > 224: regs += [oloc((i + 1 - 224) * 2 + nb) for nb in range(2)]
            S.tail(at[i] + 7, W(regs))
        if q == 5 and (K.skip >> (0 if T_ < 8 else 1 if T_ < 16 else 2 if T_ < 32 else 3)) & 1: S.s[at[i] + 2]['vm'] = False
    e = S.stream([LD(vr(GZ + 4 * i, 4), i, S7) for i in range(4)], sl(0, 2), sl(1), even=False)
    x = [f"v_lshlrev_b32 v{BQ+4*mb}, 16, v{BQ+4*mb}" for mb in range(2)] + [f"v_mov_b32 v{BQ+4*mb+r}, v{BQ+4*mb}" for r in range(1, 4) for mb in range(2)]
    x += [f"v_lshrrev_b32 v{vt}, 5, v0", f"v_lshl_add_u32 v{vt}, v{vt}, 6, v{vJ}"]
    x += [f"ds_read_b32 v{CS2+nb}, v{vJ} offset:{L_CSF+512+nb*64}" for nb in range(7)]
    x += [f"v_mov_b32 v{SQ+r}, 0" for r in range(16)]
    S.stream(x, sl(1), sl(2))
    x = [W([vr(GZ, 16)])]
    for a, b in ((0, 4), (8, 12), (0, 8)): x += [f"v_add_f32 v{GZ+a+r}, v{GZ+a+r}, v{GZ+b+r}" for r in range(4)]
    x += [f"v_permlane32_swap_b32 v{GZ+r}, v{GZ+2+r}" for r in range(2)] + [f"v_add_f32 v{GZ+r}, v{GZ+r}, v{GZ+2+r}" for r in range(2)]
    x += interleave(xsum(GZ, GZ + 2, 16), xsum(GZ + 1, GZ + 3, 16))
    def meanvar(n): return lines(f"""v_mul_f32 v{GZ}, {f32(-1/n)}, v{GZ}
          v_mul_f32 v{GZ+1}, {f32(1/n)}, v{GZ+1}
          v_fma_f32 v{GZ+1}, -v{GZ}, v{GZ}, v{GZ+1}
          v_max_f32 v{GZ+1}, 0, v{GZ+1}
          v_add_f32 v{GZ+1}, {f32(1e-5)}, v{GZ+1}
          v_rsq_f32 v{GZ+2}, v{GZ+1}""")
    x += meanvar(1024) + lines(f"""v_mul_f32 v{GZ+1}, v{GZ+1}, v{GZ+2}
          v_mul_f32 v{GZ+3}, v{GZ+2}, v{GZ+2}
          v_mul_f32 v{GZ+3}, v{GZ+3}, v{GZ+2}
          v_mul_f32 v{GZ+2}, {f32(-C1)}, v{GZ+2}
          v_mul_f32 v{GZ+3}, {f32(-C2)}, v{GZ+3}""")
    x += [f"ds_write_b32 v{vt}, v{GZ+c} offset:{L_K+c*128}" for c in range(4)]
    x += [f"ds_read_b128 {vr(RC+4*i,4)}, v{vG} offset:{L_K+i*64}" for i in range(8)]
    x += [f"ds_read_b32 v{KC+i}, v{vJ} offset:{L_K+i*64}" for i in range(8)]
    x += lines(f"""s_lshl_b32 s{S8}, s{S_R32}, 13
          s_add_u32 s{S8}, s{S8}, {WS_ZST}
          s_lshl_b32 s3, s{S_CB}, 9
          s_add_u32 s{S7}, s{S8}, s3
          s_lshl_b32 s{S9}, s{S_W}, 11
          s_lshl_b32 s3, s{S_CB}, 7
          s_add_u32 s{S9}, s{S9}, s3
          s_lshl2_add_u32 s{S9}, s{S_RB}, s{S9}
          s_add_u32 s{S9}, s{S9}, {WS_F4}
          s_add_u32 s{S10}, s{S_LINE}, {WS_F4}""") + [RL(S11, vTZ, 0)]
    S.stream(x, sl(2), sl(5))
    for mb in range(2):
        for q in range(7):
            nb = (q + 4) % 7
            S.stream([f"v_fmac_f32 v{a2(nb,mb)+r}, v{RC+4*mb+r}, v{CS2+nb}" for r in range(4)], sl(5 + mb, q), sl(5 + mb, q, 7))
    x = []
    for bm, o in (('0x3', 0), ('0xc', 4)):
        x += [f"v_add_f32_dpp v{SQ+sq*8+r}, v{SQ+sq*8+r+o}, v{SQ+sq*8+r+o} row_ror:8 row_mask:0xf bank_mask:{bm}" for sq in range(2) for r in range(4)]
    for bm, o in (('0x5', 0), ('0xa', 8)):
        x += [f"v_add_f32_dpp v{SQ+r}, v{SQ+r+o}, v{SQ+r+o} row_half_mirror row_mask:0xf bank_mask:{bm}" for r in range(4)]
    for perm in ('[1,0,3,2]', '[2,3,0,1]'):
        x += [f"v_add_f32_dpp v{SQ+r}, v{SQ+r}, v{SQ+r} quad_perm:{perm} row_mask:0xf bank_mask:0xf" for r in range(4)]
    x += [f"v_cndmask_b32 v{SQ}, v{SQ}, v{SQ+r}, s[{S_M+2*r-2}:{S_M+2*r-1}]" for r in range(1, 4)]
    x += [f"v_mov_b32 v{SQ+2}, v{V_E}", f"v_mov_b32 v{SQ+3}, v{V_E}", f"v_mov_b32_dpp v{SQ+1}, v{SQ} row_shl:4 row_mask:0xf bank_mask:0xf"]
    zs = ST(vr(SQ, 4), vZS, S7, 0, 'zst')
    if K.g1:
        S.hold = False; e = S.stream(x, sl(8), None, even=False); S.hold = True
        e = S.stream([zs], e + 1, None, even=False)
    else:
        S.put(mark['g1'] - 1, *x, zs); S.s[mark['g1'] - 1]['vm'] = False; e = sl(8)
    gl = [LD(vr(GZ + 4 * i, 4), i, S8) for i in range(8)]
    ck = [f"v_bitop3_b32 v{vt}, v{GZ+2}, v{V_E}, v{GZ+6} bitop3:0x7e"] + [f"v_bitop3_b32 v{vt}, v{GZ+4*i+2}, v{V_E}, v{vt} bitop3:0xbe" for i in range(2, 8)] + [f"v_cmp_ne_u32 vcc, 0, v{vt}"]
    e = S.stream(gl, e + K.zg, None, even=False)
    S.hold = bool(K.zh & 1)
    e = S.stream([W([vr(GZ, 32)])] + ck, e + K.zc, None, even=False)
    x = [retry(K, 'RT_ZG', gl, ck)]
    for d in (16, 8, 4): x += [f"v_add_f32 v{GZ+b+r}, v{GZ+b+r}, v{GZ+b+d+r}" for b in range(0, d, 4) for r in range(2)]
    x += interleave(xsum(GZ, GZ + 2, 32), xsum(GZ + 1, GZ + 3, 32)) + meanvar(1792) + [f"v_mul_f32 v{GZ}, v{GZ}, v{GZ+2}"]
    x += [f"ds_write_b32 v{vZW}, v{GZ+2} offset:{L_Z}", f"ds_write_b32 v{vZW}, v{GZ} offset:{L_Z+128}"]
    x += [f"ds_read_b128 {vr(ZC+4*i,4)}, v{vG} offset:{L_Z+i*64}" for i in range(4)]
    e = S.stream(x, e + 3, None, even=False)
    x = []
    for nb in range(7):
        x += [f"v_fma_f32 v{a2(nb,mb)+r}, v{a2(nb,mb)+r}, v{ZC+4*mb+r}, v{ZC+8+4*mb+r}" for mb in range(2) for r in range(4)]
        x += pack(a2(nb, 0), a2(nb, 1)) + [ST7(a2(nb, 0), nb, S11, 'z2')]
    S.hold = bool(K.zh & 2)
    if K.zpos:
        print('  LN3 constants read', mark['n0'] - e, 'slots before use'); assert mark['n0'] > e; e = mark['n0'] + 6
        if K.zs: e = S.stream([ST7(a2(nb, 0), nb, S11, 'z2') for nb in range(7)], mark['n0'], None, even=False, gap=K.zs)
        if K.zl: S.stream([f"ds_write_b128 v{vEW}, {vr(a2(nb,0),4)} offset:{slot(16)+nb*1024}" for nb in range(7)], max(bar(11) + 1, mark['n0'] + 7), bar(15) - 8, even=False, gap=8)
    else: e = S.stream(x, e + 8, None, even=False)
    S.hold = True
    print('  z2 stored at', (e - sl(8)) / 56)
    e = S.stream([G(W(tag='z2'), send(vFC, S9))], e + K.zd, None, even=False); f4s = e
    S.back(poll(S10)[0], e, e + K.f4p - 1)
    e = S.stream([poll(S10)[1]], e + K.f4p, None, even=False)
    e = S.stream([G(W([vr(vPOLL)]), pchk(16)[0]), pchk(16)[1]], e + K.f4c, None, even=False)
    e = S.stream([retry(K, 'RT_F4', poll(S10), pchk(16))], e + 2, None, even=False); f4c = e
    print('  f4 sent at', (f4s - sl(8)) / 56, 'checked at', (f4c - sl(8)) / 56)
    assert (K.zl or f4s + 20 < bar(15)) and f4c + 20 < bar(16)
    x = lines(f"""s_mul_i32 s{S7}, s{S_LINE}, 56
          s_add_u32 s{S7}, s{S7}, {WS_U}
          s_and_b32 s{S8}, s{S_CB}, 1
          s_and_b32 s3, s{S_W}, 1
          s_lshl1_add_u32 s3, s3, s{S8}
          s_lshl2_add_u32 s3, s{S_RB}, s3
          s_lshr_b32 s{S9}, s{S_W}, 1
          s_lshl4_add_u32 s3, s3, s{S9}
          s_lshl_b32 s3, s3, 5
          s_lshr_b32 s{S11}, s{S_CB}, 1
          s_add_u32 s3, s3, s{S11}
          s_lshl_b32 s3, s3, 2
          s_add_u32 s{S9}, s3, {WS_F5}
          s_add_u32 s{S10}, s{S_LINE}, {WS_F5}
          s_lshl1_add_u32 s{S8}, s{S_RB}, s{S8}
          s_lshl_b32 s{S8}, s{S8}, 17
          s_lshl2_add_u32 s{S11}, s{S11}, s{S_W}
          s_lshl_b32 s3, s{S11}, 6
          s_add_u32 s{S_XB}, s{S8}, s3
          s_lshl_b32 s3, s{S11}, 11
          s_add_u32 s{S8}, s{S8}, s3
          s_add_u32 s{S8}, s{S8}, {WS_H}
          s_add_u32 s{S11}, s{S8}, 65536""")
    S.stream(x, sl(18), sl(20))
    S.hold = False
    x = []; e = 0
    def um(nb): return [f"v_mul_f32 v{a1(nb,mb)+r}, v{a1(nb,mb)+r}, v{a2(nb,mb)+r}" for mb in range(2) for r in range(4)]
    def up(p, mb): return pack(a1(2 * p, mb), a1(2 * p + 1, mb)) + [ST7(a1(2 * p, mb), 2 * p + mb, S7, 'ust')]
    for nb in range(5):
        x = um(nb) + (up(nb >> 1, 0) + up(nb >> 1, 1) if nb & 1 else [])
        e = S.stream(x, max(e, sl(31, nb + 1, 2)), endof(31), even=False)
    e = S.stream(um(5), max(e, sl(31, 6, 2)), endof(31), even=False)
    S.hold = True
    w0, w1, w2 = mark['w0'], mark['w1'], mark['w2']
    S.put(w0, F(lambda: stamp(P, 'p5e')), *up(2, 0), *um(6)[:4], *up(2, 1), *um(6)[4:], *pack(a1(6, 0), a1(6, 1)), ST7(a1(6, 0), 6, S7, 'ust'))
    S.s[w0]['vm'] = False
    k = w0 + 1 + K.n5 // 4
    S.tail(k, F(lambda: stamp(P, 'f5w'), 0), W(tag='ust'), send(vF5, S9), F(lambda: stamp(P, 'f5s'), 0)); usent = k
    if NT == 40:
        x = [f"v_add_u32 v{vU1}, 8, v{vLR[0]}", f"v_add_u32 v{vU3}, 8, v{vLR[2]}"]
        for f in range(4): x += unpack(lambda i: a6(f, i >> 1) + (i & 1) * 2, HQ + 4 * f)
        S.tail(w1 - 1, *x)
        S.put(w1, F(lambda: stamp(P, 'f5p'), 0), *poll(S10), *pchk(8), retry(K, 'RT_F5', poll(S10), pchk(8)), F(lambda: stamp(P, 'f5'))); S.s[w1]['vm'] = False
        S.tail(w2 - 1, W(tag='ring32'), "s_barrier", *frag_reads(224), *frag_reads(225), W([vr(wf(224, 0), 16), oloc(0), oloc(1)]))
        S.stream([LD(vr(HQ + 4 * f, 4), f & 1, S11 if f >> 1 else S8) for f in range(4)], sl(30, 4), sl(31, 1), even=False)
        so = [S_XB, S7, S8, S9]
        S.stream([f"s_add_u32 s{so[f]}, s{S_XB}, {(f>>1)*65536+(f&1)*8192}" for f in range(1, 4)], sl(33), sl(34))
    ring = []; reg = []
    for T_ in range(5, NT):
        if T_ == 16 and K.zl: continue
        w = wdma(T_)
        rel = max(bar(T_ - 5) + 1, f4s + 1 if T_ == 16 else (f4c + 1 if T_ > 16 else 0), w1 + 1 if T_ >= 32 else 0)
        dl = bar(T_ - 1) if T_ != 32 else w1
        ring.append(dict(pre=w[0], m0=w[1], it=[(x, rel, dl) for x in w[2:6]]))
        ring.append(dict(pre=None, m0=w[6], it=[(x, rel, dl) for x in w[7:]]))
    for u in range(24):
        rel = 0 if u < 8 else endof(u)
        reg.append(dict(pre=RL(SA[u & 1], vTH if u < 8 else vTS, u if u < 8 else u - 8) if u >= 2 else None, m0=None,
                        it=[(LD(ar((u & 7) * 32 + 4 * p, 4), p, SA[u & 1]), rel, sl(u if u < 8 else u + 8)) for p in range(8)]))
    if NT == 40:
        k = 0
        for s in range(8):
            for h in range(4):
                its = []
                for n in range(s * 14 + 4 * h, s * 14 + min(4 * h + 4, 14)):
                    rel = sl(16) if n < 12 else (endof(24 + ((n - 12) >> 3)) if n < 76 else (w0 + 1 if n < 82 else (usent + 1 if n < 96 else at[224 + (n - 96) // 2] + 8)))
                    its.append((LD(oloc(n), ((n - s * 14) & 2) * 2 + (n & 1), SA[k & 1]), rel, at[224 + n // 2]))
                reg.append(dict(pre=RL(SA[k & 1], vTO, s) if h == 0 else f"s_add_u32 s{SA[k&1]}, s{SA[(k-1)&1]}, 8192", m0=None, it=its)); k += 1
    q = [[(g, j) for g in st for j in range(len(g['it']))] for st in (ring, reg)]
    for g in ring + reg: g['pos'] = []
    for n in range(K.n4):
        g, j = q[1].pop(0); emit(P, g['it'][j][0]); g['pos'].append(-1)
    cnt = {}
    for i, x in enumerate(S.s):
        if not x.get('vm') or x['load'] - sum(weight(t) for t in x['tail']): continue
        c = [st for st in q if st and st[0][0]['it'][st[0][1]][1] <= i]
        if not c: continue
        st = min(c, key=lambda st: st[0][0]['it'][st[0][1]][2])
        g, j = st.pop(0); S.put(i, g['it'][j][0]); g['pos'].append(i)
        assert i < g['it'][j][2] or mark['w1'] < i < mark['w2'], (i, g['it'][j])
    assert not q[0] and not q[1]
    print('  vmem/stage', [sum(1 for x in S.s[sl(T_):endof(T_)] for it in x['post'] if isvm(it)) for T_ in range(NT)], 'gelu window', sum(1 for x in S.s[mark['g0']:mark['g1']] for it in x['post'] if isvm(it)))
    print('  ring issued at', [round((g['pos'][-1] - g['it'][-1][2]) / 56, 1) for k, g in enumerate(ring) if k & 1])
    print('  reg issued at', [round((g['pos'][-1] - g['it'][-1][2]) / 56, 1) for g in reg])
    for st in (ring, reg):
        last = {}; lp = -1; pp = -1
        for g in st:
            if g['pre']:
                d = g['pre'].split()[1].rstrip(',')
                lo = max(last.get(d, -1), pp, 0)
                pp = S.back(g['pre'], lo, max(lo, g['pos'][0] - 3))
            if g['m0']: S.back(g['m0'], max(lp, 0), max(g['pos'][0] - 1, 0))
            d = re.search(r'\], (s\d+) offen', itext(g['it'][0][0])).group(1)
            last[d] = lp = g['pos'][-1]
    S.hold = False
    for k in range(7):
        nb = (2 * k + 4) % 7; cq = TT + 4 * (k & 1); i = 13 * 7 + 2 * k
        S.stream([f"ds_read_b128 {vr(cq,4)}, v{vG} offset:{L_CSF+nb*64}"], at[i - 2] + 1, at[i - 1], even=False)
        S.stream([f"v_fmac_f32 v{a1(nb,mb)+r}, v{KC+mb}, v{cq+r}" for mb in range(2) for r in range(4)], at[i], at[i + 1] + 7)
    ops = []; fin = []
    for nb in range(7):
        base = len(ops)
        for stp in range(7):
            for mb in range(2):
                for r in range(4):
                    a = a1(nb, mb) + r; t = TT + mb * 4 + r; k = lambda c_: KC + 2 * c_ + mb
                    txt = [f"v_mul_f32 v{t}, v{a}, v{a}", f"v_fma_f32 v{t}, v{t}, v{k(3)}, v{k(2)}", f"v_mul_f32 v{t}, v{t}, v{a}",
                           f"v_exp_f32 v{t}, v{t}", f"v_fma_f32 v{t}, v{t}, v{k(1)}, v{k(1)}", f"v_rcp_f32 v{t}, v{t}", f"v_mul_f32 v{a}, v{a}, v{t}"][stp]
                    ops.append((txt, [base + (stp - 1) * 8 + mb * 4 + r] if stp else fin[-8 + mb * 4 + r:][:1]))
        fin += [base + 48 + j for j in range(8)]
    e = S.dag(ops, sl(16), sl(30, 4))
    print('  gelu z1 ends', (e - sl(16)) / 56)
    for nm, T_ in [('pa4', 4), ('pb0', 8), ('p50', 16), ('p58', 24), ('p64', 36)] + [(f's{t}', t) for t in range(40)]:
        if T_ < NT: S.put(sl(T_, 5, 1), F(lambda nm=nm: stamp(P, nm), 0))
    S.put(mark['g0'], F(lambda: stamp(P, 'g0'), 0))
    P.wait([ar(0, 32), vr(wf(0, 0), 16)])
    S.emit()
    if NT == 32: return
    stamp(P, 'p6e')
    for f in range(4):
        a = a6(f, 0)
        for l in pack(a, a6(f, 1)): P(l)
        for r in range(2): P(f"v_permlane16_swap_b32 v{a+r}, v{a+r+2}")
        P(f"buffer_store_dwordx4 {vr(a,4)}, v{vXO}, {R(R_OUT)}, s{so[f]} offen")
```

```python
import sys, os
sys.path.insert(0, os.path.dirname(os.path.abspath(__file__)))
from p2 import *
import p2
NAME = 'sequential_preLN__mha_block__mixer_gmlp__prompt'
REF = f'cdna_kernels/{NAME}.s.ref'

def header():
    out = []
    for l in open(REF):
        if l.startswith('; Override'): break
        out.append(l)
    return ''.join(out)

class KK:
    csbar = 100; f1send = 48; f1poll = 200; f1chk = 232
    t_in = 6; d_l = 5; t_tw = 9; n_tw = 8; d_tw = 6; t_wo = 64; d_wo = 8; t_out = 60; d_s = 5; i_fp = 1; t_fp = 112; nojobs = 0; xp = 0; xr = 0; n3 = 12
    n4 = 12; skip = 1; zh = 3; zpos = 26; zg = 64; zc = 36; zd = 36; f4p = 56; f4c = 36; n5 = 24; n6 = 14; wz = 4; g1 = 0
    r1 = 1; r3 = 1; r4 = 1; r5 = 1; r6 = 1; zs = 0; zl = 0; tb = 2; tbd = 2
    def __init__(self, **kw):
        self.P = Prog('k'); self.ool = []
        for k, v in os.environ.items():
            if k.startswith('K_'): setattr(self, k[2:], int(v))
        self.__dict__.update(kw)
    def attn_addr(self): attn_addr(self)
    def kv_first(self): return kv_first(self)
    def passb_extra(self): return passb_extra(self)

def finish(K):
    P = K.P
    P(f"s_or_b32 s3, s2, s{S_W}\n s_cmp_lg_u32 s3, 0")
    P("s_cbranch_scc1 NOEP")
    P(f"v_mov_b32 v{vt}, {WS_EP}\n buffer_store_dword v{V_E}, v{vt}, {R(R_WS)}, 0 offen sc1")
    P.label('NOEP')
    if PROF:
        P.wait(vm0=True)
        stamp(P, 'end')
        P("s_memtime s[100:101]")
        P(f"""s_lshl_b32 s3, s2, 2
              s_add_u32 s3, s3, s{S_W}
              s_lshl_b32 s3, s3, 6
              s_add_u32 s3, s3, {WS_PROF}
              v_mov_b32 v{vt}, 0""")
        P.wait(lg0=True)
        P(f"s_sub_u32 s98, s100, s98")
        for q in range(4):
            for i in range(4):
                k = q * 4 + i
                P(f"v_mov_b32 v{8+i}, {'s%d' % (S_ST+2*k) if k < 13 else ('s98' if k == 13 else 's%d' % (S_SPIN if k == 14 else 99))}")
            P(f"buffer_store_dwordx4 v[8:11], v{vt}, {R(R_WS)}, s3 offen offset:{q*16}")
    P.wait(vm0=True)
    P.label('END'); P("s_endpgm")
    for f in K.ool: f()
    P.label('CODE_END')

def build(path, verbose=1, **kw):
    K = KK(**kw)
    P = K.P
    if PROF:
        for i in range(13): P(f"s_mov_b32 s{S_ST+2*i}, 0")
    prologue(K); phase1(K)
    if UPTO >= 2: phase2(K)
    if UPTO >= 3:
        import p3; p3.phase3(K)
    if UPTO >= 4:
        import p4; p4.phase45(K)
    finish(K)
    body = P.finalize(verbose)
    lab = NAME + '_kernel'
    mx = dict(P.maxreg); mx['v'] = 255; mx['a'] = 255
    txt = header() + f"; @launch grid=(256,1,1) block=(256,1,1) lds={4*PW}\n" + '.amdgcn_target "amdgcn-amd-amdhsa--gfx950"\n' + kernel_text(lab, body, mx)
    open(path, 'w').write(txt)
    print('bytes', len(txt))

if __name__ == '__main__':
    build(sys.argv[1] if len(sys.argv) > 1 else 'f.s', int(os.environ.get('V', 1)))
```

```python
from lib2 import *

PIECE_ROW = [0, 16, 4, 20]
L_XR, L_KV, L_QE, L_MISC = 0, 16384, 36864, 38912
L_CS = L_MISC
L_ST = L_MISC + 1024
L_QX = L_KV
vt, vt2, vt3 = 3, 4, 5
vXG, vXL, vWD, vQD, vRB = 6, 10, 12, 14, 16
vCS, vST, vCW, vSW, vG16, vJ4, vTAU, vG32 = 24, 25, 26, 27, 28, 29, 30, 31
WR = 32
AKV, AQ = 64, 128
CSK, CSQ, CSV, NMV, RSV, NM, RS, RSQ, GT = 160, 176, 192, 196, 204, 212, 214, 216, 220
vK, vV, vQ0, vQ1, vO, vFS, vFP, vWO, vWIN, vTIN, vWOUT, vTOUT, vSP = 240, 241, 242, 243, 244, 245, 246, 247, 249, 250, 251, 252, 253
vPOLL, vDUM = 254, 255
S_XO, S_T, S_TAB, S_A, S_B, S_C, S_D = 50, 51, 52, 68, 69, 70, 71
GL = int(os.environ.get('GL', 7))

def retry(K, name, reissue, check, cond='vccnz'):
    def ool():
        P = K.P
        P.label(name)
        for it in reissue: emit(P, it)
        P(f"s_add_u32 s{S_SPIN}, s{S_SPIN}, 1")
        if PROF: P(f"s_add_u32 s99, s99, {1 << (4 * ['G1', 'F1', 'FP', 'F2', 'F3', 'ZG', 'F4', 'F5'].index(name[3:5]))}")
        for it in check: emit(P, it)
        P(f"""s_cmp_lt_u32 s{S_SPIN}, {SPIN}
              s_cselect_b64 s[{S_C}:{S_C+1}], -1, 0
              s_and_b64 vcc, vcc, s[{S_C}:{S_C+1}]""")
        P(f"s_cbranch_vccnz {name}", trips=2)
        P(f"s_branch {name}_B")
    K.ool.append(ool)
    def br():
        K.P(f"s_cbranch_vccnz {name}"); K.P.label(name + '_B')
    return F(br)

def prologue(K):
    P = K.P
    P("s_cmp_ge_u32 s2, 256"); P("s_cbranch_scc1 END")
    for r, off in ((R_X, 0), (R_WQKV, 8), (R_WS, 80), (R_WO, 16), (R_WIN, 32), (R_WSP, 40), (R_BSP, 48), (R_WOUT, 56), (R_OUT, 64)):
        P(f"s_load_dwordx2 s[{r}:{r+1}], s[0:1], {off}")
    P(f"s_getpc_b64 s[{S_A}:{S_A+1}]"); P.label('PC0')
    P(f"""s_bfe_u32 s3, s2, 0x20003
          s_lshl_b32 s3, s3, 15
          v_lshl_add_u32 v{vt}, v0, 7, s3
          v_min_u32 v{vt}, CODE_END-PC0-4, v{vt}
          global_load_dword v{vDUM}, v{vt}, s[{S_A}:{S_A+1}]""")
    if PROF: P("s_memtime s[98:99]")
    stamp(P, 'start')
    P(f"""v_lshrrev_b32 v1, 6, v0
          v_and_b32 v0, 63, v0
          v_readfirstlane_b32 s{S_W}, v1
          v_lshlrev_b32 v{V_X}, 4, v0
          s_and_b32 s{S_RBA}, s2, 1
          s_lshl_b32 s{S_RBA}, s{S_RBA}, 3
          s_bfe_u32 s3, s2, 0x30003
          s_or_b32 s{S_RBA}, s{S_RBA}, s3
          s_bfe_u32 s{S_CBA}, s2, 0x20001
          s_lshl_b32 s{S_CBA}, s{S_CBA}, 2
          s_lshr_b32 s3, s2, 6
          s_or_b32 s{S_CBA}, s{S_CBA}, s3
          s_lshl_b32 s{S_R32A}, s{S_RBA}, 2
          s_add_u32 s{S_R32A}, s{S_R32A}, s{S_W}
          s_mul_i32 s{S_WB}, s{S_W}, {PW}
          s_and_b32 s{S_RB}, s2, 3
          s_lshl_b32 s{S_RB}, s{S_RB}, 2
          s_bfe_u32 s3, s2, 0x20003
          s_or_b32 s{S_RB}, s{S_RB}, s3
          s_bfe_u32 s{S_CB}, s2, 0x10002
          s_lshl_b32 s{S_CB}, s{S_CB}, 3
          s_lshr_b32 s3, s2, 5
          s_or_b32 s{S_CB}, s{S_CB}, s3
          s_lshl_b32 s{S_R32}, s{S_RB}, 2
          s_add_u32 s{S_R32}, s{S_R32}, s{S_W}
          s_mov_b32 s{S_SPIN}, 0""")
    for r, n in ((R_X, 4 * MB), (R_WQKV, 6 * MB), (R_WS, 256 * MB), (R_WO, 2 * MB), (R_WIN, 7 * MB), (R_WSP, 8 * MB), (R_BSP, 4096), (R_WOUT, 1792 * 2048), (R_OUT, 4 * MB)):
        P(f"s_mov_b32 s{r+2}, {n}\n s_mov_b32 s{r+3}, 0x20000")

def swz_addr(P, d, pitch, scol):
    P(f"""v_lshrrev_b32 v{vt}, 3, v0
          s_lshl_b32 s3, s{S_W}, 4
          v_add_u32 v{vt2}, s3, v{vt}
          v_mul_u32_u24 v{d}, {pitch}, v{vt2}
          v_add_u32 v{d}, s{scol}, v{d}
          v_bfe_u32 v{vt}, v0, 4, 1
          v_bfe_u32 v{vt2}, v0, 1, 2
          v_xor_b32 v{vt}, v{vt}, v{vt2}
          v_lshlrev_b32 v{vt}, 5, v{vt}
          v_and_b32 v{vt2}, 1, v0
          v_lshl_add_u32 v{vt}, v{vt2}, 4, v{vt}
          v_xor_b32 v{vt2}, 64, v{vt}
          v_add_u32 v{vt2}, {8*pitch-1024}, v{vt2}
          v_add_u32 v{d+1}, v{d}, v{vt2}
          v_add_u32 v{d}, v{d}, v{vt}""")

def row_addr(P, d, sbase):
    P(f"""v_lshrrev_b32 v{vt}, 3, v0
          v_and_b32 v{vt2}, 7, v0
          v_xor_b32 v{vt2}, v{vt2}, v{vt}
          v_lshlrev_b32 v{d}, 4, v{vt2}
          v_and_b32 v{vt2}, 3, v{vt}
          v_lshrrev_b32 v{vt}, 2, v{vt}
          v_lshl_add_u32 v{vt2}, v{vt}, 3, v{vt2}
          v_lshl_add_u32 v{d}, v{vt2}, 11, v{d}
          v_add_u32 v{d}, s{sbase}, v{d}""")
    for pc in range(1, 4): P(f"v_add_u32 v{d+pc}, {PIECE_ROW[pc]*2048 - pc*1024}, v{d}")

def xdma(s): return [T(f"buffer_load_dwordx4 v{vXG+pc}, {R(R_X)}, s{S_XO} offen offset:{pc*1024} lds", f'x{s}') for pc in range(4)]
def xadv(): return [f"s_add_u32 s{S_XO}, s{S_XO}, 128", f"s_and_b32 s{S_XO}, s{S_XO}, 0x7ff"]
def m0(off): return f"s_add_u32 m0, s{S_WB}, {off}"
def kvdma(s): return [T(f"buffer_load_dwordx4 v{vWD+rp}, {R(R_WQKV)}, s{S_TAB+s} offen offset:{seg*2048+rp*1024} lds", f'w{s}') for seg in range(2) for rp in range(2)]
def qdma(t): return [T(f"buffer_load_dwordx4 v{vQD+rp}, {R(R_WQKV)}, s{S_TAB+t} offen offset:{rp*1024} lds", f'q{t}') for rp in range(2)]
def kvslot(s): return L_KV + (s % 5) * 4096
def qloc(t):
    if t == 0: return L_QE
    u, e = (t - 1) >> 1, (t - 1) & 1
    return (L_XR + (u >> 1) * 4096 if u % 2 == 0 else kvslot(11 + (u >> 1))) + e * 2048
def xread(s): return [f"ds_read_b128 {ar(s*16+(kk*2+mb)*4,4)}, v{vXL+kk} offset:{L_XR+(s&3)*4096+mb*2048}" for kk in range(2) for mb in range(2)]
def trreads(slot, q, off): return [f"ds_read_b64_tr_b16 {vr(WR+slot*8+kk*4+hf*2,2)}, v{vRB+kk*4+q} offset:{off+hf*512}" for kk in range(2) for hf in range(2)]

def rb_addr(P):
    P(f"""v_lshrrev_b32 v{vt}, 5, v0
          v_mul_u32_u24 v{vt3}, {PW}, v{vt}
          v_bfe_u32 v{vt}, v0, 4, 1
          v_lshl_add_u32 v{vt3}, v{vt}, 10, v{vt3}
          v_bfe_u32 v{vt2}, v0, 2, 2
          v_lshl_add_u32 v{vt3}, v{vt2}, 7, v{vt3}
          v_and_b32 v{vt2}, 3, v0
          v_lshl_add_u32 v{vt3}, v{vt2}, 3, v{vt3}
          v_bfe_u32 v{vt2}, v0, 3, 2
          v_lshl_add_u32 v{vRB}, v{vt2}, 5, v{vt3}""")
    for q in range(1, 4): P(f"v_xor_b32 v{vRB+q}, {q*32}, v{vRB}")
    for q in range(4): P(f"v_add_u32 v{vRB+4+q}, {2*PW}, v{vRB+q}")

def phase1(K):
    P = K.P
    SX = AKV
    P(f"""s_lshl_b32 s{S_A}, s{S_R32A}, 16
          s_lshl_b32 s{S_B}, s{S_CBA}, 7
          s_lshl_b32 s{S_T}, s{S_RBA}, 4
          s_add_u32 s{S_T}, s{S_T}, s{S_CBA}
          s_lshl_b32 s{S_T}, s{S_T}, 2
          s_add_u32 s{S_T}, s{S_T}, s{S_W}
          s_lshl_b32 s{S_D}, s{S_T}, 12
          v_lshrrev_b32 v{vt}, 5, v0
          v_and_b32 v{vt2}, 31, v0
          v_lshlrev_b32 v{vST}, 4, v{vt2}
          v_lshl_add_u32 v{vt3}, v{vt}, 11, v{vST}
          s_lshr_b32 s3, s{S_RBA}, 3
          s_lshl_b32 s{S_XO}, s{S_RBA}, 1
          s_add_u32 s{S_XO}, s{S_XO}, s3
          {[f"s_lshl_b32 s3, s{S_CBA}, 2", f"s_and_b32 s3, s{S_CBA}, 12", f"s_lshl_b32 s3, s{S_CBA}, 3", f"s_mov_b32 s3, s{S_CBA}"][K.r1]}
          s_add_u32 s{S_XO}, s{S_XO}, s3
          s_and_b32 s{S_XO}, s{S_XO}, 15
          s_lshl_b32 s{S_XO}, s{S_XO}, 7""")
    P.wait(lg0=True); stamp(P, 'lk')
    if PROF: P("s_mov_b32 s99, 0")
    P(f"s_load_dword s{S_E}, s[{R_WS}:{R_WS+1}], {WS_EP}")
    for p in range(4): P(f"buffer_load_dwordx4 {vr(SX+4*p,4)}, v{vt3}, {R(R_X)}, s{S_D} offen offset:{p*512}")
    row_addr(P, vXG, S_A)
    swz_addr(P, vQD, 6144, S_B)
    for rp in range(2): P(f"v_add_u32 v{vWD+rp}, 2048, v{vQD+rp}")
    def tab(s):
        if s == 0: P(f"s_mul_i32 s{S_TAB}, s{S_XO}, 3072")
        else: P(f"s_add_u32 s3, s{S_XO}, {128*s}\n s_and_b32 s3, s3, 0x7ff\n s_mul_i32 s{S_TAB+s}, s3, 3072")
    def pre(j):
        if j < 4:
            P(m0(L_XR + j * 4096))
            if j: P(f"s_add_u32 s{S_C}, s{S_XO}, {128*j}\n s_and_b32 s{S_C}, s{S_C}, 0x7ff")
            for it in xdma(j): emit(P, T(it[1].replace(f's{S_XO} ', f's{S_C} ') if j else it[1], it[2]))
        P(m0(kvslot(j)))
        for it in kvdma(j): emit(P, it)
        if j == 0:
            P(m0(qloc(0)))
            for it in qdma(0): emit(P, it)
    todo = [1, 2, 3, 4]
    def spot(k):
        while todo and (K.so // 10 ** (4 - todo[0])) % 10 <= k: pre(todo.pop(0))
    stamp(P, 'l0')
    tab(0); pre(0); stamp(P, 'la')
    for s in range(1, 16): tab(s)
    spot(0); stamp(P, 'lb')
    P(f"""v_and_b32 v{vt}, 7, v0
          v_lshrrev_b32 v{vt2}, 4, v0
          v_xor_b32 v{vt}, v{vt}, v{vt2}
          v_lshlrev_b32 v{vXL}, 4, v{vt}
          v_and_b32 v{vt}, 15, v0
          v_lshl_add_u32 v{vXL}, v{vt}, 7, v{vXL}
          v_add_u32 v{vXL}, s{S_WB}, v{vXL}
          v_xor_b32 v{vXL+1}, 64, v{vXL}
          v_lshlrev_b32 v{vG16}, 4, v{vt2}
          v_lshlrev_b32 v{vJ4}, 2, v{vt}
          s_mul_i32 s3, s{S_W}, 192
          v_add_u32 v{vCW}, s3, v{vJ4}
          s_add_u32 s3, s{S_WB}, {L_ST}
          v_lshl_add_u32 v{vG32}, v{vt2}, 5, s3
          v_lshrrev_b32 v{vSW}, 2, v{vST}
          v_add_u32 v{vSW}, s3, v{vSW}
          v_bfe_u32 v{vt}, v0, 2, 2
          v_and_b32 v{vt2}, 3, v0
          v_lshl_add_u32 v{vt}, v{vt}, 3, v{vt2}
          v_lshl_add_u32 v{vTAU}, v{vt}, 2, s3""")
    rb_addr(P)
    spot(1)
    K.attn_addr()
    spot(2); stamp(P, 'lc')
    A = AKV + 16; ONE = AKV + 24
    P(f"v_mov_b32 v{ONE}, 0x3f803f80")
    for i in range(16):
        P(f"v_dot2_f32_bf16 v{A+(i&3)}, v{SX+i}, v{ONE}, {'v%d'%(A+(i&3)) if i > 3 else 0}")
        P(f"v_dot2_f32_bf16 v{A+4+(i&3)}, v{SX+i}, v{SX+i}, {'v%d'%(A+4+(i&3)) if i > 3 else 0}")
    P(f"""s_add_u32 s{S_E}, s{S_E}, 0x9e3779b9
          s_lshl_b32 s{S_T}, s{S_T}, 5
          v_mov_b32 v{V_E}, s{S_E}
          v_add_f32 v{A}, v{A}, v{A+1}
          v_add_f32 v{A+2}, v{A+2}, v{A+3}
          v_add_f32 v{A+4}, v{A+4}, v{A+5}
          v_add_f32 v{A+6}, v{A+6}, v{A+7}
          v_add_f32 v{A}, v{A}, v{A+2}
          v_add_f32 v{A+1}, v{A+4}, v{A+6}
          s_add_u32 s{S_T}, s{S_T}, {WS_ST1}""")
    for n in (8, 4, 2, 1):
        for v in (A, A + 1): P(f"v_add_f32_dpp v{v}, v{v}, v{v} row_ror:{n} row_mask:0xf bank_mask:0xf")
    for l in interleave(xsum(A, A + 2, 16), xsum(A + 1, A + 3, 16)): P(l)
    P(f"""v_mul_f32 v{A}, {f32(-1/1024)}, v{A}
          v_mul_f32 v{A+1}, {f32(1/1024)}, v{A+1}
          v_fma_f32 v{A+1}, -v{A}, v{A}, v{A+1}
          v_max_f32 v{A+1}, 0, v{A+1}
          v_add_f32 v{A+1}, {f32(1e-5)}, v{A+1}
          v_rsq_f32 v{A+1}, v{A+1}
          v_mov_b32 v{A+2}, v{V_E}
          v_mov_b32 v{A+3}, v{V_E}
          v_lshrrev_b32 v{vt}, 1, v0
          v_and_b32 v{vt2}, 31, v0
          v_cmp_eq_u32 vcc, 0, v{vt2}
          v_mov_b32 v{vt2}, {OOB}
          v_cndmask_b32 v{vt}, v{vt2}, v{vt}, vcc
          buffer_store_dwordx4 {vr(A,4)}, v{vt}, {R(R_WS)}, s{S_T} offen sc1""")
    spot(3); stamp(P, 'ld')
    SEL = AKV + 32; CF = AKV + 48; CD = CSK; CA = CSK + 4
    P(f"v_and_b32 v{vt}, 3, v0")
    for i in range(3):
        P(f"""s_mul_i32 s3, s{S_W}, 3
              s_add_u32 s3, s3, {i}
              s_and_b32 s{S_A}, s3, 3
              s_lshl_b32 s{S_A}, s{S_A}, 5
              s_lshr_b32 s3, s3, 2
              s_lshl_b32 s{S_B}, s3, 11
              s_add_u32 s{S_B}, s{S_B}, {L_KV - 2048}
              s_cmp_eq_u32 s3, 0
              s_cselect_b32 s{S_B}, {L_QE}, s{S_B}
              v_xor_b32 v{CA+2*i}, s{S_A}, v{vRB}
              v_add_u32 v{CA+2*i}, s{S_B}, v{CA+2*i}
              v_add_u32 v{CA+2*i+1}, {2*PW}, v{CA+2*i}
              v_cmp_eq_u32 vcc, {i}, v{vt}
              v_cndmask_b32 v{SEL+4*i}, 0, v{ONE}, vcc""")
        for r in range(1, 4): P(f"v_mov_b32 v{SEL+4*i+r}, v{SEL+4*i}")
    P(f"""s_lshl_b32 s{S_A}, s{S_CBA}, 2
          s_add_u32 s{S_A}, s{S_A}, s{S_W}
          s_lshl_b32 s{S_A}, s{S_A}, 12
          s_add_u32 s{S_A}, s{S_A}, {WS_CS1}
          s_lshl_b32 s{S_B}, s{S_RBA}, 8
          s_add_u32 s{S_B}, s{S_B}, s{S_A}
          v_cmp_gt_u32 vcc, 16, v0
          v_cndmask_b32 v{vCS}, v{vt2}, v{V_X}, vcc
          s_lshl_b32 s{S_T}, s{S_R32A}, 9
          s_add_u32 s{S_T}, s{S_T}, {WS_ST1}""")
    spot(4); stamp(P, 'pre0')
    P.wait(tag='x0')
    for l in xread(0): P(l)
    P.wait(tag='q0'); P("s_barrier")
    stamp(P, 'bar0')
    for i in range(3):
        for kk in range(2):
            for hf in range(2): P(f"ds_read_b64_tr_b16 {vr(CF+(i*2+kk)*4+hf*2,2)}, v{CA+2*i+kk} offset:{hf*512}")
    for i in range(6): P(mf16(CD, vr(SEL + 4 * (i >> 1), 4), vr(CF + 4 * i, 4), '0' if i == 0 else None))
    steps = []
    for s in range(16):
        for nb in range(8): steps.append((s, AKV + nb * 8, nb < 4, nb & 3, kvslot(s) + (nb >> 2) * 2048))
    for t in range(16):
        for q in range(4): steps.append((t, AQ + q * 8, True, q, qloc(t)))
    for i in range(3):
        for l in trreads(i, steps[i][3], steps[i][4]): P(l)
    spot(5)
    P(f"s_add_u32 s{S_XO}, s{S_XO}, {128 * (min(todo + [4]) - 1)}")
    P(f"v_mov_b32 v{CD+3}, v{V_E}")
    P(f"buffer_store_dwordx4 {vr(CD,4)}, v{vCS}, {R(R_WS)}, s{S_B} offen sc1")
    S = Sched(P, 'p1')
    for i, (s, acc, sw, q, off) in enumerate(steps):
        for mb in range(2):
            for kk in range(2):
                x = ar(s * 16 + (kk * 2 + mb) * 4, 4); w = vr(WR + (i & 3) * 8 + kk * 4, 4)
                c = '0' if s == 0 and kk == 0 else None
                S.add(mf16(acc + mb * 4, w, x, c) if sw else mf16(acc + mb * 4, x, w, c))
        if i + 3 < len(steps):
            for k, l in enumerate(trreads((i + 3) & 3, steps[i + 3][3], steps[i + 3][4])): S.put(4 * i + k, l)
    bar = {8 * s - 4: f'w{s} x{s}' for s in range(1, 16)}
    bar.update({124: 'q6', 128 + 28 - 4: 'q14', 128 + 60 - 4: 'q15'})
    for i in range(len(steps) - 1):
        regs = [vr(WR + ((i + 1) & 3) * 8, 8)]
        if i + 1 < 128 and (i + 1) % 8 == 0: regs.append(ar(steps[i + 1][0] * 16, 16))
        if i in bar: S.tail(4 * i + 3, W(regs, tag=bar[i], lg0=(i == K.csbar)), "s_barrier")
        else: S.tail(4 * i + 3, W(regs))
    for s in range(16):
        b = 32 * s
        if 2 <= s <= 12:
            S.put(b - 2, m0(kvslot(s + 3)))
            for k, it in enumerate(kvdma(s + 3)): S.put(b + 4 * k, it)
        if s >= 13:
            for e in range(2):
                t = 3 + 4 * (s - 13) + e
                S.put(b + 8 * e - 2, m0(qloc(t)))
                for k, it in enumerate(qdma(t)): S.put(b + 8 * e + 4 * k, it)
        if s < 2 and todo: pass
        elif s < 12:
            S.put(b + 9, xadv()[0]); S.put(b + 10, xadv()[1]); S.put(b + 14, m0(L_XR + (s & 3) * 4096))
            for k, it in enumerate(xdma(s + 4)): S.put(b + 16 + 4 * k, it)
        else:
            for e in range(2):
                t = 1 + 4 * (s - 12) + e
                S.put(b + 16 + 8 * e - 2, m0(qloc(t)))
                for k, it in enumerate(qdma(t)): S.put(b + 16 + 8 * e + 4 * k, it)
        if s < 15:
            for g, l in zip(((21, 25, 26, 29), (21, 22, 25, 26), (20, 21, 22, 23))[K.xr], xread(s + 1)): S.put(b + g, l)
    if todo:
        seq = [g for j in range(todo[0], 5) for g in (('x', j), ('w', j))] + [('x', 5)]
        n0 = min(4, len(seq) - K.s1)
        for st, gs in enumerate((seq[:n0], seq[n0:])):
            w = 32 // len(gs) & ~1; d = 2 if w < 16 else 4
            for k, (kind, j) in enumerate(gs):
                a = 32 * st + w * k
                pre_ = [(a - 5, xadv()[0]), (a - 3, xadv()[1]), (a - 1, m0(L_XR + (j & 3) * 4096))] if kind == 'x' else [(a - 1, m0(kvslot(j)))]
                for i, it in pre_:
                    if i < 0: P(it)
                    else: S.put(i, it)
                for i, it in enumerate(xdma(j) if kind == 'x' else kvdma(j)): S.put(a + d * i, it)
    for s in range(24): S.put(32 * s + 1, F(lambda s=s: stamp(P, f'a{s}'), 0))
    gl = [f"buffer_load_dwordx4 {vr(GT+4*i,4)}, v{V_X}, {R(R_WS)}, s{S_A} offen offset:{i*1024} sc1" for i in range(4)]
    gl.append(f"buffer_load_dwordx4 {vr(GT+16,4)}, v{vST}, {R(R_WS)}, s{S_T} offen sc1")
    chk = [f"v_bitop3_b32 v{vt}, v{GT+3}, v{V_E}, v{GT+7} bitop3:0x7e"] + [f"v_bitop3_b32 v{vt}, v{GT+r}, v{V_E}, v{vt} bitop3:0xbe" for r in (11, 15, 18)] + [f"v_cmp_ne_u32 vcc, 0, v{vt}"]
    S.stream(gl, 32 * GL, 32 * GL + 20)
    e = S.stream(chk, 32 * (GL + 2) + 20, 32 * (GL + 3) + 16, even=False)
    red = [retry(K, 'RT_G1', gl, chk)]
    red += [f"ds_write_b32 v{vSW}, v{GT+16}", f"ds_write_b32 v{vSW}, v{GT+17} offset:128"]
    for a, b_ in ((0, 4), (8, 12), (0, 8)): red += [f"v_add_f32 v{GT+a+r}, v{GT+a+r}, v{GT+b_+r}" for r in range(3)]
    for op in (16, 32): red += interleave(*[xsum(GT + r, GT + 4 + r, op) for r in range(3)])
    red += [f"ds_write_b32 v{vCW}, v{GT+r} offset:{L_CS+r*64}" for r in range(3)]
    e = S.stream(red, e + 3, 4 * K.csbar + 2)
    rd = [f"ds_read2_b32 {vr(NM,2)}, v{vTAU} offset0:0 offset1:4", f"ds_read2_b32 {vr(RS,2)}, v{vTAU} offset0:32 offset1:36"]
    rd += [f"ds_read_b128 {vr(CSK+4*nb,4)}, v{vG16} offset:{L_CS+(4+nb)*64}" for nb in range(4)]
    rd += [f"ds_read_b128 {vr(NMV+4*i,4)}, v{vG32} offset:{(i>>1)*128+(i&1)*16}" for i in range(4)]
    rd += [f"ds_read_b32 v{CSV+nb}, v{vJ4} offset:{L_CS+(8+nb)*64}" for nb in range(4)]
    rd += [f"s_lshl_b32 s{S_A}, s{S_CBA}, 19", f"s_lshl_b32 s3, s{S_R32A}, 12", f"s_add_u32 s{S_A}, s{S_A}, s3", f"s_add_u32 s{S_A}, s{S_A}, {WS_KV}", f"s_add_u32 s{S_B}, s{S_A}, 262144"]
    S.stream(rd, 4 * K.csbar + 4, 504)
    b = 512
    S.put(b + 1, m0(qloc(15)))
    for k, it in enumerate(qdma(15)): S.put(b + 2 + 2 * k, it)
    fl = lines(f"""s_lshl_b32 s{S_T}, s{S_CBA}, 12
          s_lshl_b32 s3, s{S_R32A}, 2
          s_add_u32 s3, s3, {WS_F1}
          s_add_u32 s{S_T}, s{S_T}, s3""")
    S.stream(fl, b + 8, b + 30)
    S.put(b + K.f1send, W(tag='kvst')); S.put(b + K.f1send + 1, f"buffer_atomic_swap v{V_E}, v{vFS}, {R(R_WS)}, s{S_T} offen sc1")
    if K.tb:
        y = lines(f"""s_lshr_b32 s{S_D}, s2, 3
          s_lshl2_add_u32 s{S_D}, s{S_D}, s{S_W}
          s_lshr_b32 s{S_C}, s{S_CB}, 3
          s_lshl4_add_u32 s{S_D}, s{S_D}, s{S_C}
          s_lshl_b32 s{S_D}, s{S_D}, 10
          v_lshrrev_b32 v{GT}, 3, v0
          v_and_b32 v{GT+1}, 7, v0
          v_lshl_add_u32 v{GT}, v{GT}, 11, s{S_D}
          v_lshl_add_u32 v{GT}, v{GT+1}, 7, v{GT}
          v_cmp_gt_u32 vcc, {64 // K.n_tw}, v0
          v_mov_b32 v{vDUM}, {OOB}
          v_cndmask_b32 v{vDUM}, v{vDUM}, v{GT}, vcc
          v_lshlrev_b32 v{GT+1}, 6, v0
          v_lshrrev_b32 v{GT+2}, 1, v0
          v_and_b32 v{GT+3}, 1, v0
          s_lshl_b32 s{S_D}, s{S_R32}, 9
          s_add_u32 s{S_D}, s{S_D}, s{S_CB}
          s_lshl_b32 s{S_D}, s{S_D}, 8
          v_lshl_add_u32 v{GT+3}, v{GT+3}, 7, s{S_D}
          v_lshl_add_u32 v{GT+2}, v{GT+2}, 12, v{GT+3}""")
        S.stream(y, b + 8, b + 31)
        y = [f"buffer_load_dword v{GT+k}, v{GT+k}, {R(r)}, 0 offen" for k, r in enumerate((R_WO, R_BSP, R_WSP)) if K.tb >> k & 1]
        S.stream(y, b + K.f1send + K.tbd, None, even=False)
    z = [f"ds_read_b128 {vr(CSQ+4*nb,4)}, v{vG16} offset:{L_CS+nb*64}" for nb in range(4)]
    z += [f"v_mul_f32 v{RSQ+mb}, {f32(math.log2(math.e)/math.sqrt(32))}, v{RS+mb}" for mb in range(2)]
    z += [f"v_mov_b32 v{r}, 0" for r in list(range(AKV, AKV + 64)) + list(range(CSK, CSK + 16))]
    z += lines(f"""s_lshl_b32 s{S_A}, s{S_CBA}, 4
          s_add_u32 s{S_A}, s{S_A}, s{S_RBA}
          s_lshl_b32 s{S_A}, s{S_A}, 1
          s_lshr_b32 s3, s{S_W}, 1
          s_add_u32 s{S_A}, s{S_A}, s3
          s_lshl_b32 s{S_A}, s{S_A}, 7
          s_add_u32 s{S_A}, s{S_A}, {WS_F1}
          s_lshl_b32 s{S_XO}, s{S_CBA}, 1
          s_and_b32 s{S_B}, s{S_W}, 1
          s_add_u32 s{S_XO}, s{S_XO}, s{S_B}
          s_lshl_b32 s{S_XO}, s{S_XO}, 1
          s_add_u32 s{S_XO}, s{S_XO}, s3
          s_lshl_b32 s{S_XO}, s{S_XO}, 17
          s_add_u32 s{S_XO}, s{S_XO}, {WS_KV}""")
    z += K.passb_extra()
    S.stream(z, b + 32, b + K.f1poll - 2)
    pl = [f"v_mov_b32 v{vPOLL}, 0", f"buffer_atomic_or v{vPOLL}, v{vFP}, {R(R_WS)}, s{S_A} offen sc0 sc1"]
    ck = [f"v_cmp_ne_u32 vcc, v{vPOLL}, v{V_E}", "s_mov_b32 vcc_hi, 0"]
    S.stream(pl, b + K.f1poll - 2, b + K.f1poll + 4, even=False)
    e = S.stream([W([vr(vPOLL)])] + ck, b + K.f1chk, b + K.f1chk + 5, even=False)
    e = S.stream([retry(K, 'RT_F1', pl, ck)], e + 2, e + 4, even=False)
    kvf = K.kv_first(); nk = 1 + 5 * K.kvs
    S.stream(kvf[:nk], e + 1); kvf = kvf[nk:]
    if K.xp:
        for x in S.s[:512]:
            def keep(it):
                t = itext(it)
                if K.xp & 1 and 'lds' in t and f'{R(R_X)}' in t: return False
                if K.xp & 2 and 'lds' in t and f'{R(R_WQKV)}' in t: return False
                if K.xp & 4 and t.startswith('ds_read_b128 a'): return False
                if K.xp & 8 and t.startswith('ds_read_b64_tr'): return False
                if K.xp & 16 and t.startswith('s_barrier'): return False
                return True
            x['post'] = [i for i in x['post'] if keep(i)]; x['tail'] = [i for i in x['tail'] if keep(i)]
    S.emit(0, 512)
    stamp(P, 'pa1')
    def pack(a0, a1): return [f"v_cvt_pk_bf16_f32 v{a0}, v{a0}, v{a0+1}", f"v_cvt_pk_bf16_f32 v{a0+1}, v{a0+2}, v{a0+3}",
                              f"v_cvt_pk_bf16_f32 v{a0+2}, v{a1}, v{a1+1}", f"v_cvt_pk_bf16_f32 v{a0+3}, v{a1+2}, v{a1+3}"]
    def swapped(acc, cs, rs, hh, mb):
        aa = [(acc + (2 * hh + e) * 8 + mb * 4 + 2 * i, cs + (2 * hh + e) * 4 + 2 * i) for e in range(2) for i in range(2)]
        for a, c in aa: P(pk('fma', a, bc(NM + mb), pr(c), pr(a)))
        for a, c in aa: P(pk('mul', a, pr(a), bc(rs + mb)))
        for l in pack(aa[0][0], aa[2][0]): P(l)
        return aa[0][0]
    for hh in range(2):
        for mb in range(2):
            t = swapped(AKV, CSK, RS, hh, mb)
            P(f"buffer_store_dwordx4 {vr(t,4)}, v{V_X}, {R(R_WS)}, s{S_B if hh else S_A} offen offset:{mb*1024} sc1", tag='kvst')
    for nb in range(4):
        a = AKV + 32 + nb * 8
        for i in range(4): P(pk('fma', a + 2 * i, pr(NMV + 2 * i), bc(CSV + nb), pr(a + 2 * i)))
        for i in range(4): P(pk('mul', a + 2 * i, pr(a + 2 * i), pr(RSV + 2 * i)))
        for l in pack(a, a + 4): P(l)
        P(f"buffer_store_dwordx4 {vr(a,4)}, v{V_X}, {R(R_WS)}, s{S_B if nb >> 1 else S_A} offen offset:{2048+(nb&1)*1024} sc1", tag='kvst')
    S.emit(512)
    stamp(P, 'pb1')
    P(f"v_add_u32 v{vt}, s{S_WB}, v{V_X}")
    if DBG: P(f"s_lshl_b32 s{S_A}, s{S_CBA}, 18\n s_lshl_b32 s3, s{S_R32A}, 11\n s_add_u32 s{S_A}, s{S_A}, s3\n s_add_u32 s{S_A}, s{S_A}, {WS_DQ}\n s_add_u32 s{S_B}, s{S_A}, 131072")
    for hh in range(2):
        for mb in range(2):
            for j in range((len(kvf) + 3 - hh * 2 - mb) // (4 - hh * 2 - mb)): P(kvf.pop(0))
            t = swapped(AQ, CSQ, RSQ, hh, mb)
            P(f"ds_write_b128 v{vt}, {vr(t,4)} offset:{L_QX+hh*2048+mb*1024}")
            if DBG: P(f"buffer_store_dwordx4 {vr(t,4)}, v{V_X}, {R(R_WS)}, s{S_B if hh else S_A} offen offset:{mb*1024}")
    P.wait(lg0=True); P("s_barrier")
```

```python
from p1 import *

SB, OB, LB = 176, 64, 160
aQ, aKV, aSP, aIN, aOUT = 0, 32, 160, 192, 224
SEL, IDX, ONES, CM, XR = 32, 36, 40, 44, 48
CD = 128
vFC, vL4, vEW, vER, vXO, vF2, vVO, vVW = 6, 7, 8, 9, 10, 11, 12, 13
L_SC = 30720
L_WOUT = 26624
S_KB, S_RHO, S_PASS = 51, 52, 53
S0, S1, S2, S3, S4, S5, S6 = 54, 55, 56, 57, 58, 59, 60
S_O, S_WO, S_LINE = 61, 62, 63
S_XB = 64

DN = int(os.environ.get('K_dn', 0))
def attn_addr(K):
    P = K.P
    P(f"""v_lshrrev_b32 v{vt}, 5, v0
          v_lshlrev_b32 v{vt3}, 8, v{vt}
          v_bfe_u32 v{vt}, v0, 2, 1
          v_lshl_add_u32 v{vK}, v{vt}, {6 if DN else 10}, v{vt3}
          v_lshl_add_u32 v{vV}, v{vt}, 7, v{vt3}
          v_bfe_u32 v{vt}, v0, 3, 1
          v_lshl_add_u32 v{vK}, v{vt}, {10 if DN else 6}, v{vK}
          v_bfe_u32 v{vt}, v0, 4, 1
          v_lshl_add_u32 v{vK}, v{vt}, 7, v{vK}
          v_and_b32 v{vt}, 3, v0
          v_lshl_add_u32 v{vK}, v{vt}, 4, v{vK}
          v_lshl_add_u32 v{vV}, v{vt}, 4, v{vV}
          v_bfe_u32 v{vt}, v0, 3, 1
          v_lshl_add_u32 v{vV}, v{vt}, 6, v{vV}
          v_bfe_u32 v{vt}, v0, 4, 1
          v_lshl_add_u32 v{vV}, v{vt}, 10, v{vV}
          v_lshl_add_u32 v{vO}, v{vt}, 10, v{vt3}
          v_and_b32 v{vt}, 15, v0
          v_lshl_add_u32 v{vO}, v{vt}, 4, v{vO}
          v_min_u32 v{vt}, 13, v{vt}
          v_lshlrev_b32 v{vWIN}, 4, v{vt}
          v_lshrrev_b32 v{vt}, 4, v0
          v_mul_u32_u24 v{vt2}, 7168, v{vt}
          v_add_u32 v{vWIN}, v{vWIN}, v{vt2}
          v_lshlrev_b32 v{vSP}, 4, v{vt}
          v_bfe_u32 v{vt}, v0, 2, 2
          v_lshl_add_u32 v{vSP}, v{vt}, 15, v{vSP}
          v_and_b32 v{vt}, 3, v0
          v_lshl_add_u32 v{vSP}, v{vt}, 12, v{vSP}
          v_lshl_add_u32 v{vt}, v{vt}, 3, s{S_WB}
          v_lshrrev_b32 v{vt2}, 2, v0
          v_lshl_add_u32 v{vTIN}, v{vt2}, 8, v{vt}
          v_lshl_add_u32 v{vTOUT}, v{vt2}, 7, v{vt}
          v_lshrrev_b32 v{vt}, 3, v0
          v_and_b32 v{vt2}, 7, v0
          v_lshlrev_b32 v{vt2}, 4, v{vt2}
          v_lshl_add_u32 v{vWOUT}, v{vt}, 11, v{vt2}
          s_and_b32 s3, s{S_W}, 1
          s_lshl_b32 s3, s3, 11
          s_lshr_b32 s{S_A}, s{S_W}, 1
          s_mul_i32 s{S_A}, s{S_A}, {2*PW}
          s_add_u32 s{S_B}, s{S_A}, s3
          v_add_u32 v{vQ1}, s{S_B}, v{vO}
          s_sub_u32 s{S_B}, s3, s{S_A}
          s_add_u32 s{S_B}, s{S_B}, {2*PW}
          v_add_u32 v{vQ0}, s{S_B}, v{vO}
          v_mov_b32 v{vt2}, {OOB}
          v_cmp_gt_u32 vcc, 16, v0
          v_lshlrev_b32 v{vt}, 8, v0
          v_cndmask_b32 v{vFS}, v{vt2}, v{vt}, vcc
          v_cmp_gt_u32 vcc, 32, v0
          v_lshlrev_b32 v{vt}, 2, v0
          v_cndmask_b32 v{vFP}, v{vt2}, v{vt}, vcc
          s_lshl_b32 s{S_A}, s{S_CB}, 7""")
    swz_addr(P, vWO, 2048, S_A)

def passb_extra(K):
    return lines(f"""v_mov_b32 v{vt2}, {OOB}
          v_cmp_gt_u32 vcc, 16, v0
          v_lshlrev_b32 v{vt}, 13, v0
          v_cndmask_b32 v{vFC}, v{vt2}, v{vt}, vcc
          v_lshlrev_b32 v{vt}, 7, v0
          v_cmp_gt_u32 vcc, 32, v0
          v_lshlrev_b32 v{vL4}, 2, v0
          v_cndmask_b32 v{vF2}, v{vt2}, v{vt}, vcc
          v_add_u32 v{vEW}, s{S_WB}, v{V_X}
          s_xor_b32 s{S_D}, s{S_W}, 2
          s_mul_i32 s{S_D}, s{S_D}, {PW}
          v_add_u32 v{vER}, s{S_D}, v{V_X}
          v_and_b32 v{vt}, 3, v0
          v_lshl_add_u32 v{vVO}, v{vt}, 4, s{S_WB}
          s_lshl_b32 s{S_D}, s{S_W}, 4
          v_mul_u32_u24 v{vVW}, {PW}, v{vt}
          v_add_u32 v{vVW}, s{S_D}, v{vVW}
          v_lshlrev_b32 v{vXO}, 11, v{vt}
          v_bfe_u32 v{vt}, v0, 2, 2
          v_lshl_add_u32 v{vXO}, v{vt}, 14, v{vXO}
          v_bfe_u32 v{vt}, v0, 4, 1
          v_lshl_add_u32 v{vXO}, v{vt}, 5, v{vXO}
          v_lshrrev_b32 v{vt}, 5, v0
          v_lshl_add_u32 v{vXO}, v{vt}, 4, v{vXO}
          {[f"s_lshl1_add_u32 s{S_RHO}, s{S_RB}, s{S_CB}", f"s_mov_b32 s{S_RHO}, s2", f"s_mov_b32 s{S_RHO}, s{S_RB}", f"s_lshl2_add_u32 s{S_RHO}, s{S_CB}, s{S_RB}"][K.r3]}
          s_and_b32 s{S_RHO}, s{S_RHO}, 7
          s_mov_b32 s{S_PASS}, 0
          s_lshl_b32 s{S_LINE}, s{S_R32}, 4
          s_add_u32 s{S_LINE}, s{S_LINE}, s{S_CB}
          s_lshl_b32 s{S_LINE}, s{S_LINE}, 7
          s_lshl_b32 s{S_XB}, s{S_R32}, 16
          s_lshl_b32 s{S_D}, s{S_CB}, 7
          s_add_u32 s{S_XB}, s{S_XB}, s{S_D}""")

def kreg(kt, c): return ar(aKV + (kt & 7) * 16 + c * 4, 4)
def vreg(kt, u): return ar(aKV + (kt & 7) * 16 + 8 + u * 4, 4)
def kload(kt): return [f"buffer_load_dwordx4 {kreg(kt,c)}, v{vK}, {R(R_WS)}, s{S_XO} offen offset:{c*512} sc1" for c in range(2)]
def vload(kt): return [f"buffer_load_dwordx4 {vreg(kt,u)}, v{vV}, {R(R_WS)}, s{S_XO} offen offset:{2048+u*512} sc1" for u in range(2)]
KADV = f"s_add_u32 s{S_XO}, s{S_XO}, 4096"
NF = int(os.environ.get('K_nf', 2))
def kv_first(K):
    r = [f"s_mov_b32 s{S_KB}, s{S_XO}"]
    for kt in range(NF): r += kload(kt) + vload(kt) + [KADV]
    return r
def qk(n, c): return mf32(SB + (n & 3) * 16, kreg(n >> 2, c), ar(aQ + ((n & 3) * 2 + c) * 4, 4), '0' if c == 0 else None)
def pv(n, u): return f"v_smfmac_f32_32x32x32_bf16 {vr(OB+(n&3)*16,16)}, {vreg(n>>2,u)}, {vr(SB+(n&3)*16+u*8,8)}, v{IDX}"
def sm(n, u): return f"v_smfmac_f32_16x16x64_bf16 {vr(LB+(n&3)*4,4)}, {vr(SEL,4)}, {vr(SB+(n&3)*16+u*8,8)}, v{IDX}"
def ck(n, i): b = SB + (n & 3) * 16; return f"v_cvt_pk_bf16_f32 v{b+i}, v{b+2*i}, v{b+2*i+1}"
if DN:
    def pv(n, u): return mf32(OB + (n & 3) * 16, vreg(n >> 2, u), vr(SB + (n & 3) * 16 + u * 4, 4))
    def sm(n, u): return f"v_smfmac_f32_16x16x64_bf16 {vr(LB+(n&3)*4,4)}, {vr(SEL,4)}, {vr(SB+(n&3)*16,8)}, v{IDX}" if u == (DN & 1) else ''
def lsum(t): return [f"v_add_f32 v{LB+t*4}, v{LB+t*4}, v{LB+t*4+1}"] if DN else (xsum(LB + t * 4, LB + t * 4 + 1, 32) if int(os.environ.get('K_sm', 3)) & 8 else [])
def exw(t): return [f"ds_write_b128 v{vEW}, {vr(OB+t*16+q*4,4)} offset:{L_SC+(t*4+q)*1024}" for q in range(4)] + [f"ds_write_b32 v{vEW}, v{LB+t*4} offset:{L_SC+8192+t*4}"]
LP = CM
def exr(): return [f"ds_read_b64 {vr(LP,2)}, v{vER} offset:{L_SC+8192}"] + [f"ds_read_b128 {vr(SB+q*4,4)}, v{vER} offset:{L_SC+q*1024}" for q in range(8)]
def wodma(s, off):
    return [m0(off), G(*[T(f"buffer_load_dwordx4 v{vWO+rp}, {R(R_WO)}, s{S_WO} offen offset:{rp*1024} lds", f'wo{s}') for rp in range(2)]),
            f"s_add_u32 s{S_WO}, s{S_WO}, 131072", f"s_and_b32 s{S_WO}, s{S_WO}, 0x1fffff"]
def woloc(s): return s * 2048
def AT(n): return ('at', n)
def ST(regs, va, so, off, tag, w='x4'): return T(f"buffer_store_dword{w} {regs}, v{va}, {R(R_WS)}, s{so} offen offset:{off} sc1", tag)

def jobs(K):
    U2, U3, UT = 65, 66, 67
    class Pace:
        def __init__(self, t, d): self.t = t * 2; self.d = d
        def __call__(self): r = AT(self.t // 2); self.t += self.d; return r
    J = []; pl_ = Pace(K.t_in, K.d_l)
    J += lines(f"""s_lshr_b32 s{S0}, s{S_RB}, 1
          s_lshl2_add_u32 s{S0}, s{S0}, s{S_W}
          s_and_b32 s{S1}, s{S_RB}, 1
          s_mul_i32 s{S2}, s{S0}, {32*7168}
          s_mul_i32 s3, s{S1}, 3584
          s_add_u32 s{S2}, s{S2}, s3
          s_mul_i32 s3, s{S_CB}, 224
          s_add_u32 s{S2}, s{S2}, s3""")
    for p in range(8):
        if p: J.append(f"s_add_u32 s{S2}, s{S2}, {28672 + (3072 if p == 4 else -1024)}")
        J += [pl_(), G(m0(L_SC + (p >> 2) * 4096), T(f"buffer_load_dwordx4 v{vWIN}, {R(R_WIN)}, s{S2} offen offset:{(p&3)*1024} lds", 'win'))]
    J += lines(f"""s_cmp_ge_u32 s{S_RB}, 14
          s_cselect_b32 s3, 2, 0
          s_sub_u32 s{S5}, s{S_RB}, s3
          s_lshl2_add_u32 s{S5}, s{S5}, s{S_W}
          s_mul_i32 s{S2}, s{S5}, 37
          s_lshr_b32 s{S2}, s{S2}, 8
          s_mul_i32 s3, s{S2}, 7
          s_sub_u32 s{S3}, s{S5}, s3
          s_mul_i32 s{S2}, s{S2}, 224
          s_lshl_b32 s{S6}, s{S3}, 5
          s_cmp_ge_u32 s{S3}, 3
          s_cselect_b32 s3, 16, 0
          s_add_u32 s{S6}, s{S6}, s3
          s_cmp_eq_u32 s{S3}, 6
          s_cselect_b32 s{S6}, 96, s{S6}
          s_cselect_b32 s3, {96*2048}, 0
          s_add_u32 s3, s3, 15360
          s_add_u32 s{S2}, s{S2}, s{S6}
          s_lshl_b32 s{S2}, s{S2}, 11
          s_lshl_b32 s{S6}, s{S_CB}, 7
          s_add_u32 s{S2}, s{S2}, s{S6}""")
    for p in range(4):
        if p: J.append(f"s_add_u32 s{S2}, s{S2}, {'s3' if p == 2 else 15360}")
        J += [pl_(), G(m0(L_WOUT), T(f"buffer_load_dwordx4 v{vWOUT}, {R(R_WOUT)}, s{S2} offen offset:{p*1024} lds", 'wout'))]
    J += lines(f"""s_lshl_b32 s{S4}, s{S_R32}, 17
          s_lshl_b32 s3, s{S_CB}, 8
          s_add_u32 s{S2}, s{S4}, s3
          s_add_u32 s{S3}, s{S2}, 16384""")
    for mb in range(2):
        for kb in range(0, 4, 2):
            J += [pl_(), G(*[f"buffer_load_dwordx4 {ar(aSP+((kb+e)*2+mb)*4,4)}, v{vSP}, {R(R_WSP)}, s{S2+mb} offen offset:{(kb+e)*64}" for e in range(2)])]; pl_()
    J.append(f"s_add_u32 s{S2}, s{S_XB}, 8192")
    for mb in range(2):
        J += [pl_(), G(*[f"buffer_load_dwordx4 {vr(XR+(mb*2+p)*4,4)}, v{vXO}, {R(R_X)}, s{S2 if mb else S_XB} offen offset:{p*64}" for p in range(2)])]; pl_()
    J2 = []
    if K.t_tw:
        for p in range(K.n_tw): J2 += [f"s_mov_b32 s{S_WO}, {p * 16384 // K.n_tw}", AT(K.t_tw + p * K.d_tw), f"buffer_load_dword v{vPOLL}, v{vDUM}, {R(R_WO)}, s{S_WO} offen"]
    J2 += [AT(K.t_wo), f"s_lshl_b32 s{S_WO}, s{S_RHO}, 18"]
    for s in range(15):
        w = wodma(s, woloc(s)); J2 += [AT(K.t_wo + (s * K.d_wo) // 2), G(w[0], *w[1][1])] + w[2:]
    ps = Pace(K.t_out, K.d_s)
    JS = [AT(K.t_out - 4)] + lines(f"""s_lshl1_add_u32 s{UT}, s{S_CB}, s{S1}
          s_lshl_b32 s{UT}, s{UT}, 5
          s_add_u32 s{UT}, s{UT}, s{S0}
          s_mul_i32 s{U2}, s{UT}, 7168
          s_add_u32 s{U2}, s{U2}, {WS_WIN}
          s_add_u32 s{U3}, s{U2}, 4096""")
    JS += [AT(K.t_out - 2), W(tag='win')]
    rd = lambda nb: [G(*[f"ds_read_b64_tr_b16 {ar(aIN+nb*4+hf*2,2)}, v{vTIN} offset:{L_SC+hf*4096+nb*32}" for hf in range(2)])]
    JS += rd(0)
    for nb in range(7):
        JS += [ps(), G(W([ar(aIN + nb * 4, 4)]), ST(ar(aIN + nb * 4, 4), V_X, U2 + (nb >> 2), (nb & 3) * 1024, 'pt'), mf16(CD + nb * 4, vr(ONES, 4), ar(aIN + nb * 4, 4), '0'))]
        if nb + 1 < 7: JS += rd(nb + 1)
    JS += lines(f"""s_lshl2_add_u32 s{UT}, s{S_CB}, s{S_W}
          s_lshl4_add_u32 s{UT}, s{UT}, s{S_RB}
          s_lshl_b32 s{UT}, s{UT}, 9
          s_add_u32 s{U3}, s{UT}, {WS_CSP}
          s_mul_i32 s{U2}, s{S_CB}, 56
          s_add_u32 s{U2}, s{U2}, s{S5}
          s_lshl_b32 s{U2}, s{U2}, 12
          s_add_u32 s{U2}, s{U2}, {WS_WOUT}""")
    JS.append(G(*[f"v_mov_b32_dpp v{CD+(nb>>2)*16}, v{CD+nb*4} quad_perm:[0,1,2,3] row_mask:{hex(1<<(nb&3))} bank_mask:0xf" for nb in (1, 5, 2, 6, 3)]))
    rd = lambda nb: [G(*[f"ds_read_b64_tr_b16 {ar(aOUT+nb*4+hf*2,2)}, v{vTOUT} offset:{L_WOUT+hf*2048+nb*32}" for hf in range(2)])]
    JS += [W(tag='wout')] + rd(0) + [G(ST(vr(CD), vL4, U3, 0, 'pt', ''), ST(vr(CD + 16), vL4, U3, 256, 'pt', ''))]
    for nb in range(4):
        JS += [ps(), G(W([ar(aOUT + nb * 4, 4)]), ST(ar(aOUT + nb * 4, 4), V_X, U2, nb * 1024, 'pt'))]
        if nb + 1 < 4: JS += rd(nb + 1)
    JS += lines(f"""s_lshl_b32 s{UT}, s{S_CB}, 13
          s_add_u32 s{U2}, s{S4}, s{UT}
          s_add_u32 s{U2}, s{U2}, {WS_WSP}
          s_add_u32 s{U3}, s{U2}, 4096
          s_lshl4_add_u32 s{S0}, s{S_W}, s{S_CB}
          s_lshl_b32 s{S0}, s{S0}, 7
          s_lshl2_add_u32 s{S0}, s{S_RB}, s{S0}
          s_add_u32 s{S0}, s{S0}, {WS_FP}""")
    for i in range(8):
        JS += [ps(), ST(ar(aSP + i * 4, 4), V_X, U2 + (i >> 2), (i & 3) * 1024, 'sp')]
        if i == K.i_fp: JS.append(G(W(tag='pt'), f"buffer_atomic_swap v{V_E}, v{vFC}, {R(R_WS)}, s{S0} offen sc1"))
    J += [AT(K.t_fp - 8)] + lines(f"""s_lshr_b32 s3, s{S_W}, 1
          s_lshl1_add_u32 s{S4}, s{S_RBA}, s3
          s_and_b32 s3, s{S_W}, 1
          s_lshl1_add_u32 s{S5}, s{S_CBA}, s3
          s_lshl_b32 s{S_O}, s{S4}, 17
          s_lshl_b32 s3, s{S5}, 11
          s_add_u32 s{S_O}, s{S_O}, s3
          s_add_u32 s{S_O}, s{S_O}, {WS_O}
          s_lshl_b32 s{S4}, s{S4}, 12
          s_lshl2_add_u32 s{S4}, s{S5}, s{S4}
          s_add_u32 s{S4}, s{S4}, {WS_F2}
          s_add_u32 s{S5}, s{S_O}, 65536
          s_add_u32 s{S1}, s{S_LINE}, {WS_FP}
          s_lshl2_add_u32 s3, s{S_CB}, s{S_W}
          s_lshl_b32 s3, s3, 13
          s_add_u32 s{S2}, s3, {WS_CSP}
          s_add_u32 s{S3}, s{S2}, 4096""")
    pl = [f"v_mov_b32 v{vPOLL}, 0", f"buffer_atomic_or v{vPOLL}, v{vFP}, {R(R_WS)}, s{S1} offen sc0 sc1"]
    ck = [f"v_cmp_ne_u32 vcc, v{vPOLL}, v{V_E}", "s_and_b64 vcc, vcc, 0xffff"]
    J += [AT(K.t_fp), G(*pl), AT(K.t_fp + 8), G(W([vr(vPOLL)]), ck[0]), ck[1], retry(K, 'RT_FP', pl, ck)]
    for p in range(4):
        J.append(G(*[f"buffer_load_dwordx4 {vr(CD+(2*p+e)*4,4)}, v{V_X}, {R(R_WS)}, s{S2+(p>>1)} offen offset:{((2*p+e)&3)*1024} sc1" for e in range(2)]))
    return J, JS, J2

def phase2(K):
    P = K.P
    for t in range(4):
        for c in range(2): P(f"ds_read_b128 {ar(aQ+(t*2+c)*4,4)}, v{vQ0+(t>>1)} offset:{(t&1)*PW+L_QX+c*512}")
    P(f"""v_bfe_u32 v{vt}, v0, 2, 1
          v_mov_b32 v{ONES}, 0x3f803f80
          v_cmp_eq_u32 vcc, 0, v{vt}
          v_mov_b32 v{IDX}, 0xdddddddd
          v_mov_b32 v{ONES+1}, v{ONES}
          v_cndmask_b32 v{SEL}, 0, v{ONES}, vcc
          v_cndmask_b32 v{SEL+2}, v{ONES}, 0, vcc
          v_mov_b32 v{ONES+2}, v{ONES}
          v_mov_b32 v{ONES+3}, v{ONES}
          v_and_b32 v{vt}, {K.sm}, v0
          v_cmp_eq_u32 vcc, 0, v{vt}
          v_cndmask_b32 v{SEL}, 0, v{SEL}, vcc
          v_cndmask_b32 v{SEL+2}, 0, v{SEL+2}, vcc
          v_mov_b32 v{SEL+1}, v{SEL}
          v_mov_b32 v{SEL+3}, v{SEL+2}""")
    if DN: P(f"v_and_b32 v{vt}, 1, v0\n v_mul_u32_u24 v{vt}, 0xaaaa, v{vt}\n v_add_u32 v{IDX}, 0x4444, v{vt}")
    for n in range(2):
        for c in range(2): P(qk(n, c))
    stamp(P, 'at0')
    JJ = jobs(K)
    if K.nojobs:
        JJ = ([x for x in JJ[0] if isinstance(x, str) and x.startswith('s_')], [], [])
        K.ool.pop()
    fixed = {}
    def fx(n, pos, *items): fixed.setdefault((n, pos), []).extend(items)
    cur = 0
    for kt in range(NF, 32):
        n = 4 * (kt - 8) + 2
        if cur > n: fx(cur, 2, *kload(kt))
        else: fx(n, 5, *kload(kt))
        if cur >= n + 2: fx(cur, 5, *vload(kt)); fx(cur + 1, 0, KADV); cur += 1
        else: fx(n + 2, 5, *vload(kt)); fx(n + 3, 4, KADV); cur = n + 4
    for kt in range(1, 32): fx(4 * kt - 3, 5, W([ar(aKV + (kt & 7) * 16, 16)]))
    fx(0, 4, W(lg0=True)); fx(5, 2, "s_barrier")
    for t in range(2):
        w = exw(t); fx(126 + t, 1, *w[:2]); fx(126 + t, 4, *w[2:4]); fx(126 + t, 5, *lsum(t), w[4])
    issalu = lambda it: (itext(it).startswith('s_') and 'buffer' not in str(it)) or (not isinstance(it, str) and it[0] == 'fn')
    last = 0; log = []
    for n in range(128):
        ms = [pv(n - 1, 0), qk(n + 2, 0), sm(n - 1, 0), pv(n - 1, 1), qk(n + 2, 1), sm(n - 1, 1)]
        e = 0; ms2 = [None] * 6; ad = [[] for _ in range(6)]
        m = n - 1; sb = SB + (m & 3) * 16; lb = LB + (m & 3) * 4
        if K.av & 3 == 1 and (m >> 2) % 8: ms[2] = ms[5] = ''
        if K.av & 3 == 2 and n:
            ms[2] = ms[5] = ''
            for j in range(16): ad[(0, 0, 1, 1, 2, 2, 2, 2, 3, 3, 4, 4, 5, 5, 5, 5)[j]].append(f"v_add_f32 v{lb+(j&3)}, v{lb+(j&3)}, v{sb+j}")
        if K.av & 3 == 3 and n:
            ms[2] = ms[5] = ''
            for j in range(8): ad[(0, 1, 2, 2, 3, 4, 5, 5)[j]].append(pk('add', lb + (j & 1) * 2, pr(lb + (j & 1) * 2), pr(sb + 2 * j)))
        if K.av & 4:
            for u in range(2):
                ms[3 * u], ms2[3 * u] = [f"v_smfmac_f32_16x16x64_bf16 {vr(OB+(m&3)*16+(u*2+j)*4,4)}, {vreg(m>>2,j)}, {vr(sb+u*8,8)}, v{IDX}" for j in range(2)]
        if K.av & 8:
            for u in range(2):
                ms[3 * u + 1], ms2[3 * u + 1] = [mf16(SB + ((n + 2) & 3) * 16 + (u * 2 + j) * 4, kreg((n + 2) >> 2, j), ar(aQ + (((n + 2) & 3) * 2 + u) * 4, 4), '0') for j in range(2)]
        stamp(P, f't{n}')
        pat = [[(3, 3, 2, 3, 3, 2), ([], [], [], [], [], [])], [(3, 3, 2, 3, 3, 2), ([-1], [0], [1, 2], [3], [4], [5, 6])],
               [(3, 3, 2, 3, 3, 2), ([-1], [0], [1, 2], [3], [4], [5, 6])], [(3, 3, 2, 3, 3, 2), ([-1, 0], [1], [2], [3, 4], [5], [6])],
               [(3, 3, 2, 3, 4, 1), ([-1], [0], [1, 2], [3, 4], [], [5, 6])], [(3, 4, 1, 3, 3, 2), ([-1], [], [0, 1, 2], [3], [4], [5, 6])]][DN]
        for pos in range(6):
            for i in pat[1][pos]:
                if i >= 0 or n: ad[pos].append(ck(n, i) if i >= 0 else ck(n - 1, 7))
        for pos, ne in enumerate(pat[0]):
            on = not ((n == 0 and pos % 3 != 1) or (n >= 126 and pos % 3 == 1))
            if on: P(ms[pos])
            f = fixed.get((n, pos), [])
            for it in f: emit(P, it)
            for J in JJ[::-1]:
                while J and not isinstance(J[0], str) and J[0][0] == 'at' and J[0][1] <= n: J.pop(0)
                if J and not f and (isinstance(J[0], str) or J[0][0] != 'at'):
                    if issalu(J[0]) or pos % 3 == 2:
                        it = J.pop(0); emit(P, it); last = n; f = [it]
                        if 'buffer' in str(it) or 'tag' in str(it): log.append(f"{n}:{re.findall(r'buffer_(.....).*?, (s.[0-9]+)', str(it))[:1] or 'W'}")
            for i in range(ne):
                r = SB + (n & 3) * 16 + e; e += 1
                P(f"v_exp_f32 v{r}, v{r}")
                if i == (1 if pos % 3 == 0 else 0) and on and ms2[pos]: P(ms2[pos])
            for l in ad[pos]: P(l)
    assert not any(JJ)
    print(re.sub(r"[\[\]'() ,]", '', ';'.join(log)).replace(';', ' '))
    print('  attention jobs end at tile', last)
    stamp(P, 'at1')
    if DN: P(ck(127, 7))
    P.wait(lg0=True); P("s_barrier")
    for l in exr(): P(l)
    for l in (pv(127, 0), sm(127, 0), pv(127, 1), sm(127, 1)): P(l)
    P.label('AT_FIN')
    RC, CH = CM + 2, SB + 32
    for a in range(2):
        o = OB + (2 + a) * 16; r = SB + a * 16; l = LB + (2 + a) * 4
        for x in lsum(2 + a): P(x)
        P(f"v_add_f32 v{LP+a}, v{LP+a}, v{l}")
        for i in range(4): P(pk('add', o + 2 * i, pr(o + 2 * i), pr(r + 2 * i)))
        P(f"v_rcp_f32 v{RC+a}, v{LP+a}")
        for i in range(4, 8): P(pk('add', o + 2 * i, pr(o + 2 * i), pr(r + 2 * i)))
        for c in range(2):
            for i in range(4): P(pk('mul', o + c * 8 + 2 * i, pr(o + c * 8 + 2 * i), bc(RC + a)))
            for i in range(4): P(f"v_cvt_pk_bf16_f32 v{r+c*4+i}, v{o+c*8+2*i}, v{o+c*8+2*i+1}")
            emit(P, ST(vr(r + c * 4, 4), vO, S5 if a else S_O, c * 512, 'ost'))
    for a in range(2):
        for c in range(2): P(mf16(CH, vr(ONES, 4), vr(SB + a * 16 + c * 4, 4), '0' if a + c == 0 else None))
    P(f"""v_min_f32 v{vt}, v{LP}, v{LP+1}
          v_max_f32 v{vt2}, v{LP}, v{LP+1}
          v_cmp_nle_f32 vcc, {f32(2.0**-40)}, v{vt}
          s_mov_b64 s[{S_A}:{S_A+1}], vcc
          v_cmp_nge_f32 vcc, {f32(2.0**64)}, v{vt2}
          s_or_b64 s[{S_A}:{S_A+1}], s[{S_A}:{S_A+1}], vcc
          v_cmp_u_f32 vcc, v{LP}, v{LP+1}
          s_or_b64 s[{S_A}:{S_A+1}], s[{S_A}:{S_A+1}], vcc
          v_mov_b32 v{vt}, 0x207
          v_cmp_class_f32 vcc, v{CH}, v{vt}
          s_or_b64 s[{S_A}:{S_A+1}], s[{S_A}:{S_A+1}], vcc
          s_cselect_b32 s3, 1, 0
          v_mov_b32 v{vt}, s3
          ds_write_b32 v{vVW}, v{vt} offset:{L_SC+8192+8}""")
    P.wait(lg0=True, tag='wo14')
    P(f"""s_barrier
          ds_read_b32 v{vt}, v{vVO} offset:{L_SC+8192+8}
          v_cmp_lt_u32 vcc, s{S_PASS}, v{vt}""")
    P("s_cbranch_vccnz AT_FB")
    def fb():
        M = 24
        P.label('AT_FB')
        P(f"s_mov_b32 s{S_PASS}, 1\n s_mov_b32 s{S_XO}, s{S_KB}\n s_mov_b32 s{S6}, 0")
        for t in range(4): P(f"v_mov_b32 v{M+t}, 0xff800000")
        P.label('AT_FB1')
        for l in kload(0): P(l)
        P(KADV); P(f"s_add_u32 s{S6}, s{S6}, 1\n s_cmp_lt_u32 s{S6}, 32")
        for t in range(4):
            for c in range(2): P(qk(t, c))
        for t in range(4):
            for j in range(8): P(f"v_max3_f32 v{M+t}, v{M+t}, v{SB+t*16+2*j}, v{SB+t*16+2*j+1}")
        P("s_cbranch_scc1 AT_FB1", trips=2)
        for t in range(4): P(f"v_mov_b32 v{vt}, v{M+t}\n v_permlane32_swap_b32 v{vt}, v{M+t}\n v_max_f32 v{M+t}, v{vt}, v{M+t}")
        P(f"ds_write_b128 v{vEW}, {vr(M,4)} offset:{L_SC+9216}")
        P.wait(lg0=True); P("s_barrier")
        P(f"ds_read_b128 {vr(M+4,4)}, v{vER} offset:{L_SC+9216}")
        for r in list(range(OB, OB + 64)) + list(range(LB, LB + 16)): P(f"v_mov_b32 v{r}, 0")
        for t in range(4): P(f"v_max_f32 v{M+t}, v{M+t}, v{M+4+(t^2)}")
        P(f"s_mov_b32 s{S_XO}, s{S_KB}\n s_mov_b32 s{S6}, 0")
        P.label('AT_FB2')
        for l in kload(0) + vload(0): P(l)
        P(KADV); P(f"s_add_u32 s{S6}, s{S6}, 1\n s_cmp_lt_u32 s{S6}, 32")
        for t in range(4):
            for c in range(2): P(qk(t, c))
        for t in range(4):
            for j in range(16): P(f"v_sub_f32 v{SB+t*16+j}, v{SB+t*16+j}, v{M+t}")
            for j in range(16): P(f"v_exp_f32 v{SB+t*16+j}, v{SB+t*16+j}")
            for j in range(8 if DN else 0): P(ck(t, j))
            for l in (pv(t, 0), sm(t, 0), pv(t, 1), sm(t, 1)): P(l)
        P("s_cbranch_scc1 AT_FB2", trips=2)
        for t in range(2):
            for l in lsum(t) + exw(t): P(l)
        P.wait(lg0=True); P("s_barrier")
        for l in exr(): P(l)
        P("s_branch AT_FIN")
    K.ool.append(fb)
    stamp(P, 'vote')
```

```python
from p2 import *

L_CSP = 32768
L_CSF, L_K, L_Z = 0, 1024, 1536
L_RING, SLOT = 5120, 7168
def slot(T): return L_RING + ((T + 4) % 5) * SLOT
ACC3, HR = 64, 176
vX4 = 13
vLR = [V_X, 14, 15, 24]
vTH, vTW, vTZ, vTS, vTU, vTO, vT3 = 25, 26, 27, 28, 29, 30, 31
vFR, vF5, vHS, vZS, vJ, vG, vZW, vB = 240, 241, 242, 243, 244, 245, 249, 250
S_SA, S_SW = 50, 51
SA, SW = [50, 66], [51, 67]
S_M = 54
S7, S8, S9, S10, S11 = 53, 60, 61, 62, 65
def RL(s, v, lane): return f"v_readlane_b32 s{s}, v{v}, {lane}"
def wdma(T):
    tab, ln = (vTW, T) if T < 16 else ((vTZ, T - 16) if T < 32 else (vTU, T - 32))
    d = [T_(f"buffer_load_dwordx4 v{vX4 if p >= 4 else V_X}, {R(R_WS)}, s{SW[T&1]} offen offset:{(p&3)*1024} sc1 lds", f'ring{T}') for p in range(7)]
    return [RL(SW[T & 1], tab, ln), m0(slot(T))] + d[:4] + [m0(slot(T) + 4096)] + d[4:]
T_ = T
def poll(so, r=vPOLL): return [f"v_mov_b32 v{r}, 0", f"buffer_atomic_or v{r}, v{vFP}, {R(R_WS)}, s{so} offen sc0 sc1"]
def pchk(n, r=vPOLL): return [f"v_cmp_ne_u32 vcc, v{r}, v{V_E}", "s_mov_b32 vcc_hi, 0" if n == 32 else f"s_and_b64 vcc, vcc, {hex((1<<n)-1)}"]
def retry2(K, name, so, n):
    def ool():
        P = K.P
        P.label(name)
        for it in poll(so) + pchk(n, vDUM): emit(P, it)
        P(f"s_cbranch_vccz {name}_B", grp=[name])
        for it in poll(so, vDUM): emit(P, it)
        P(f"s_add_u32 s{S_SPIN}, s{S_SPIN}, 1")
        if PROF: P(f"s_add_u32 s99, s99, {1 << (4 * ['G1', 'F1', 'FP', 'F2', 'F3', 'ZG', 'F4', 'F5'].index(name[3:5]))}")
        for it in pchk(n): emit(P, it)
        P(f"""s_cmp_lt_u32 s{S_SPIN}, {SPIN}
              s_cselect_b64 s[{S_C}:{S_C+1}], -1, 0
              s_and_b64 vcc, vcc, s[{S_C}:{S_C+1}]""")
        P(f"s_cbranch_vccnz {name}", trips=2)
        P(f"s_branch {name}_B")
    K.ool.append(ool)
    def br():
        K.P(f"s_cbranch_vccnz {name}", grp=[name]); K.P.label(name + '_B')
    return F(br)
def send(va, so): return f"buffer_atomic_swap v{V_E}, v{va}, {R(R_WS)}, s{so} offen sc1"

def rot(d, mode, sh):
    if mode == 1: return f"s_lshr_b32 s{d}, s{S_RB}, 2"
    if mode == 2: return f"s_lshr_b32 s{d}, s{S_CB}, {sh}\n s_add_u32 s{d}, s{d}, s{S_RB}"
    if mode == 3: return f"s_lshr_b32 s{d}, s{S_CB}, {sh}\n s_add_u32 s{d}, s{d}, s{S_RB}\n s_lshl_b32 s{d}, s{d}, 1\n s_lshr_b32 s3, s{S_RB}, 2\n s_add_u32 s{d}, s{d}, s3"
    if mode == 4: return f"s_mov_b32 s{d}, s{S_RB}"
    if mode == 5: return f"s_lshr_b32 s{d}, s{S_CB}, {sh}"
    if mode == 6: return f"s_mov_b32 s{d}, 0"
def order8(mode, sh):
    a, b = vt, vt2
    if mode == 0: return f"v_add_u32 v{a}, s{S_RHO}, v0\n v_and_b32 v{vt3}, 7, v{a}"
    return rot(S8, mode, sh) + f"""
          v_add_u32 v{a}, s{S8}, v0
          v_and_b32 v{a}, 3, v{a}
          s_lshr_b32 s3, s{S_CB}, 1
          s_and_b32 s3, s3, 4
          v_add_u32 v{b}, s3, v0
          v_and_or_b32 v{vt3}, v{b}, 4, v{a}"""
def order16(wz, mode):
    a, b = vt, vt2
    if mode == 0: return f"""{f's_mov_b32 s{S8}, s{S_RHO}' if wz == 8 else (f's_add_u32 s{S8}, s{S_RB}, s{S_CB}' if wz < 8 else '')}
          s_sub_u32 s3, s{S_RB}, s{S8}
          s_and_b32 s3, s3, {wz-1}
          s_and_b32 s{S9}, s{S_RB}, {16-wz}
          s_or_b32 s3, s3, s{S9}
          v_cmp_ge_u32 vcc, s3, v0
          v_subbrev_co_u32 v{a}, vcc, 0, v0, vcc
          v_add_u32 v{b}, s{S8}, v{a}
          v_and_b32 v{a}, 15, v{a}
          v_bfi_b32 v{a}, {wz-1}, v{b}, v{a}
          v_writelane_b32 v{a}, s{S_RB}, 0"""
    return rot(S8, mode, 0) + f"""
          v_mov_b32 v{a}, s{S8}
          v_mov_b32 v{b}, s{S_RB}
          v_cmp_gt_u32 vcc, 4, v0
          v_cndmask_b32 v{a}, v{a}, v{b}, vcc
          v_add_u32 v{a}, v{a}, v0
          v_and_b32 v{a}, 3, v{a}
          s_and_b32 s3, s{S_RB}, 12
          v_add_u32 v{b}, s3, v0
          v_and_or_b32 v{a}, v{b}, 12, v{a}"""
def tables_a(K):
    a, b = vt, vt2
    return f"""v_add_u32 v{vX4}, 4096, v{V_X}
          {order8(K.r4, 0)}
          s_lshl_b32 s3, s{S_CB}, 1
          s_add_u32 s3, s3, 1
          s_lshl_b32 s3, s3, 5
          s_add_u32 s3, s3, s{S_W}
          v_lshl_add_u32 v{a}, v{vt3}, 2, s3
          v_bfe_u32 v{b}, v0, 3, 1
          v_lshlrev_b32 v{b}, 5, v{b}
          v_sub_u32 v{a}, v{a}, v{b}
          v_mul_u32_u24 v{vTW}, 7168, v{a}
          v_add_u32 v{vTW}, {WS_WIN}, v{vTW}"""
def tables_b(K):
    a, b = vt, vt2
    return f"""s_lshl_b32 s{S7}, s{S_R32}, 16
          s_add_u32 s3, s{S7}, {WS_H}
          v_lshl_add_u32 v{vTH}, v{vt3}, 13, s3
          s_lshl_b32 s{S8}, s{S_RHO}, 1
          v_add_u32 v{a}, s{S8}, v0
          v_and_b32 v{b}, 15, v{a}
          s_add_u32 s3, s{S7}, {WS_O}
          v_lshl_add_u32 v{vT3}, v{b}, 12, s3
          {order16(K.wz, K.r5)}
          s_lshl_b32 s3, s{S7}, 1
          s_add_u32 s3, s3, {WS_WSP}
          v_lshl_add_u32 v{vTS}, v{a}, 13, s3
          s_lshl_b32 s3, s{S_CB}, 6
          s_add_u32 s3, s3, s{S_W}
          v_lshl_add_u32 v{a}, v{a}, 2, s3
          v_mul_u32_u24 v{vTZ}, 7168, v{a}
          v_add_u32 v{vTZ}, {WS_Z2}, v{vTZ}
          {order8(K.r6, 1)}
          s_and_b32 s3, s{S_CB}, 1
          s_lshl_b32 s3, s3, 1
          s_lshr_b32 s{S8}, s{S_W}, 1
          s_add_u32 s3, s3, s{S8}
          s_lshl2_add_u32 s3, s{S_RB}, s3
          s_and_b32 s{S9}, s{S_W}, 1
          s_lshl4_add_u32 s3, s3, s{S9}
          v_lshl_add_u32 v{a}, v{vt3}, 1, s3
          v_mul_u32_u24 v{vTU}, 7168, v{a}
          v_add_u32 v{vTU}, {WS_U}, v{vTU}
          s_and_b32 s3, s{S_CB}, 14
          s_add_u32 s3, s3, s{S8}
          s_mul_i32 s3, s3, {56*4096}
          s_lshl_b32 s{S9}, s{S9}, 11
          s_add_u32 s3, s3, s{S9}
          s_add_u32 s3, s3, {WS_WOUT}
          v_mul_u32_u24 v{vTO}, {7*4096}, v{vt3}
          v_add_u32 v{vTO}, s3, v{vTO}
          v_add_u32 v{vLR[1]}, {PW}, v{V_X}
          v_add_u32 v{vLR[2]}, {2*PW}, v{V_X}
          v_add_u32 v{vLR[3]}, {3*PW}, v{V_X}
          v_mov_b32 v{b}, {OOB}
          v_cmp_gt_u32 vcc, 16, v0
          v_lshlrev_b32 v{a}, 7, v0
          v_cndmask_b32 v{vFR}, v{b}, v{a}, vcc
          v_cmp_gt_u32 vcc, 8, v0
          v_lshlrev_b32 v{a}, 8, v0
          v_cndmask_b32 v{vF5}, v{b}, v{a}, vcc
          v_lshrrev_b32 v{vG}, 4, v0
          v_bfe_u32 v{a}, v0, 2, 2
          v_and_b32 v{vJ}, 15, v0
          v_cmp_eq_u32 vcc, v{a}, v{vG}
          v_lshlrev_b32 v{vHS}, 4, v{vJ}
          v_and_b32 v{vt3}, 3, v0
          v_cndmask_b32 v{vHS}, v{b}, v{vHS}, vcc
          v_lshl_add_u32 v{vB}, v{a}, 3, v{vt3}
          v_lshlrev_b32 v{vB}, 1, v{vB}
          v_lshl_add_u32 v{vt3}, v{vG}, 2, v{vt3}
          v_and_b32 v{a}, 8, v0
          v_lshl_add_u32 v{vt3}, v{a}, 1, v{vt3}
          v_and_b32 v{a}, 4, v0
          v_cmp_eq_u32 vcc, 0, v{a}
          v_lshlrev_b32 v{vt3}, 4, v{vt3}
          v_lshl_add_u32 v{vJ}, v{vJ}, 2, s{S_WB}
          v_cndmask_b32 v{vZS}, v{b}, v{vt3}, vcc
          v_lshl_add_u32 v{vG}, v{vG}, 4, s{S_WB}
          v_and_b32 v{a}, 31, v0
          v_lshl_add_u32 v{vZW}, v{a}, 2, s{S_WB}
          s_mov_b32 s{S_M}, 0x22222222
          s_mov_b32 s{S_M+1}, 0x22222222
          s_mov_b32 s{S_M+2}, 0x44444444
          s_mov_b32 s{S_M+3}, 0x44444444
          s_mov_b32 s{S_M+4}, 0x88888888
          s_mov_b32 s{S_M+5}, 0x88888888"""

def unpack(acc, x):
    r = []
    for i in range(4): r += [f"v_lshlrev_b32 v{acc(i)}, 16, v{x+i}", f"v_and_b32 v{acc(i)+1}, 0xffff0000, v{x+i}"]
    return r
def oload(n, so): return f"buffer_load_dwordx4 {ar(n*4,4)}, v{V_X}, {R(R_WS)}, s{so} offen offset:{(n&3)*1024} sc1"

def phase3(K):
    P = K.P
    for it in wodma(15, L_SC)[:2]: emit(P, it)
    A3 = lambda nb, mb: ACC3 + nb * 8 + mb * 4
    for q in range(4):
        for r in range(2): P(f"v_permlane16_swap_b32 v{XR+q*4+r}, v{XR+q*4+r+2}")
    for i in (16, 8, 4):
        for r in range(0, i, 2): P(pk('add', CD + r, pr(CD + r), pr(CD + i + r)))
    for mb in range(2):
        for p in range(2):
            for l in unpack(lambda i: A3(2 * p + (i >> 1), mb) + (i & 1) * 2, XR + (mb * 2 + p) * 4): P(l)
    P(f"ds_write_b128 v{vEW}, {vr(CD,4)} offset:{L_CSP}")
    P(tables_a(K))
    P(f"s_add_u32 s{S10}, s{S_LINE}, {WS_F2}")
    w0 = wdma(0)
    if K.e2: emit(P, poll(S10)[0]); emit(P, w0.pop(0)); emit(P, w0.pop(0))
    stamp(P, 'f2w'); P.wait(tag='ost'); P(send(vF2, S4)); stamp(P, 'f2s')
    if K.e2 == 1: emit(P, poll(S10)[1])
    for it in w0: emit(P, it)
    if K.e2 == 2: emit(P, poll(S10)[1])
    P(tables_b(K))
    steps = [(s, q) for s in range(16) for q in range(4)]
    for i in range(3):
        for l in trreads(i, steps[i][1], woloc(steps[i][0])): P(l)
    P(f"v_mov_b32 v{HR+16}, 0x3f803f80")
    for r in range(1, 4): P(f"v_mov_b32 v{HR+16+r}, v{HR+16}")
    SO = [S_SA, S7, S8, S9]
    for s in range(4): P(RL(SO[s], vT3, s))
    stamp(P, 'f2p')
    if K.e2:
        for it in poll(S10, vDUM) + pchk(32) + [retry2(K, 'RT_F2', S10, 32)]: emit(P, it)
    else:
        for it in poll(S10) + pchk(32) + [retry(K, 'RT_F2', poll(S10), pchk(32))]: emit(P, it)
    stamp(P, 'f2')
    N0 = K.n3
    for n in range(N0): P(oload(n, SO[n >> 2]))
    S = Sched(P, 'p3')
    for i, (s, q) in enumerate(steps):
        for mb in range(2):
            for kk in range(2):
                S.add(mf16(A3(q, mb), vr(WR + (i & 3) * 8 + kk * 4, 4), ar(s * 16 + (kk * 2 + mb) * 4, 4)))
        if i + 3 < 64:
            for k, l in enumerate(trreads((i + 3) & 3, steps[i + 3][1], woloc(steps[i + 3][0]))): S.put(4 * i + (k & 2), l)
        n = N0 + i
        if n < 64:
            S.put(4 * i + 1, oload(n, SO[(n >> 2) & 3]))
            if (n & 3) == 3 and (n >> 2) + 4 < 16: S.put(4 * i + 3, RL(SO[(n >> 2) & 3], vT3, (n >> 2) + 4))
    for k in range(N0 >> 2):
        if k + 4 < 16: S.put(4 * k + 3, RL(SO[k & 3], vT3, k + 4))
    BI = 51
    for i in range(63):
        regs = [vr(WR + ((i + 1) & 3) * 8, 8)]
        if (i + 1) % 4 == 0: regs.append(ar(steps[i + 1][0] * 16, 16))
        if i == BI: S.tail(4 * i + 3, W(regs, tag='wo15'), "s_barrier")
        else: S.tail(4 * i + 3, W(regs))
    w1 = wdma(1)
    i0 = max(64 - N0, BI + 1)
    S.put(4 * i0 - 5, w1[0]); S.put(4 * i0 - 9, w1[1])
    for k, it in enumerate(w1[2:6] + w1[7:]): S.put(4 * (i0 + k) + 1, it)
    S.put(4 * (i0 + 3) + 3, w1[6])
    for k in range(4): S.tail(4 * (BI + 1 + k) + 3, f"ds_read_b128 {vr(CD+4*k,4)}, v{vLR[k]} offset:{L_CSP}")
    sc = lines(f"""s_lshl_b32 s{S7}, s{S_R32}, 16
          s_lshl_b32 s3, s{S_CB}, 12
          s_add_u32 s{S7}, s{S7}, s3
          s_add_u32 s{S7}, s{S7}, {WS_H}
          s_lshl_b32 s{S8}, s{S_LINE}, 1
          s_add_u32 s{S8}, s{S8}, {WS_HST}
          s_lshl_b32 s{S9}, s{S_R32}, 11
          s_lshl2_add_u32 s{S9}, s{S_CB}, s{S9}
          s_add_u32 s{S9}, s{S9}, {WS_F3}
          s_add_u32 s{S10}, s{S_LINE}, {WS_F3}""")
    S.stream(sc, 4 * (64 - N0) + 2, 248)
    def cvt(mb, p): return [f"v_cvt_pk_bf16_f32 v{HR+(mb*2+p)*4+i}, v{A3(2*p+(i>>1),mb)+(i&1)*2}, v{A3(2*p+(i>>1),mb)+(i&1)*2+1}" for i in range(4)]
    def hst(mb, p): return ST(vr(HR + (mb * 2 + p) * 4, 4), V_X, S7, p * 2048 + mb * 1024, 'hst')
    c = cvt(0, 0) + cvt(1, 0)
    for k in range(4): S.put(249 + k + (k >= 2), *c[2 * k:2 * k + 2])
    S.put(254, hst(0, 0)); S.put(255, hst(1, 0))
    P.wait([ar(0, 16), vr(WR, 8)])
    S.emit()
    stamp(P, 'p3e')
    SS = HR + 20
    def stat(mb, p):
        h = vr(HR + (mb * 2 + p) * 4, 4)
        return [mf16(SS + mb * 8, vr(HR + 16, 4), h, None if p else '0'), mf16(SS + mb * 8 + 4, h, h, None if p else '0')]
    for l in stat(0, 0): P(l)
    for l in cvt(0, 1): P(l)
    emit(P, hst(0, 1))
    for l in stat(1, 0): P(l)
    for l in cvt(1, 1): P(l)
    emit(P, hst(1, 1))
    for l in stat(0, 1) + stat(1, 1): P(l)
    def sel():
        for mb in range(2):
            q = SS + mb * 8 + 4
            P(f"""v_cndmask_b32 v{q}, v{q}, v{q+1}, s[{S_M}:{S_M+1}]
                  v_cndmask_b32 v{q+2}, v{q+2}, v{q+3}, s[{S_M+4}:{S_M+5}]""")
        P(f"v_mov_b32 v{SS+2}, v{SS+8}")
        P(f"s_or_b64 vcc, s[{S_M+2}:{S_M+3}], s[{S_M+4}:{S_M+5}]")
        for mb in range(2):
            q = SS + mb * 8 + 4
            P(f"v_cndmask_b32 v{SS+1+2*mb}, v{q}, v{q+2}, vcc")
        emit(P, ST(vr(SS, 4), vHS, S8, 0, 'hst'))
    def csum():
        for i in (8, 4):
            for r in range(0, i, 2): P(pk('add', CD + r, pr(CD + r), pr(CD + i + r)))
    w2 = wdma(2)
    if not K.e3:
        P("s_barrier")
        for it in w2[:2]: emit(P, it)
        csum(); sel()
        for it in w2[2:]: emit(P, it)
        P(f"ds_write_b128 v{vEW}, {vr(CD,4)} offset:{L_CSF}")
        stamp(P, 'f3w'); P.wait(tag='hst sp'); P(send(vFR, S9)); stamp(P, 'f3s')
        return
    for it in w2[:2]: emit(P, it)
    csum(); sel()
    P.wait(tag='ring0'); P("s_barrier")
    P(f"ds_write_b128 v{vEW}, {vr(CD,4)} offset:{L_CSF}")
    K.wq = w2[2:] + wdma(3) + (wdma(4) if K.rs == 5 else [])
    def some(n):
        while K.wq and (n > 0 or 'buffer' not in itext(K.wq[0])):
            it = K.wq.pop(0); emit(P, it); n -= 'buffer' in itext(it)
    K.some = some
    some(K.na)
    emit(P, poll(S10)[0])
    stamp(P, 'f3w'); P.wait(tag='hst sp'); P(send(vFR, S9)); stamp(P, 'f3s')
```

```python
from p3 import *

C1 = 2 * math.sqrt(2 / math.pi) * math.log2(math.e)
C2 = C1 * 0.044715
A2, A1 = 64, 120
RC, CS2, TT, BQ, GZ, SQ, KC = 120, 152, 176, 184, 192, 224, 16
ZC, CQ, HQ, A6 = SQ, BQ, 176, 64
vU1, vU3 = 16, 17
def a2(nb, mb): return A2 + nb * 8 + mb * 4
def a1(nb, mb): return A1 + nb * 8 + mb * 4
def a6(f, nb): return A6 + (f * 2 + nb) * 4
def wf(i, k): return WR + (i & 1) * 16 + k * 4
def af(T, kb, mb): return ar((T & 7) * 32 + (kb * 2 + mb) * 4, 4)
def oloc(n):
    if n >= 96: n -= 96
    if n < 12: return vr(GZ + 4 * n, 4)
    if n < 76: return ar(4 * (n - 12), 4)
    return vr(96 + 4 * (n - 76), 4)
def pack(a0, b0): return [f"v_cvt_pk_bf16_f32 v{a0}, v{a0}, v{a0+1}", f"v_cvt_pk_bf16_f32 v{a0+1}, v{a0+2}, v{a0+3}",
                          f"v_cvt_pk_bf16_f32 v{a0+2}, v{b0}, v{b0+1}", f"v_cvt_pk_bf16_f32 v{a0+3}, v{b0+2}, v{b0+3}"]
def LD(regs, p, so, tag=None): return T(f"buffer_load_dwordx4 {regs}, v{vX4 if p >= 4 else V_X}, {R(R_WS)}, s{so} offen offset:{(p&3)*1024} sc1", tag)
def ST7(reg, p, so, tag): return ST(vr(reg, 4), vX4 if p >= 4 else V_X, so, (p & 3) * 1024, tag)
def isvm(it): return itext(it).startswith('buffer_') or (not isinstance(it, str) and it[0] == 'grp' and any(isvm(x) for x in it[1]))

class Sch(Sched):
    hold = True
    def fits(self, i, it, extra):
        x = self.s[i]
        if isvm(it): return x.get('vm', False) and x['load'] == 0
        if x['cap'] > 2: return itext(it).startswith(('s_', 'v_readlane'))
        if x.get('vm') and (self.hold or x['load']): return False
        return super().fits(i, it, extra)
    def back(self, it, lo, hi):
        for extra in range(6):
            for i in range(hi, lo - 1, -1):
                if self.fits(i, it, extra): self.put(i, it); return i
        raise ValueError('no room ' + itext(it))
    def dag(self, ops, start, end):
        pos = [None] * len(ops); tw = sum(weight(o[0]) for o in ops); acc = 0; first = 0
        for i in range(start, end):
            while first < len(ops) and pos[first] is not None: first += 1
            k = first
            while k < min(len(ops), first + 80) and acc * (end - start) * 0.93 <= (i - start + 1) * tw:
                it, deps = ops[k]
                if pos[k] is None and all(pos[d] is not None and pos[d] < i for d in deps) and self.fits(i, it, 0):
                    self.put(i, it); pos[k] = i; acc += weight(it)
                k += 1
        assert all(p is not None for p in pos), 'dag does not fit'
        return max(pos)

def frag_reads(i):
    T_, q = divmod(i, 7)
    if T_ < 32: return [f"ds_read_b128 {vr(wf(i,k),4)}, v{vLR[k]} offset:{slot(T_)+q*1024}" for k in range(4)]
    if q < 6: return [f"ds_read_b128 {vr(wf(i,f),4)}, v{vLR[(f&2)+q//3]} offset:{slot(T_)+((q%3)*2+(f&1))*1024}" for f in range(4)]
    o = (slot(T_) + 6144) // 512
    return [f"ds_read2st64_b64 {vr(wf(i,f),4)}, v{(vLR[0], vU1, vLR[2], vU3)[f]} offset0:{o} offset1:{o+PW//512}" for f in range(4)]

def phase45(K):
    P = K.P
    NT = 40 if UPTO >= 6 else 32
    if K.e3:
        K.some(K.nb); emit(P, poll(S10)[1]); K.some(K.nc)
        for it in poll(S10, vDUM): emit(P, it)
        K.some(99)
    else:
        for T_ in (3, 4):
            for it in wdma(T_): emit(P, it)
    P(f"""{RL(SA[0], vTH, 0)}
          {RL(SA[1], vTH, 1)}
          s_lshl_b32 s{S7}, s{S_R32}, 12
          s_add_u32 s{S7}, s{S7}, {WS_HST}
          s_lshl_b32 s{S8}, s{S_R32}, 6""")
    bl = [f"buffer_load_ushort v{BQ+4*mb}, v{vB}, {R(R_BSP)}, s{S8} offen offset:{mb*8}" for mb in range(2)]
    if not K.e3:
        for l in bl: P(l)
        P.wait(tag='ring0'); P("s_barrier")
    for i in range(2):
        for l in frag_reads(i): P(l)
    stamp(P, 'f3p')
    if K.e3:
        for it in pchk(16) + [retry2(K, 'RT_F3', S10, 16)]: emit(P, it)
    else:
        for it in poll(S10) + pchk(16) + [retry(K, 'RT_F3', poll(S10), pchk(16))]: emit(P, it)
    stamp(P, 'f3')
    S = Sch(P, 'p456'); at = {}; mark = {}
    def mm(i):
        T_, q = divmod(i, 7); r = []
        if T_ >= 32:
            o = [(f, nb) for f in range(4) for nb in range(2)] if i == 279 else [(f, nb) for nb in range(2) for f in range(4)]
            return [mf16(a6(f, nb), oloc((T_ - 32) * 14 + q * 2 + nb), vr(wf(i, f), 4)) for f, nb in o]
        for mb in range(2):
            for kb in range(4):
                w = vr(wf(i, kb), 4); x = af(T_, kb, mb); first = kb == 0 and T_ in (0, 8, 16)
                if T_ < 8: r.append(mf16(a2(q, mb), x, w, '0' if first else None))
                elif T_ < 16: r.append(mf16(a1(q, mb), w, x, '0' if first else None))
                else: r.append(mf16(a2(q, mb), w, x, vr(BQ + 4 * mb, 4) if first else None))
        return r
    def gelu_window():
        mark['g0'] = len(S.s)
        for nb in range(7):
            for mb in range(2):
                a = a2(nb, mb); t = TT + mb * 4; c = lambda k, i: pr(RC + (k * 2 + mb) * 4 + 2 * i); A = lambda i: pr(a + 2 * i); t_ = lambda i: pr(t + 2 * i)
                x = [pk('mul', t + 2 * i, A(i), A(i)) for i in (0, 1)] + [pk('fma', t + 2 * i, t_(i), c(3, i), c(2, i)) for i in (0, 1)]
                x += [pk('mul', t + 2 * i, t_(i), A(i)) for i in (0, 1)] + [f"v_exp_f32 v{t+i}, v{t+i}" for i in range(4)]
                y = [pk('fma', t + 2 * i, t_(i), c(1, i), c(1, i)) for i in (0, 1)] + [f"v_rcp_f32 v{t+i}, v{t+i}" for i in range(4)]
                y += [pk('mul', a + 2 * i, A(i), t_(i)) for i in (0, 1)]
                for i in (0, 1):
                    s, q = SQ + mb * 4 + 2 * i, SQ + 8 + mb * 4 + 2 * i
                    y += [pk('add', s, pr(s), A(i)), pk('fma', q, A(i), A(i), pr(q))]
                for z in (x, y): S.s[S.add('\n'.join(z), cap=4)]['vm'] = True
        mark['g1'] = len(S.s)
    def window5():
        mark['w0'] = len(S.s)
        for k in range(K.n5 + 1): S.s[S.add('', cap=4)]['vm'] = True
        mark['w1'] = len(S.s)
        for k in range(K.n6 + 1): S.s[S.add('', cap=4)]['vm'] = True
        mark['w2'] = len(S.s)
    for i in range(NT * 7):
        if i == 56: gelu_window()
        if i == 224: window5()
        if i == 56 + K.zpos and K.zpos:
            mark['n0'] = len(S.s)
            for nb in range(7):
                x = [pk('fma', a2(nb, 0) + 2 * j, pr(a2(nb, 0) + 2 * j), pr(ZC + 2 * j), pr(ZC + 8 + 2 * j)) for j in range(4)] + pack(a2(nb, 0), a2(nb, 1))
                k = S.add('\n'.join(x), cap=4 if K.zs else 2)
                if not K.zs: S.put(k, ST7(a2(nb, 0), nb, S11, 'z2'))
                else: S.s[k]['vm'] = True
        at[i] = len(S.s)
        for g, m in enumerate(mm(i)): S.s[S.add(m)]['vm'] = g in (0, 2)
    if NT == 32: window5()
    sl = lambda T_, q=0, g=0: at[T_ * 7 + q] + g
    endof = lambda T_: at[T_ * 7 + 6] + 8
    bar = lambda T_: sl(T_, 5, 3)
    for i in range(NT * 7):
        T_, q = divmod(i, 7)
        if i + 2 < NT * 7 and i + 2 not in (224, 225):
            for k, l in enumerate(frag_reads(i + 2)): S.put(at[i] + 4 + k, l)
        if q == 5 and T_ < NT - 1 + (NT == 32): S.tail(at[i] + 3, W(tag=f'ring{T_+1}' if T_ != 31 and not (T_ == 15 and K.zl) else None, lg0=True), "s_barrier")
        if i + 1 < NT * 7 and i + 1 != 224:
            regs = [vr(wf(i + 1, 0), 16)]
            if q == 6 and T_ < 31: regs.append(ar(((T_ + 1) & 7) * 32, 32))
            if i + 1 > 224: regs += [oloc((i + 1 - 224) * 2 + nb) for nb in range(2)]
            S.tail(at[i] + 7, W(regs))
        if q == 5 and (K.skip >> (0 if T_ < 8 else 1 if T_ < 16 else 2 if T_ < 32 else 3)) & 1: S.s[at[i] + 2]['vm'] = False
    e = S.stream([LD(vr(GZ + 4 * i, 4), i, S7) for i in range(4)] + (bl if K.e3 else []), sl(0, 2), sl(1), even=False)
    x = [f"v_lshlrev_b32 v{BQ+4*mb}, 16, v{BQ+4*mb}" for mb in range(2)] + [f"v_mov_b32 v{BQ+4*mb+r}, v{BQ+4*mb}" for r in range(1, 4) for mb in range(2)]
    x += [f"v_lshrrev_b32 v{vt}, 5, v0", f"v_lshl_add_u32 v{vt}, v{vt}, 6, v{vJ}"]
    x += [f"ds_read_b32 v{CS2+nb}, v{vJ} offset:{L_CSF+512+nb*64}" for nb in range(7)]
    x += [f"v_mov_b32 v{SQ+r}, 0" for r in range(16)]
    if K.e3: S.stream(x[8:], sl(1), sl(2)); S.stream(x[:8], sl(3), sl(4))
    else: S.stream(x, sl(1), sl(2))
    x = [W([vr(GZ, 16)])]
    for a, b in ((0, 4), (8, 12), (0, 8)): x += [f"v_add_f32 v{GZ+a+r}, v{GZ+a+r}, v{GZ+b+r}" for r in range(4)]
    x += [f"v_permlane32_swap_b32 v{GZ+r}, v{GZ+2+r}" for r in range(2)] + [f"v_add_f32 v{GZ+r}, v{GZ+r}, v{GZ+2+r}" for r in range(2)]
    x += interleave(xsum(GZ, GZ + 2, 16), xsum(GZ + 1, GZ + 3, 16))
    def meanvar(n): return lines(f"""v_mul_f32 v{GZ}, {f32(-1/n)}, v{GZ}
          v_mul_f32 v{GZ+1}, {f32(1/n)}, v{GZ+1}
          v_fma_f32 v{GZ+1}, -v{GZ}, v{GZ}, v{GZ+1}
          v_max_f32 v{GZ+1}, 0, v{GZ+1}
          v_add_f32 v{GZ+1}, {f32(1e-5)}, v{GZ+1}
          v_rsq_f32 v{GZ+2}, v{GZ+1}""")
    x += meanvar(1024) + lines(f"""v_mul_f32 v{GZ+1}, v{GZ+1}, v{GZ+2}
          v_mul_f32 v{GZ+3}, v{GZ+2}, v{GZ+2}
          v_mul_f32 v{GZ+3}, v{GZ+3}, v{GZ+2}
          v_mul_f32 v{GZ+2}, {f32(-C1)}, v{GZ+2}
          v_mul_f32 v{GZ+3}, {f32(-C2)}, v{GZ+3}""")
    x += [f"ds_write_b32 v{vt}, v{GZ+c} offset:{L_K+c*128}" for c in range(4)]
    x += [f"ds_read_b128 {vr(RC+4*i,4)}, v{vG} offset:{L_K+i*64}" for i in range(8)]
    x += [f"ds_read_b32 v{KC+i}, v{vJ} offset:{L_K+i*64}" for i in range(8)]
    x += lines(f"""s_lshl_b32 s{S8}, s{S_R32}, 13
          s_add_u32 s{S8}, s{S8}, {WS_ZST}
          s_lshl_b32 s3, s{S_CB}, 9
          s_add_u32 s{S7}, s{S8}, s3
          s_lshl_b32 s{S9}, s{S_W}, 11
          s_lshl_b32 s3, s{S_CB}, 7
          s_add_u32 s{S9}, s{S9}, s3
          s_lshl2_add_u32 s{S9}, s{S_RB}, s{S9}
          s_add_u32 s{S9}, s{S9}, {WS_F4}
          s_add_u32 s{S10}, s{S_LINE}, {WS_F4}""") + [RL(S11, vTZ, 0)]
    S.stream(x, sl(2), sl(5))
    for mb in range(2):
        for q in range(7):
            nb = (q + 4) % 7
            S.stream([f"v_fmac_f32 v{a2(nb,mb)+r}, v{RC+4*mb+r}, v{CS2+nb}" for r in range(4)], sl(5 + mb, q), sl(5 + mb, q, 7))
    x = []
    for bm, o in (('0x3', 0), ('0xc', 4)):
        x += [f"v_add_f32_dpp v{SQ+sq*8+r}, v{SQ+sq*8+r+o}, v{SQ+sq*8+r+o} row_ror:8 row_mask:0xf bank_mask:{bm}" for sq in range(2) for r in range(4)]
    for bm, o in (('0x5', 0), ('0xa', 8)):
        x += [f"v_add_f32_dpp v{SQ+r}, v{SQ+r+o}, v{SQ+r+o} row_half_mirror row_mask:0xf bank_mask:{bm}" for r in range(4)]
    for perm in ('[1,0,3,2]', '[2,3,0,1]'):
        x += [f"v_add_f32_dpp v{SQ+r}, v{SQ+r}, v{SQ+r} quad_perm:{perm} row_mask:0xf bank_mask:0xf" for r in range(4)]
    x += [f"v_cndmask_b32 v{SQ}, v{SQ}, v{SQ+r}, s[{S_M+2*r-2}:{S_M+2*r-1}]" for r in range(1, 4)]
    x += [f"v_mov_b32 v{SQ+2}, v{V_E}", f"v_mov_b32 v{SQ+3}, v{V_E}", f"v_mov_b32_dpp v{SQ+1}, v{SQ} row_shl:4 row_mask:0xf bank_mask:0xf"]
    zs = ST(vr(SQ, 4), vZS, S7, 0, 'zst')
    if K.g1:
        S.hold = False; e = S.stream(x, sl(8), None, even=False); S.hold = True
        e = S.stream([zs], e + 1, None, even=False)
    else:
        S.put(mark['g1'] - 1, *x, zs); S.s[mark['g1'] - 1]['vm'] = False; e = sl(8)
    gl = [LD(vr(GZ + 4 * i, 4), i, S8) for i in range(8)]
    ck = [f"v_bitop3_b32 v{vt}, v{GZ+2}, v{V_E}, v{GZ+6} bitop3:0x7e"] + [f"v_bitop3_b32 v{vt}, v{GZ+4*i+2}, v{V_E}, v{vt} bitop3:0xbe" for i in range(2, 8)] + [f"v_cmp_ne_u32 vcc, 0, v{vt}"]
    e = S.stream(gl, e + K.zg, None, even=False); glast = e
    S.hold = bool(K.zh & 1)
    e = S.stream([W([vr(GZ, 32)])] + ck, e + K.zc, None, even=False)
    x = [retry(K, 'RT_ZG', gl, ck)]
    for d in (16, 8, 4): x += [f"v_add_f32 v{GZ+b+r}, v{GZ+b+r}, v{GZ+b+d+r}" for b in range(0, d, 4) for r in range(2)]
    x += interleave(xsum(GZ, GZ + 2, 32), xsum(GZ + 1, GZ + 3, 32)) + meanvar(1792) + [f"v_mul_f32 v{GZ}, v{GZ}, v{GZ+2}"]
    x += [f"ds_write_b32 v{vZW}, v{GZ+2} offset:{L_Z}", f"ds_write_b32 v{vZW}, v{GZ} offset:{L_Z+128}"]
    x += [f"ds_read_b128 {vr(ZC+4*i,4)}, v{vG} offset:{L_Z+i*64}" for i in range(4)]
    e = S.stream(x, e + 3, None, even=False)
    x = []
    for nb in range(7):
        x += [f"v_fma_f32 v{a2(nb,mb)+r}, v{a2(nb,mb)+r}, v{ZC+4*mb+r}, v{ZC+8+4*mb+r}" for mb in range(2) for r in range(4)]
        x += pack(a2(nb, 0), a2(nb, 1)) + [ST7(a2(nb, 0), nb, S11, 'z2')]
    S.hold = bool(K.zh & 2)
    if K.zpos:
        print('  LN3 constants read', mark['n0'] - e, 'slots before use'); assert mark['n0'] > e; e = mark['n0'] + 6
        if K.zs: e = S.stream([ST7(a2(nb, 0), nb, S11, 'z2') for nb in range(7)], mark['n0'], None, even=False, gap=K.zs)
        if K.zl: S.stream([f"ds_write_b128 v{vEW}, {vr(a2(nb,0),4)} offset:{slot(16)+nb*1024}" for nb in range(7)], max(bar(11) + 1, mark['n0'] + 7), bar(15) - 8, even=False, gap=8)
    else: e = S.stream(x, e + 8, None, even=False)
    S.hold = True
    print('  z2 stored at', (e - sl(8)) / 56)
    e = S.stream([G(W(tag='z2'), send(vFC, S9))], e + K.zd, None, even=False); f4s = e
    S.back(poll(S10)[0], e, e + K.f4p - 1)
    e = S.stream([poll(S10)[1]], e + K.f4p, None, even=False)
    e = S.stream([G(W([vr(vPOLL)]), pchk(16)[0]), pchk(16)[1]], e + K.f4c, None, even=False)
    e = S.stream([retry(K, 'RT_F4', poll(S10), pchk(16))], e + 2, None, even=False); f4c = e
    print('  f4 sent at', (f4s - sl(8)) / 56, 'checked at', (f4c - sl(8)) / 56)
    assert (K.zl or f4s + 20 < bar(15)) and f4c + 20 < bar(16)
    x = lines(f"""s_mul_i32 s{S7}, s{S_LINE}, 56
          s_add_u32 s{S7}, s{S7}, {WS_U}
          s_and_b32 s{S8}, s{S_CB}, 1
          s_and_b32 s3, s{S_W}, 1
          s_lshl1_add_u32 s3, s3, s{S8}
          s_lshl2_add_u32 s3, s{S_RB}, s3
          s_lshr_b32 s{S9}, s{S_W}, 1
          s_lshl4_add_u32 s3, s3, s{S9}
          s_lshl_b32 s3, s3, 5
          s_lshr_b32 s{S11}, s{S_CB}, 1
          s_add_u32 s3, s3, s{S11}
          s_lshl_b32 s3, s3, 2
          s_add_u32 s{S9}, s3, {WS_F5}
          s_add_u32 s{S10}, s{S_LINE}, {WS_F5}
          s_lshl1_add_u32 s{S8}, s{S_RB}, s{S8}
          s_lshl_b32 s{S8}, s{S8}, 17
          s_lshl2_add_u32 s{S11}, s{S11}, s{S_W}
          s_lshl_b32 s3, s{S11}, 6
          s_add_u32 s{S_XB}, s{S8}, s3
          s_lshl_b32 s3, s{S11}, 11
          s_add_u32 s{S8}, s{S8}, s3
          s_add_u32 s{S8}, s{S8}, {WS_H}
          s_add_u32 s{S11}, s{S8}, 65536""")
    S.stream(x, sl(18), sl(20))
    S.hold = False
    x = []; e = 0
    def um(nb): return [f"v_mul_f32 v{a1(nb,mb)+r}, v{a1(nb,mb)+r}, v{a2(nb,mb)+r}" for mb in range(2) for r in range(4)]
    def up(p, mb): return pack(a1(2 * p, mb), a1(2 * p + 1, mb)) + [ST7(a1(2 * p, mb), 2 * p + mb, S7, 'ust')]
    for nb in range(5):
        x = um(nb) + (up(nb >> 1, 0) + up(nb >> 1, 1) if nb & 1 else [])
        e = S.stream(x, max(e, sl(31, nb + 1, 2)), endof(31), even=False)
    e = S.stream(um(5), max(e, sl(31, 6, 2)), endof(31), even=False)
    S.hold = True
    w0, w1, w2 = mark['w0'], mark['w1'], mark['w2']
    S.put(w0, F(lambda: stamp(P, 'p5e')), *up(2, 0), *um(6)[:4], *up(2, 1), *um(6)[4:], *pack(a1(6, 0), a1(6, 1)), ST7(a1(6, 0), 6, S7, 'ust'))
    S.s[w0]['vm'] = False
    k = w0 + 1 + (K.n5a if K.e5 else K.n5 // 4)
    S.tail(k, F(lambda: stamp(P, 'f5w'), 0), W(tag='ust'), send(vF5, S9), F(lambda: stamp(P, 'f5s'), 0)); usent = k
    if K.e5: S.tail(k - 1, poll(S10)[0]); S.tail(k + K.n5b, poll(S10)[1]); S.tail(k + K.n5c, *poll(S10, vDUM))
    if NT == 40:
        x = [f"v_add_u32 v{vU1}, 8, v{vLR[0]}", f"v_add_u32 v{vU3}, 8, v{vLR[2]}"]
        for f in range(4): x += unpack(lambda i: a6(f, i >> 1) + (i & 1) * 2, HQ + 4 * f)
        S.tail(w1 - 1, *x)
        if K.e5: S.put(w1, F(lambda: stamp(P, 'f5p'), 0), *pchk(8), retry2(K, 'RT_F5', S10, 8), F(lambda: stamp(P, 'f5')))
        else: S.put(w1, F(lambda: stamp(P, 'f5p'), 0), *poll(S10), *pchk(8), retry(K, 'RT_F5', poll(S10), pchk(8)), F(lambda: stamp(P, 'f5')))
        S.s[w1]['vm'] = False
        S.tail(w2 - 1, W(tag='ring32'), "s_barrier", *frag_reads(224), *frag_reads(225), W([vr(wf(224, 0), 16), oloc(0), oloc(1)]))
        S.stream([LD(vr(HQ + 4 * f, 4), f & 1, S11 if f >> 1 else S8) for f in range(4)], sl(30, 4), sl(31, 1), even=False)
        so = [S_XB, S7, S8, S9]
        S.stream([f"s_add_u32 s{so[f]}, s{S_XB}, {(f>>1)*65536+(f&1)*8192}" for f in range(1, 4)], sl(33), sl(34))
    ring = []; reg = []
    for T_ in range(K.rs, NT):
        if T_ == 16 and K.zl: continue
        w = wdma(T_)
        rel = max(bar(T_ - 5) + 1 if T_ >= 5 else 4, f4s + 1 if T_ == 16 else (f4c + 1 if T_ > 16 else 0), w1 + 1 if T_ >= 32 else 0)
        dl = bar(T_ - 1) if T_ != 32 else w1
        ring.append(dict(pre=w[0], m0=w[1], it=[(x, rel, dl) for x in w[2:6]]))
        ring.append(dict(pre=None, m0=w[6], it=[(x, rel, dl) for x in w[7:]]))
    for u in range(24):
        rel = 0 if u < 8 else endof(u)
        reg.append(dict(pre=RL(SA[u & 1], vTH if u < 8 else vTS, u if u < 8 else u - 8) if u >= 2 else None, m0=None,
                        it=[(LD(ar((u & 7) * 32 + 4 * p, 4), p, SA[u & 1]), rel, sl(u if u < 8 else u + 8)) for p in range(8)]))
    if NT == 40:
        k = 0
        for s in range(8):
            for h in range(4):
                its = []
                for n in range(s * 14 + 4 * h, s * 14 + min(4 * h + 4, 14)):
                    rel = sl(16) if n < 12 else (endof(24 + ((n - 12) >> 3)) if n < 76 else (w0 + 1 if n < 82 or K.wr else (usent + 1 if n < 96 else at[224 + (n - 96) // 2] + 8)))
                    its.append((LD(oloc(n), ((n - s * 14) & 2) * 2 + (n & 1), SA[k & 1]), rel, at[224 + n // 2]))
                reg.append(dict(pre=RL(SA[k & 1], vTO, s) if h == 0 else f"s_add_u32 s{SA[k&1]}, s{SA[(k-1)&1]}, 8192", m0=None, it=its)); k += 1
    q = [[(g, j) for g in st for j in range(len(g['it']))] for st in (ring, reg)]
    for g in ring + reg: g['pos'] = []
    for n in range(K.n4):
        g, j = q[1].pop(0); emit(P, g['it'][j][0]); g['pos'].append(-1)
    cnt = {}
    for i, x in enumerate(S.s):
        if not x.get('vm') or x['load'] - sum(weight(t) for t in x['tail']): continue
        if mark['n0'] + 7 + K.qa0 <= i < mark['n0'] + 7 + K.qa or glast + K.qb0 < i <= glast + K.qb or f4s + K.qc0 < i <= f4s + K.qc: continue
        c = [st for st in q if st and st[0][0]['it'][st[0][1]][1] <= i]
        if not c: continue
        st = min(c, key=lambda st: st[0][0]['it'][st[0][1]][2])
        g, j = st.pop(0); S.put(i, g['it'][j][0]); g['pos'].append(i)
        assert i < g['it'][j][2] or mark['w1'] < i < mark['w2'], (i, g['it'][j])
    assert not q[0] and not q[1]
    print('  vmem/stage', [sum(1 for x in S.s[sl(T_):endof(T_)] for it in x['post'] if isvm(it)) for T_ in range(NT)], 'gelu window', sum(1 for x in S.s[mark['g0']:mark['g1']] for it in x['post'] if isvm(it)))
    print('  ring issued at', [round((g['pos'][-1] - g['it'][-1][2]) / 56, 1) for k, g in enumerate(ring) if k & 1])
    print('  reg issued at', [round((g['pos'][-1] - g['it'][-1][2]) / 56, 1) for g in reg])
    for st in (ring, reg):
        last = {}; lp = -1; pp = -1
        for g in st:
            if g['pre']:
                d = g['pre'].split()[1].rstrip(',')
                lo = max(last.get(d, -1), pp, 0)
                pp = S.back(g['pre'], lo, max(lo, g['pos'][0] - 3))
            if g['m0']: S.back(g['m0'], max(lp, 0), max(g['pos'][0] - 1, 0))
            d = re.search(r'\], (s\d+) offen', itext(g['it'][0][0])).group(1)
            last[d] = lp = g['pos'][-1]
    S.hold = False
    for k in range(7):
        nb = (2 * k + 4) % 7; cq = TT + 4 * (k & 1); i = 13 * 7 + 2 * k
        S.stream([f"ds_read_b128 {vr(cq,4)}, v{vG} offset:{L_CSF+nb*64}"], at[i - 2] + 1, at[i - 1], even=False)
        S.stream([f"v_fmac_f32 v{a1(nb,mb)+r}, v{KC+mb}, v{cq+r}" for mb in range(2) for r in range(4)], at[i], at[i + 1] + 7)
    ops = []; fin = []
    for nb in range(7):
        base = len(ops)
        for stp in range(7):
            for mb in range(2):
                for r in range(4):
                    a = a1(nb, mb) + r; t = TT + mb * 4 + r; k = lambda c_: KC + 2 * c_ + mb
                    txt = [f"v_mul_f32 v{t}, v{a}, v{a}", f"v_fma_f32 v{t}, v{t}, v{k(3)}, v{k(2)}", f"v_mul_f32 v{t}, v{t}, v{a}",
                           f"v_exp_f32 v{t}, v{t}", f"v_fma_f32 v{t}, v{t}, v{k(1)}, v{k(1)}", f"v_rcp_f32 v{t}, v{t}", f"v_mul_f32 v{a}, v{a}, v{t}"][stp]
                    ops.append((txt, [base + (stp - 1) * 8 + mb * 4 + r] if stp else fin[-8 + mb * 4 + r:][:1]))
        fin += [base + 48 + j for j in range(8)]
    e = S.dag(ops, sl(16), sl(30, 4))
    print('  gelu z1 ends', (e - sl(16)) / 56)
    for nm, T_ in [('pa4', 4), ('pb0', 8), ('p50', 16), ('p58', 24), ('p64', 36)] + [(f's{t}', t) for t in range(40)]:
        if T_ < NT: S.put(sl(T_, 5, 1), F(lambda nm=nm: stamp(P, nm), 0))
    for i in range(NT * 7): S.put(at[i] + 1, F(lambda i=i: stamp(P, f'u{i}'), 0))
    S.put(mark['g0'], F(lambda: stamp(P, 'g0'), 0))
    P.wait([ar(0, 32), vr(wf(0, 0), 16)])
    S.emit()
    if NT == 32: return
    stamp(P, 'p6e')
    for f in range(4):
        a = a6(f, 0)
        for l in pack(a, a6(f, 1)): P(l)
        for r in range(2): P(f"v_permlane16_swap_b32 v{a+r}, v{a+r+2}")
        P(f"buffer_store_dwordx4 {vr(a,4)}, v{vXO}, {R(R_OUT)}, s{so[f]} offen" + ['', ' sc1', ' nt', ' sc0 sc1', ' sc0 sc1 nt'][K.op])
```

```python
import sys, os
sys.path.insert(0, os.path.dirname(os.path.abspath(__file__)))
from p2 import *
import p2
NAME = 'sequential_preLN__mha_block__mixer_gmlp__prompt'
REF = f'cdna_kernels/{NAME}.s.ref'

def header():
    out = []
    for l in open(REF):
        if l.startswith('; Override'): break
        out.append(l)
    return ''.join(out)

class KK:
    csbar = 100; f1send = 100; f1poll = 170; f1chk = 225
    t_in = 6; d_l = 5; t_tw = 9; n_tw = 8; d_tw = 6; t_wo = 64; d_wo = 8; t_out = 60; d_s = 5; i_fp = 1; t_fp = 112; nojobs = 0; xp = 0; xr = 0; n3 = 12
    n4 = 12; skip = 1; zh = 3; zpos = 26; zg = 64; zc = 36; zd = 36; f4p = 56; f4c = 36; n5 = 16; n6 = 14; wz = 4; g1 = 0
    r1 = 1; r3 = 1; r4 = 1; r5 = 1; r6 = 1; zs = 0; zl = 0; tb = 2; tbd = 2
    e2 = 2; e3 = 1; e5 = 1; rs = 4; na = 7; nb = 1; nc = 4; n5a = 6; n5b = 1; n5c = 5; op = 0; av = 0; sm = 3; dn = 0; so = 3666; s1 = 3; kvs = 4; qa0 = 0; qa = 0; qb0 = 0; qb = 0; qc0 = 0; qc = 0; wr = 0
    def __init__(self, **kw):
        self.P = Prog('k'); self.ool = []
        for k, v in os.environ.items():
            if k.startswith('K_'): setattr(self, k[2:], int(v))
        self.__dict__.update(kw)
    def attn_addr(self): attn_addr(self)
    def kv_first(self): return kv_first(self)
    def passb_extra(self): return passb_extra(self)

def finish(K):
    P = K.P
    P(f"s_or_b32 s3, s2, s{S_W}\n s_cmp_lg_u32 s3, 0")
    P("s_cbranch_scc1 NOEP")
    P(f"v_mov_b32 v{vt}, {WS_EP}\n buffer_store_dword v{V_E}, v{vt}, {R(R_WS)}, 0 offen sc1")
    P.label('NOEP')
    if PROF:
        P.wait(vm0=True)
        stamp(P, 'end')
        P("s_memtime s[100:101]")
        P(f"""s_lshl_b32 s3, s2, 2
              s_add_u32 s3, s3, s{S_W}
              s_lshl_b32 s3, s3, 6
              s_add_u32 s3, s3, {WS_PROF}
              v_mov_b32 v{vt}, 0""")
        P.wait(lg0=True)
        P(f"s_sub_u32 s98, s100, s98")
        for q in range(4):
            for i in range(4):
                k = q * 4 + i
                P(f"v_mov_b32 v{8+i}, {'s%d' % (S_ST+2*k) if k < 13 else ('s98' if k == 13 else 's%d' % (S_SPIN if k == 14 else 99))}")
            P(f"buffer_store_dwordx4 v[8:11], v{vt}, {R(R_WS)}, s3 offen offset:{q*16}")
    P.wait(vm0=True)
    P.label('END'); P("s_endpgm")
    for f in K.ool: f()
    P.label('CODE_END')

def build(path, verbose=1, **kw):
    K = KK(**kw)
    P = K.P
    if PROF:
        for i in range(13): P(f"s_mov_b32 s{S_ST+2*i}, 0")
    prologue(K); phase1(K)
    if UPTO >= 2: phase2(K)
    if UPTO >= 3:
        import p3; p3.phase3(K)
    if UPTO >= 4:
        import p4; p4.phase45(K)
    finish(K)
    body = P.finalize(verbose)
    lab = NAME + '_kernel'
    mx = dict(P.maxreg); mx['v'] = 255; mx['a'] = 255
    txt = header() + f"; @launch grid=(256,1,1) block=(256,1,1) lds={4*PW}\n" + '.amdgcn_target "amdgcn-amd-amdhsa--gfx950"\n' + kernel_text(lab, body, mx)
    open(path, 'w').write(txt)
    print('bytes', len(txt))

if __name__ == '__main__':
    build(sys.argv[1] if len(sys.argv) > 1 else 'f.s', int(os.environ.get('V', 1)))
```
